```python
import torch

def _softmax(x, axis=-1):
    return torch.softmax(x, dim=axis)
def _gelu(x):
    return torch.nn.functional.gelu(x, approximate="tanh")
def _silu(x):
    return torch.nn.functional.silu(x)
def _sigmoid(x):
    return torch.sigmoid(x)
def _layernorm(x, axis=-1, eps=1e-5):
    m = x.mean(dim=axis, keepdim=True)
    v = x.var(dim=axis, keepdim=True, unbiased=False)
    return (x - m) / torch.sqrt(v + eps)
def _scatter_add(tgt, idx, src, axis=0):
    return tgt.clone().index_add_(axis, idx, src)
def _segment_sum(src, seg, n):
    out = torch.zeros((n,) + src.shape[1:], dtype=src.dtype)
    return out.index_add_(0, seg, src)
def _pad(x, pw):
    flat = tuple(v for pair in reversed(pw) for v in pair)
    return torch.nn.functional.pad(x, flat)

kernel_name = 'concat_heads__sliding_block_cached__sliding_block_cached__decode'

def setup_inputs():

    _w = (lambda a: (lambda t: t.to(torch.bfloat16) if t.is_floating_point() else t)(torch.as_tensor(a)))
    def _A_setup():
        B, Sq, D = 8, 1, 1024
        Hq, Hkv, Sk, Dh = 32, 4, 4096, 128
        assert Hq % Hkv == 0, (Hq, Hkv)
        return {
            "x": _w((lambda *s: torch.randn(*s, dtype=torch.bfloat16) * 0.8)(B, Sq, D)),
            "k_cache": _w((lambda *s: torch.randn(*s, dtype=torch.bfloat16) * 0.8)(B, Hkv, Sk, Dh)),
            "v_cache": _w((lambda *s: torch.randn(*s, dtype=torch.bfloat16) * 0.05)(B, Hkv, Sk, Dh)),
            "wq": _w((lambda *s: torch.randn(*s, dtype=torch.bfloat16) * 0.8)(D, Hq * Dh) * (D ** -0.5)),
            "wo": _w((lambda *s: torch.randn(*s, dtype=torch.bfloat16) * 0.05)(Hq * Dh, D) * ((Hq * Dh) ** -0.5)),
        }
    _A_in = _A_setup()

    def _B_setup():
        B, Sq, D = 8, 1, 1024
        Hq, Hkv, Sk, Dh = 32, 4, 4096, 128
        assert Hq % Hkv == 0, (Hq, Hkv)
        return {
            "x": _w((lambda *s: torch.randn(*s, dtype=torch.bfloat16) * 0.8)(B, Sq, D)),
            "k_cache": _w((lambda *s: torch.randn(*s, dtype=torch.bfloat16) * 0.8)(B, Hkv, Sk, Dh)),
            "v_cache": _w((lambda *s: torch.randn(*s, dtype=torch.bfloat16) * 0.05)(B, Hkv, Sk, Dh)),
            "wq": _w((lambda *s: torch.randn(*s, dtype=torch.bfloat16) * 0.8)(D, Hq * Dh) * (D ** -0.5)),
            "wo": _w((lambda *s: torch.randn(*s, dtype=torch.bfloat16) * 0.05)(Hq * Dh, D) * ((Hq * Dh) ** -0.5)),
        }
    _B_in = _B_setup()

    return {
        "A_x": _A_in["x"],
        "A_k_cache": _A_in["k_cache"],
        "A_v_cache": _A_in["v_cache"],
        "A_wq": _A_in["wq"],
        "A_wo": _A_in["wo"],
        "B_x": _B_in["x"],
        "B_k_cache": _B_in["k_cache"],
        "B_v_cache": _B_in["v_cache"],
        "B_wq": _B_in["wq"],
        "B_wo": _B_in["wo"],
    }

def reference(A_x, A_k_cache, A_v_cache, A_wq, A_wo, B_x, B_k_cache, B_v_cache, B_wq, B_wo):
    def _A_ref(x, k_cache, v_cache, wq, wo):
        B, Sq, D = x.shape
        Hq, Dh = 32, 128
        Hkv, Sk = k_cache.shape[1], k_cache.shape[2]
        W = min(4096, max(256, Sk // 4))
        rep = Hq // Hkv
        q = (lambda x, *d: x.permute(*d))((x @ wq).reshape(B, Sq, Hq, Dh), 0, 2, 1, 3)
        k = (lambda x, n, axis: torch.repeat_interleave(x, n, dim=axis))(k_cache[:, :, Sk - W:, :], rep, axis=1)
        v = (lambda x, n, axis: torch.repeat_interleave(x, n, dim=axis))(v_cache[:, :, Sk - W:, :], rep, axis=1)
        scores = torch.einsum("bhqd,bhkd->bhqk", q, k) * (Dh ** -0.5)
        p = _softmax(scores, axis=-1)
        o = torch.einsum("bhqk,bhkd->bhqd", p, v)
        return (lambda x, *d: x.permute(*d))(o, 0, 2, 1, 3).reshape(B, Sq, Hq * Dh) @ wo

    def _B_ref(x, k_cache, v_cache, wq, wo):
        B, Sq, D = x.shape
        Hq, Dh = 32, 128
        Hkv, Sk = k_cache.shape[1], k_cache.shape[2]
        W = min(4096, max(256, Sk // 4))
        rep = Hq // Hkv
        q = (lambda x, *d: x.permute(*d))((x @ wq).reshape(B, Sq, Hq, Dh), 0, 2, 1, 3)
        k = (lambda x, n, axis: torch.repeat_interleave(x, n, dim=axis))(k_cache[:, :, Sk - W:, :], rep, axis=1)
        v = (lambda x, n, axis: torch.repeat_interleave(x, n, dim=axis))(v_cache[:, :, Sk - W:, :], rep, axis=1)
        scores = torch.einsum("bhqd,bhkd->bhqk", q, k) * (Dh ** -0.5)
        p = _softmax(scores, axis=-1)
        o = torch.einsum("bhqk,bhkd->bhqd", p, v)
        return (lambda x, *d: x.permute(*d))(o, 0, 2, 1, 3).reshape(B, Sq, Hq * Dh) @ wo

    a = _A_ref(A_x, A_k_cache, A_v_cache, A_wq, A_wo)
    b = _B_ref(B_x, B_k_cache, B_v_cache, B_wq, B_wo)
    return torch.concatenate([a, b], axis=-1)
```

```python
import sys
KN = "concat_heads__sliding_block_cached__sliding_block_cached__decode_kernel"
REF = "concat_heads__sliding_block_cached__sliding_block_cached__decode.s.ref"

Q_BASE = 0x10000
S_BASE = 0xA0000
O_BASE = 0x100000
R_BASE = 0x200000
DBG_BASE = 0x800000
WS_BYTES = 0x1000000
F_Q1, F_Q, F_P, F_O1 = 0, 4, 8, 12
QLDS = 64
PLDS = 2304
STLDS = 10496
OLDS = 10752
PART = 15360
LDS_BYTES = PART + 4 * 4224
sGRP, sIDX, sBR, sHKV, sI, sROLE = 3, 4, 5, 6, 7, 8
sX, sK, sV, sWQ, sWO, sOUT, sWS = 12, 14, 16, 18, 20, 22, 24
SRD_A, SRD_WS, SRD_B = 28, 32, 36
sT = 40
sSELLO, sSELHI = 44, 45
sOFF, sTMP, sTMP2, sCNT, sB, sSC = 46, 47, 48, 49, 50, 51
TS0 = 60

def gen(pol="nt", dbg=False, prio=(3, 3, 2, 1), gprio=0, qsleep=8, osleep=4):
    o = []
    def e(s): o.append(s)
    pf = (" " + pol) if pol else ""
    def ts(k):
        if dbg: e(f"s_memrealtime s[{TS0+2*k}:{TS0+2*k+1}]")
    def srd(d, base, nbytes):
        e(f"s_mov_b32 s{d}, s{base}\ns_mov_b32 s{d+1}, s{base+1}\ns_mov_b32 s{d+2}, {nbytes}\ns_mov_b32 s{d+3}, 0x20000")
    def q(a): return f"v[{a}:{a+3}]"
    uid = [0]
    def lab(n):
        uid[0] += 1; return f"L_{n}_{uid[0]}"
    def flag_add(off, vz, vone):
        e("s_waitcnt lgkmcnt(0)\ns_mov_b64 exec, 1")
        e(f"ds_add_u32 v{vz}, v{vone} offset:{off}")
        e("s_mov_b64 exec, -1")
    def spin(off, n, vz, vt, sleep=0):
        l = lab("spin"); d = lab("spun")
        e(f"s_mov_b32 s{sCNT}, 0x80000")
        e(f"{l}:")
        e(f"ds_read_b32 v{vt}, v{vz} offset:{off}")
        e("s_waitcnt lgkmcnt(0)")
        e(f"v_readfirstlane_b32 s{sTMP}, v{vt}")
        e(f"s_cmp_ge_u32 s{sTMP}, {n}")
        e(f"s_cbranch_scc1 {d}")
        if sleep: e(f"s_sleep {sleep}")
        e(f"s_sub_u32 s{sCNT}, s{sCNT}, 1")
        e(f"s_cbranch_scc0 {l}")
        e("s_endpgm")
        e(f"{d}:")
    def tag_setup():
        e(f"s_add_u32 s{sT}, s{sT}, 0x9E3779B1")
        e(f"s_lshr_b32 s{sT+1}, s{sT}, 8\ns_lshr_b32 s{sT+2}, s{sT}, 16\ns_lshr_b32 s{sT+3}, s{sT}, 24")
    def epoch_load():
        e(f"s_lshl_b32 s9, s{sBR}, 8")
        e(f"s_load_dword s{sT}, s[{sWS}:{sWS+1}], s9")
    def tag_insert(v, vmask):
        for r in range(4): e(f"v_bfi_b32 v{v+r}, v{vmask}, s{sT+r}, v{v+r}")
    def tag_check(regs, vacc, retry):
        first = True
        for v in regs:
            for r in range(4):
                if first: e(f"v_xor_b32 v{vacc}, s{sT+r}, v{v+r}"); first = False
                else: e(f"v_bitop3_b32 v{vacc}, v{vacc}, v{v+r}, s{sT+r} bitop3:0xf6")
        e(f"v_and_b32 v{vacc}, 0xff, v{vacc}")
        e(f"v_cmp_ne_u32 vcc, 0, v{vacc}")
        e(f"s_cbranch_vccnz {retry}")
    def perm(dst, src, j, ip):
        u, p = j >> 1, j & 1
        e(f"v_perm_b32 v{dst}, v{src + (2*ip+1)*4 + u}, v{src + (2*ip)*4 + u}, s{sSELHI if p else sSELLO}")
    def mfma(d, a, b, c):
        e(f"v_mfma_f32_16x16x32_bf16 {q(d)}, {q(a)}, {q(b)}, {q(c) if c is not None else 0}")
    def pingpong(src, bop, acc, T, first):
        for ip in range(4): perm(T + ip, src, 0, ip)
        for j in range(8):
            if j < 7:
                for ip in range(4): perm(T + 4*((j+1) & 1) + ip, src, j + 1, ip)
            else:
                e("s_nop 0")
            mfma(acc + 4*j, T + 4*(j & 1), bop, None if first else acc + 4*j)
    def part_write(acc, va, lo, hi):
        e(f"s_mov_b32 exec_lo, {lo}\ns_mov_b32 exec_hi, {hi}\ns_nop 0")
        for j in range(8): e(f"ds_write_b128 v{va}, {q(acc+4*j)} offset:{PART + j*528}")
        e("s_mov_b64 exec, -1")
    def dbg_out(slot_s):
        if not dbg: return
        e("s_waitcnt lgkmcnt(0)\ns_mov_b64 exec, 1")
        e(f"s_lshl_b32 s{sTMP}, s{sROLE}, 2\ns_add_u32 s{sTMP}, s{sTMP}, s{sI}\ns_lshl_b32 s{sTMP2}, s2, 4\ns_add_u32 s{sTMP}, s{sTMP}, s{sTMP2}")
        e(f"s_lshl_b32 s{sTMP}, s{sTMP}, 6\ns_add_u32 s{sTMP}, s{sTMP}, {DBG_BASE}")
        for k in range(12): e(f"v_mov_b32 v{4+k}, s{TS0+2*k}")
        e(f"s_getreg_b32 s{sTMP2}, hwreg(HW_REG_XCC_ID)\nv_mov_b32 v16, s{sTMP2}\nv_mov_b32 v17, s{sCNT}\nv_mov_b32 v18, 0\nv_mov_b32 v19, 0\nv_mov_b32 v2, 0")
        for k in range(4): e(f"buffer_store_dwordx4 {q(4+4*k)}, v2, s[{SRD_WS}:{SRD_WS+3}], s{sTMP} offen offset:{16*k}")
        e("s_mov_b64 exec, -1")

    hdr = [l for l in open(REF).read().split("\n") if l.startswith(";") and "@launch" not in l]
    o += hdr
    e(f"; @launch grid=(256,1,1) block=(1024,1,1) lds={LDS_BYTES}")
    e('.amdgcn_target "amdgcn-amd-amdhsa--gfx950"\n.text')
    e(f".globl {KN}\n.p2align 8\n.type {KN},@function\n{KN}:")
    if dbg:
        for k in range(1, 12): e(f"s_mov_b32 s{TS0+2*k}, 0")
    ts(0)
    e("s_cmp_ge_u32 s2, 256\ns_cbranch_scc1 L_end")
    e(f"s_and_b32 s{sBR}, s2, 1\ns_mul_i32 s9, s{sBR}, 40\ns_add_u32 s10, s0, s9\ns_addc_u32 s11, s1, 0")
    e(f"s_load_dwordx8 s[12:19], s[10:11], 0\ns_load_dwordx2 s[20:21], s[10:11], 32")
    e(f"s_load_dwordx2 s[22:23], s[0:1], 80\ns_load_dwordx2 s[24:25], s[0:1], 96")
    e("v_lshrrev_b32 v2, 6, v0\nv_and_b32 v1, 63, v0")
    e(f"v_readfirstlane_b32 s{sROLE}, v2")
    e(f"s_and_b32 s{sGRP}, s2, 7\ns_lshr_b32 s{sIDX}, s2, 3\ns_lshr_b32 s{sHKV}, s{sGRP}, 1")
    e(f"s_mov_b32 s{sSELLO}, 0x05040100\ns_mov_b32 s{sSELHI}, 0x07060302")
    e(f"s_and_b32 s{sI}, s{sROLE}, 3\ns_lshr_b32 s{sROLE}, s{sROLE}, 2")
    e(f"s_cmp_eq_u32 s{sROLE}, 1\ns_cbranch_scc1 L_K\ns_cmp_eq_u32 s{sROLE}, 2\ns_cbranch_scc1 L_V\ns_cmp_eq_u32 s{sROLE}, 3\ns_cbranch_scc1 L_WO")

    XO, W, D, T = 4, 12, 76, 108
    vZ, vONE, vA, vM, vB = 116, 117, 118, 119, 120
    e(f"s_setprio {prio[0]}")
    e("v_lshrrev_b32 v2, 3, v1\nv_and_b32 v3, 7, v1")
    e(f"v_lshlrev_b32 v{vA}, 16, v2\nv_lshl_add_u32 v{vA}, v3, 4, v{vA}")
    e(f"v_lshlrev_b32 v{vB}, 11, v3\nv_lshl_add_u32 v{vB}, v2, 4, v{vB}")
    e(f"s_and_b32 s{sTMP}, s{sIDX}, 1\ns_lshl_b32 s{sTMP}, s{sTMP}, 2\ns_add_u32 s{sTMP}, s{sTMP}, s{sI}")
    e(f"s_lshl_b32 s{sTMP2}, s{sTMP}, 8")
    e(f"s_lshl_b32 s{sOFF}, s{sTMP}, 20\ns_lshl_b32 s{sTMP}, s{sHKV}, 11\ns_add_u32 s{sOFF}, s{sOFF}, s{sTMP}")
    e(f"s_lshr_b32 s{sTMP}, s{sIDX}, 1\ns_lshl_b32 s{sTMP}, s{sTMP}, 7\ns_add_u32 s{sOFF}, s{sOFF}, s{sTMP}")
    e("s_waitcnt lgkmcnt(0)")
    srd(SRD_B, sX, 16384); srd(SRD_A, sWQ, 8 << 20)
    e(f"buffer_load_dwordx4 {q(XO)}, v{vB}, s[{SRD_B}:{SRD_B+3}], s{sTMP2} offen")
    e(f"buffer_load_dwordx4 {q(XO+4)}, v{vB}, s[{SRD_B}:{SRD_B+3}], s{sTMP2} offen offset:128")
    for blk in range(2):
        for jj in range(8):
            e(f"buffer_load_dwordx4 {q(W + 32*blk + 4*jj)}, v{vA}, s[{SRD_A}:{SRD_A+3}], s{sOFF} offen{pf}")
            if (blk, jj) != (1, 7): e(f"s_add_u32 s{sOFF}, s{sOFF}, {8192 if jj < 7 else 57*8192}")
    epoch_load()
    e("s_barrier")
    ts(1)
    srd(SRD_WS, sWS, WS_BYTES)
    e(f"v_mov_b32 v{vZ}, 0\nv_mov_b32 v{vONE}, 1\nv_mov_b32 v{vM}, 0xff")
    e(f"v_lshrrev_b32 v2, 4, v1\nv_lshlrev_b32 v2, 3, v2\nv_add_u32 v2, v2, v3\nv_lshlrev_b32 v2, 4, v2")
    e(f"s_mul_i32 s{sTMP}, s{sI}, 4224\nv_add_u32 v{vA}, s{sTMP}, v2")
    e("s_waitcnt vmcnt(8)")
    pingpong(W, XO, D, T, True)
    e("s_waitcnt vmcnt(0)")
    ts(2)
    pingpong(W + 32, XO + 4, D, T, False)
    part_write(D, vA, "0x00ff00ff", "0xff00ff00")
    e(f"v_mul_u32_u24 v{vA}, 528, v3\nv_bfe_u32 v2, v1, 3, 1\nv_lshl_add_u32 v{vA}, v2, 7, v{vA}")
    e(f"v_bfe_u32 v2, v1, 4, 1\nv_lshl_add_u32 v{vA}, v2, 4, v{vA}\ns_lshl_b32 s{sTMP}, s{sI}, 5\nv_add_u32 v{vA}, s{sTMP}, v{vA}")
    flag_add(F_Q1, vZ, vONE)
    tag_setup()
    spin(F_Q1, 4, vZ, 2)
    e("s_mov_b32 exec_hi, 0")
    for w in range(4):
        for sub in range(2):
            e(f"ds_read_b128 {q(W + 8*w + 4*sub)}, v{vA} offset:{PART + w*4224 + sub*256}")
    e(f"v_lshlrev_b32 v2, 4, v1")
    e(f"s_lshl_b32 s{sOFF}, s{sGRP}, 5\ns_add_u32 s{sOFF}, s{sOFF}, s{sIDX}\ns_lshl_b32 s{sOFF}, s{sOFF}, 11\ns_lshl_b32 s{sTMP}, s{sI}, 9\ns_add_u32 s{sOFF}, s{sOFF}, s{sTMP}\ns_add_u32 s{sOFF}, s{sOFF}, {Q_BASE}")
    e("s_waitcnt lgkmcnt(0)")
    for st in (16, 8, 4):
        for k in range(st): e(f"v_add_f32 v{W+k}, v{W+k}, v{W+st+k}")
    tag_insert(W, vM)
    e(f"buffer_store_dwordx4 {q(W)}, v2, s[{SRD_WS}:{SRD_WS+3}], s{sOFF} offen sc1")
    e("s_mov_b64 exec, -1")
    ts(3)
    e(f"v_lshrrev_b32 v2, 4, v1\nv_lshlrev_b32 v2, 12, v2\nv_and_b32 v{vB}, 15, v1\nv_lshl_add_u32 v2, v{vB}, 4, v2")
    e(f"s_lshl_b32 s{sOFF}, s{sGRP}, 16\ns_lshl_b32 s{sTMP}, s{sI}, 14\ns_add_u32 s{sOFF}, s{sOFF}, s{sTMP}")
    e(f"s_lshr_b32 s{sTMP}, s{sIDX}, 2\ns_lshl_b32 s{sTMP}, s{sTMP}, 8\ns_add_u32 s{sOFF}, s{sOFF}, s{sTMP}\ns_add_u32 s{sOFF}, s{sOFF}, {Q_BASE}")
    e(f"v_lshrrev_b32 v{vA}, 5, v1\nv_mul_u32_u24 v{vA}, 272, v{vA}\nv_bfe_u32 v{vB}, v1, 3, 2\nv_lshl_add_u32 v{vA}, v{vB}, 6, v{vA}")
    e(f"v_lshl_add_u32 v{vA}, v3, 1, v{vA}\ns_mul_i32 s{sTMP}, s{sI}, 544\nv_add_u32 v{vA}, s{sTMP}, v{vA}")
    e(f"s_mov_b32 s{sCNT}, 0x4000")
    e("s_branch L_qpoll")
    e("L_qretry:")
    e(f"s_sub_u32 s{sCNT}, s{sCNT}, 1\ns_cbranch_scc1 L_end\ns_sleep {qsleep}")
    e("L_qpoll:")
    e(f"buffer_load_dwordx4 {q(20)}, v2, s[{SRD_WS}:{SRD_WS+3}], s{sOFF} offen sc1")
    e(f"buffer_load_dwordx4 {q(24)}, v2, s[{SRD_WS}:{SRD_WS+3}], s{sOFF} offen offset:2048 sc1")
    e("s_waitcnt vmcnt(0)")
    tag_check([20, 24], 28, "L_qretry")
    for r in range(4): e(f"v_add_f32 v{20+r}, v{20+r}, v{24+r}")
    e("v_cvt_pk_bf16_f32 v20, v20, v21\nv_cvt_pk_bf16_f32 v22, v22, v23")
    e(f"ds_write_b16 v{vA}, v20 offset:{QLDS}\nds_write_b16_d16_hi v{vA}, v20 offset:{QLDS+16}")
    e(f"ds_write_b16 v{vA}, v22 offset:{QLDS+32}\nds_write_b16_d16_hi v{vA}, v22 offset:{QLDS+48}")
    flag_add(F_Q, vZ, vONE)
    ts(4)
    e(f"s_mov_b32 s{sB}, s{sI}")

    e("L_G:")
    e(f"s_setprio {gprio}")
    e(f"s_lshr_b32 s{sTMP2}, s{sIDX}, 3")
    e(f"v_lshrrev_b32 v2, 5, v1\nv_lshlrev_b32 v2, 8, v2\nv_and_b32 v3, 3, v1\nv_lshl_add_u32 v2, v3, 3, v2")
    e(f"s_lshl_b32 s{sOFF}, s{sGRP}, 11\ns_lshl_b32 s{sTMP}, s{sTMP2}, 9\ns_add_u32 s{sOFF}, s{sOFF}, s{sTMP}")
    e(f"s_lshl_b32 s{sTMP}, s{sB}, 5\ns_add_u32 s{sOFF}, s{sOFF}, s{sTMP}\ns_add_u32 s{sOFF}, s{sOFF}, {S_BASE}")
    e(f"s_mov_b32 s{sCNT}, 0x4000")
    e("s_branch L_spoll")
    e("L_sretry:")
    e(f"s_sub_u32 s{sCNT}, s{sCNT}, 1\ns_cbranch_scc1 L_end\ns_sleep {qsleep}")
    e("L_spoll:")
    e(f"buffer_load_dwordx2 v[4:5], v2, s[{SRD_WS}:{SRD_WS+3}], s{sOFF} offen sc1")
    e("s_waitcnt vmcnt(0)")
    e(f"v_cmp_ne_u32 vcc, s{sT}, v5\ns_cbranch_vccnz L_sretry")
    ts(5)
    dpp = "row_mask:0xf bank_mask:0xf"
    e(f"v_max_f32_dpp v6, v4, v4 quad_perm:[1,0,3,2] {dpp}\ns_nop 1")
    e(f"v_max_f32_dpp v6, v6, v6 quad_perm:[2,3,0,1] {dpp}")
    e("v_sub_f32 v6, v4, v6\nv_exp_f32 v6, v6\ns_nop 1")
    e(f"v_add_f32_dpp v7, v6, v6 quad_perm:[1,0,3,2] {dpp}\ns_nop 1")
    e(f"v_add_f32_dpp v7, v7, v7 quad_perm:[2,3,0,1] {dpp}")
    e("v_rcp_f32 v7, v7\ns_nop 0\nv_mul_f32 v6, v6, v7\ns_nop 1")
    for s in range(4): e(f"v_mov_b32_dpp v{8+s}, v6 quad_perm:[{s},{s},{s},{s}] {dpp}")
    e(f"v_lshlrev_b32 v2, 4, v1\nv_lshlrev_b32 v3, 3, v1\ns_mul_i32 s{sTMP}, s{sB}, 528\nv_add_u32 v3, s{sTMP}, v3")
    e(f"s_lshl_b32 s{sOFF}, s{sGRP}, 2\ns_add_u32 s{sOFF}, s{sOFF}, s{sTMP2}\ns_lshl_b32 s{sOFF}, s{sOFF}, 15")
    e(f"s_lshl_b32 s{sTMP}, s{sB}, 12\ns_add_u32 s{sOFF}, s{sOFF}, s{sTMP}\ns_add_u32 s{sOFF}, s{sOFF}, {O_BASE}")
    e(f"s_mov_b32 s{sCNT}, 0x4000")
    e("s_branch L_opoll")
    e("L_oretry:")
    e(f"s_sub_u32 s{sCNT}, s{sCNT}, 1\ns_cbranch_scc1 L_end")
    if osleep: e(f"s_sleep {osleep}")
    e("L_opoll:")
    for s in range(4): e(f"buffer_load_dwordx4 {q(12+4*s)}, v2, s[{SRD_WS}:{SRD_WS+3}], s{sOFF} offen offset:{1024*s} sc1")
    e("s_waitcnt vmcnt(0)")
    tag_check([12, 16, 20, 24], 28, "L_oretry")
    for r in range(4): e(f"v_mul_f32 v{12+r}, v8, v{12+r}")
    for s in range(1, 4):
        for r in range(4): e(f"v_fmac_f32 v{12+r}, v{8+s}, v{12+4*s+r}")
    e("v_cvt_pk_bf16_f32 v12, v12, v13\nv_cvt_pk_bf16_f32 v13, v14, v15")
    e(f"ds_write_b64 v3, v[12:13] offset:{OLDS}")
    ts(6)
    e("s_waitcnt lgkmcnt(0)\ns_barrier")
    dbg_out(0)
    e("s_endpgm")

    KD, QO, S = 4, 68, 76
    e("L_K:")
    e(f"s_setprio {prio[1]}")
    e("s_barrier")
    e(f"v_bfe_u32 v2, v1, 1, 1\nv_lshlrev_b32 v{vA}, 10, v2\nv_bfe_u32 v2, v1, 2, 2\nv_lshl_add_u32 v{vA}, v2, 8, v{vA}")
    e(f"v_lshrrev_b32 v2, 4, v1\nv_lshl_add_u32 v{vA}, v2, 5, v{vA}\nv_and_b32 v2, 1, v1\nv_lshl_add_u32 v{vA}, v2, 4, v{vA}")
    def kv_base():
        e(f"s_lshr_b32 s{sOFF}, s{sIDX}, 2\ns_lshl_b32 s{sOFF}, s{sOFF}, 22\ns_lshl_b32 s{sTMP}, s{sHKV}, 20\ns_add_u32 s{sOFF}, s{sOFF}, s{sTMP}")
        e(f"s_and_b32 s{sTMP}, s{sIDX}, 3\ns_lshl_b32 s{sTMP}, s{sTMP}, 16\ns_add_u32 s{sOFF}, s{sOFF}, s{sTMP}")
        e(f"s_lshl_b32 s{sTMP}, s{sI}, 14\ns_add_u32 s{sOFF}, s{sOFF}, s{sTMP}\ns_add_u32 s{sOFF}, s{sOFF}, 0xC0000")
    kv_base()
    e("s_waitcnt lgkmcnt(0)")
    srd(SRD_A, sK, 32 << 20)
    for t in range(8):
        for hh in range(2):
            e(f"buffer_load_dwordx4 {q(KD + 8*t + 4*hh)}, v{vA}, s[{SRD_A}:{SRD_A+3}], s{sOFF} offen offset:{(t&1)*2048 + hh*128}{pf}")
        if t & 1 and t < 7: e(f"s_add_u32 s{sOFF}, s{sOFF}, 4096")
    ts(1)
    epoch_load()
    srd(SRD_WS, sWS, WS_BYTES)
    e(f"v_mov_b32 v{vZ}, 0\nv_mov_b32 v{vONE}, 1")
    e(f"v_and_b32 v2, 7, v1\nv_mul_u32_u24 v{vA}, 272, v2\nv_lshrrev_b32 v2, 3, v1\nv_lshl_add_u32 v{vA}, v2, 4, v{vA}")
    e(f"v_lshlrev_b32 v{vB}, 4, v1\ns_lshl_b32 s{sTMP}, s{sI}, 11\nv_add_u32 v{vB}, s{sTMP}, v{vB}")
    e(f"s_mov_b32 s{sSC}, 0x3e0293ee")
    e("s_waitcnt vmcnt(0) lgkmcnt(0)")
    ts(2)
    tag_setup()
    spin(F_Q, 4, vZ, 2, sleep=1)
    ts(3)
    e(f"ds_read_b128 {q(QO)}, v{vA} offset:{QLDS}\nds_read_b128 {q(QO+4)}, v{vA} offset:{QLDS+128}")
    e("s_waitcnt lgkmcnt(0)")
    for t in range(8): mfma(S + 4*t, KD + 8*t, QO, None)
    for t in range(8): mfma(S + 4*t, KD + 8*t + 4, QO + 4, S + 4*t)
    e("s_nop 1")
    for t in range(8):
        for u in range(2):
            e(f"v_add_f32_dpp v{KD + 2*t + u}, v{S + 4*t + 2*u + 1}, v{S + 4*t + 2*u} row_ror:8 {dpp}")
    e(f"v_max3_f32 v20, v{KD}, v{KD+1}, v{KD+2}")
    for k in range(3, 15, 2): e(f"v_max3_f32 v20, v20, v{KD+k}, v{KD+k+1}")
    e(f"v_max_f32 v20, v20, v{KD+15}")
    def allred(v, t, op):
        e(f"v_mov_b32 v{t}, v{v}\ns_nop 1\nv_permlane32_swap_b32 v{v}, v{t}\nv_{op}_f32 v{v}, v{v}, v{t}")
        e(f"v_mov_b32 v{t}, v{v}\ns_nop 1\nv_permlane16_swap_b32 v{v}, v{t}\nv_{op}_f32 v{v}, v{v}, v{t}")
    allred(20, 21, "max")
    e(f"v_mul_f32 v20, s{sSC}, v20")
    for k in range(16): e(f"v_fma_f32 v{KD+k}, v{KD+k}, s{sSC}, -v20")
    for k in range(16): e(f"v_exp_f32 v{KD+k}, v{KD+k}")
    e("s_nop 0")
    for k in range(8): e(f"v_cvt_pk_bf16_f32 v{24+k}, v{KD+2*k}, v{KD+2*k+1}")
    e(f"ds_write_b128 v{vB}, {q(24)} offset:{PLDS}\nds_write_b128 v{vB}, {q(28)} offset:{PLDS+1024}")
    for st in (8, 4, 2, 1):
        for k in range(st): e(f"v_add_f32 v{KD+k}, v{KD+k}, v{KD+st+k}")
    e(f"v_mov_b32 v21, v{KD}")
    allred(21, 22, "add")
    e(f"v_lshlrev_b32 v2, 3, v1\ns_lshl_b32 s{sTMP}, s{sI}, 6\nv_add_u32 v2, s{sTMP}, v2")
    e("s_mov_b64 exec, 0xff")
    e(f"ds_write_b64 v2, v[20:21] offset:{STLDS}")
    flag_add(F_P, vZ, vONE)
    ts(4)
    e(f"s_add_u32 s{sB}, s{sI}, 4")
    e("s_branch L_G")

    VD, ACC, TV, PO, G = 4, 68, 100, 108, 122
    e("L_V:")
    e(f"s_setprio {prio[2]}")
    e("s_barrier")
    e(f"v_lshlrev_b32 v{vA}, 4, v1")
    kv_base()
    e("s_waitcnt lgkmcnt(0)")
    srd(SRD_A, sV, 32 << 20)
    for k in range(16):
        e(f"buffer_load_dwordx4 {q(VD + 4*k)}, v{vA}, s[{SRD_A}:{SRD_A+3}], s{sOFF} offen offset:{(k&3)*1024}{pf}")
        if k & 3 == 3 and k < 15: e(f"s_add_u32 s{sOFF}, s{sOFF}, 4096")
    ts(1)
    epoch_load()
    srd(SRD_WS, sWS, WS_BYTES)
    e(f"v_mov_b32 v{vZ}, 0\nv_mov_b32 v{vONE}, 1\nv_mov_b32 v{vM}, 0xff")
    e(f"s_lshl_b32 s{sTMP}, s{sI}, 11\nv_add_u32 v{vB}, s{sTMP}, v{vA}")
    e(f"v_lshrrev_b32 v2, 5, v1\nv_lshlrev_b32 v3, 3, v2\ns_lshl_b32 s{sTMP}, s{sI}, 4\nv_add_u32 v3, s{sTMP}, v3")
    e("s_waitcnt lgkmcnt(0)")
    tag_setup()
    spin(F_P, 4, vZ, 121, sleep=1)
    ts(2)
    e(f"ds_read_b128 {q(PO)}, v{vB} offset:{PLDS}\nds_read_b128 {q(PO+4)}, v{vB} offset:{PLDS+1024}")
    for w in range(4): e(f"ds_read_b64 v[{TV+2*w}:{TV+2*w+1}], v3 offset:{STLDS + 64*w}")
    e(f"v_lshlrev_b32 v2, 8, v2")
    e(f"s_lshl_b32 s{sOFF}, s{sGRP}, 11\ns_lshl_b32 s{sTMP}, s{sI}, 9\ns_add_u32 s{sOFF}, s{sOFF}, s{sTMP}")
    e(f"s_lshl_b32 s{sTMP}, s{sIDX}, 3\ns_add_u32 s{sOFF}, s{sOFF}, s{sTMP}\ns_add_u32 s{sOFF}, s{sOFF}, {S_BASE}")
    e("s_waitcnt lgkmcnt(0)")
    e(f"v_max3_f32 v126, v{TV}, v{TV+2}, v{TV+4}\nv_max_f32 v126, v126, v{TV+6}")
    for w in range(4): e(f"v_sub_f32 v{G+w}, v{TV+2*w}, v126")
    for w in range(4): e(f"v_exp_f32 v{G+w}, v{G+w}")
    e(f"s_nop 0\nv_mul_f32 v127, v{G}, v{TV+1}")
    for w in range(1, 4): e(f"v_fmac_f32 v127, v{G+w}, v{TV+2*w+1}")
    e(f"v_log_f32 v{TV}, v127\nv_rcp_f32 v127, v127\nv_mov_b32 v{TV+1}, s{sT}\nv_add_f32 v{TV}, v{TV}, v126")
    for w in range(4): e(f"v_mul_f32 v{G+w}, v{G+w}, v127")
    e("s_mov_b32 exec_lo, 1\ns_mov_b32 exec_hi, 1")
    e(f"buffer_store_dwordx2 v[{TV}:{TV+1}], v2, s[{SRD_WS}:{SRD_WS+3}], s{sOFF} offen sc1")
    e("s_mov_b64 exec, -1")
    def tail_addrs():
        e(f"v_lshrrev_b32 v2, 4, v1\nv_lshlrev_b32 v2, 3, v2\nv_and_b32 v3, 7, v1\nv_add_u32 v2, v2, v3\nv_lshlrev_b32 v2, 4, v2")
        e(f"s_mul_i32 s{sTMP}, s{sI}, 4224\nv_add_u32 v{vB}, s{sTMP}, v2")
        e(f"v_mul_u32_u24 v3, 528, v3\nv_bfe_u32 v2, v1, 3, 2\nv_lshl_add_u32 v3, v2, 7, v3\nv_lshrrev_b32 v2, 5, v1\nv_lshl_add_u32 v3, v2, 4, v3")
        e(f"s_lshl_b32 s{sTMP}, s{sI}, 5\nv_add_u32 v3, s{sTMP}, v3")
    tail_addrs()
    e(f"s_lshl_b32 s{sOFF}, s{sGRP}, 2\ns_add_u32 s{sOFF}, s{sOFF}, s{sI}\ns_lshl_b32 s{sOFF}, s{sOFF}, 5\ns_add_u32 s{sOFF}, s{sOFF}, s{sIDX}")
    e(f"s_lshl_b32 s{sOFF}, s{sOFF}, 10\ns_add_u32 s{sOFF}, s{sOFF}, {O_BASE}")
    e("s_waitcnt vmcnt(9)")
    pingpong(VD, PO, ACC, TV, True)
    for ip in range(4):
        e(f"s_waitcnt vmcnt({7 - 2*ip})")
        if ip < 3:
            for j in range(8): perm(VD + 4*j + ip, VD + 32, j, ip)
    ts(3)
    perm(VD + 3, VD + 32, 0, 3); perm(VD + 7, VD + 32, 1, 3)
    for j in range(8):
        if j < 6: perm(VD + 4*(j+2) + 3, VD + 32, j + 2, 3)
        elif j == 6: e("s_nop 0")
        mfma(ACC + 4*j, VD + 4*j, PO + 4, ACC + 4*j)
    part_write(ACC, vB, "0x00ff00ff", "0x00ff00ff")
    flag_add(F_O1, vZ, vONE)
    spin(F_O1, 4, vZ, 121)
    for w in range(4): e(f"ds_read_b128 {q(VD + 4*w)}, v3 offset:{PART + w*4224}")
    e("s_waitcnt lgkmcnt(0)")
    for r in range(4): e(f"v_mul_f32 v{VD+r}, v{G}, v{VD+r}")
    for w in range(1, 4):
        for r in range(4): e(f"v_fmac_f32 v{VD+r}, v{G+w}, v{VD+4*w+r}")
    tag_insert(VD, vM)
    e(f"buffer_store_dwordx4 {q(VD)}, v{vA}, s[{SRD_WS}:{SRD_WS+3}], s{sOFF} offen sc1")
    ts(4)
    if dbg: e("s_nop 1")
    dbg_out(0)
    e("s_endpgm")

    WD, T0, OO = 4, 68, 100
    e("L_WO:")
    e(f"s_setprio {prio[3]}")
    e(f"v_mov_b32 v{vZ}, 0\nv_lshlrev_b32 v2, 2, v1")
    e("s_mov_b64 exec, 0xff")
    e(f"ds_write_b32 v2, v{vZ}")
    e("s_mov_b64 exec, -1")
    e("s_waitcnt lgkmcnt(0)\ns_barrier")
    e(f"v_lshrrev_b32 v2, 4, v1\nv_lshlrev_b32 v{vA}, 12, v2\nv_and_b32 v3, 15, v1\nv_lshl_add_u32 v{vA}, v3, 4, v{vA}")
    e(f"s_lshr_b32 s{sTMP2}, s{sIDX}, 3\ns_lshl_b32 s{sB}, s{sHKV}, 2\ns_add_u32 s{sB}, s{sB}, s{sTMP2}")
    e(f"s_lshl_b32 s{sOFF}, s{sB}, 2\ns_add_u32 s{sOFF}, s{sOFF}, s{sI}\ns_lshl_b32 s{sOFF}, s{sOFF}, 17")
    e(f"s_and_b32 s{sSC}, s{sIDX}, 7\ns_lshl_b32 s{sTMP}, s{sSC}, 8\ns_add_u32 s{sOFF}, s{sOFF}, s{sTMP}")
    srd(SRD_A, sWO, 8 << 20)
    cur = 0
    for blk in range(2):
        for jj in range(8):
            row = 32*blk + 8*(jj & 3) + (jj >> 2)
            if row != cur:
                d = (row - cur) * 2048
                e(f"s_add_u32 s{sOFF}, s{sOFF}, {d}" if d > 0 else f"s_sub_u32 s{sOFF}, s{sOFF}, {-d}")
                cur = row
            e(f"buffer_load_dwordx4 {q(WD + 32*blk + 4*jj)}, v{vA}, s[{SRD_A}:{SRD_A+3}], s{sOFF} offen{pf}")
    ts(1)
    epoch_load()
    srd(SRD_WS, sWS, WS_BYTES)
    e(f"v_mov_b32 v{vM}, 0xff")
    e(f"v_and_b32 v3, 7, v1\nv_mul_u32_u24 v{vONE}, 528, v3\nv_lshl_add_u32 v{vONE}, v2, 4, v{vONE}\ns_lshl_b32 s{sTMP}, s{sI}, 7\nv_add_u32 v{vONE}, s{sTMP}, v{vONE}")
    tail_addrs()
    e(f"s_lshl_b32 s{sOFF}, s{sBR}, 3\ns_add_u32 s{sOFF}, s{sOFF}, s{sSC}\ns_lshl_b32 s{sOFF}, s{sOFF}, 16\ns_add_u32 s{sOFF}, s{sOFF}, {R_BASE}")
    e(f"s_lshl_b32 s{sTMP}, s{sB}, 12\ns_add_u32 s{sTMP2}, s{sOFF}, s{sTMP}")
    e(f"s_lshl_b32 s{sTMP}, s{sI}, 14\ns_add_u32 s{sOFF}, s{sOFF}, s{sTMP}\ns_lshl_b32 s{sTMP}, s{sB}, 8\ns_add_u32 s{sOFF}, s{sOFF}, s{sTMP}")
    e("s_waitcnt lgkmcnt(0)")
    tag_setup()
    for blk in range(2):
        for ip in range(4):
            e(f"s_waitcnt vmcnt({14 - 8*blk - 2*ip})")
            for j in range(8): perm((T0 if blk == 0 else WD) + 4*j + ip, WD + 32*blk, j, ip)
    ts(2)
    e("s_barrier")
    ts(3)
    e(f"ds_read_b128 {q(OO)}, v{vONE} offset:{OLDS}\nds_read_b128 {q(OO+4)}, v{vONE} offset:{OLDS+64}")
    e("s_waitcnt lgkmcnt(0)")
    AC = WD + 32
    for j in range(8): mfma(AC + 4*j, T0 + 4*j, OO, None)
    for j in range(8): mfma(AC + 4*j, WD + 4*j, OO + 4, AC + 4*j)
    part_write(AC, vB, "0x00ff00ff", "0x00ff00ff")
    e("s_waitcnt lgkmcnt(0)\ns_barrier")
    for w in range(4): e(f"ds_read_b128 {q(T0 + 4*w)}, v3 offset:{PART + w*4224}")
    e("s_waitcnt lgkmcnt(0)")
    for st in (8, 4):
        for k in range(st): e(f"v_add_f32 v{T0+k}, v{T0+k}, v{T0+st+k}")
    tag_insert(T0, vM)
    e(f"buffer_store_dwordx4 {q(T0)}, v{vA}, s[{SRD_WS}:{SRD_WS+3}], s{sOFF} offen sc1")
    ts(4)
    e(f"s_cmp_lg_u32 s{sI}, 0\ns_cbranch_scc1 L_fin")
    e(f"v_lshlrev_b32 v2, 4, v1")
    srd(SRD_B, sOUT, 32768)
    e(f"v_bfe_u32 v3, v1, 3, 1\nv_lshlrev_b32 v3, 6, v3\nv_lshrrev_b32 v4, 4, v1\nv_lshl_add_u32 v3, v4, 4, v3\nv_and_b32 v4, 7, v1\nv_lshl_add_u32 v3, v4, 1, v3")
    e(f"s_lshr_b32 s{sOFF}, s{sB}, 1\ns_lshl_b32 s{sOFF}, s{sOFF}, 12\ns_lshl_b32 s{sTMP}, s{sBR}, 11\ns_add_u32 s{sOFF}, s{sOFF}, s{sTMP}")
    e(f"s_lshl_b32 s{sTMP}, s{sSC}, 8\ns_add_u32 s{sOFF}, s{sOFF}, s{sTMP}\ns_and_b32 s{sTMP}, s{sB}, 1\ns_lshl_b32 s{sTMP}, s{sTMP}, 7\ns_add_u32 s{sOFF}, s{sOFF}, s{sTMP}")
    e(f"s_mov_b32 s{sCNT}, 0x4000")
    e("s_branch L_rpoll")
    e("L_rretry:")
    e(f"s_sub_u32 s{sCNT}, s{sCNT}, 1\ns_cbranch_scc1 L_end")
    e("L_rpoll:")
    for k in range(4): e(f"buffer_load_dwordx4 {q(12+4*k)}, v2, s[{SRD_WS}:{SRD_WS+3}], s{sTMP2} offen offset:{1024*k} sc1")
    e("s_waitcnt vmcnt(0)")
    tag_check([12, 16, 20, 24], 28, "L_rretry")
    for st in (8, 4):
        for k in range(st): e(f"v_add_f32 v{12+k}, v{12+k}, v{12+st+k}")
    e("s_nop 1\nv_permlane32_swap_b32 v12, v14\nv_permlane32_swap_b32 v13, v15")
    e("v_add_f32 v12, v12, v14\nv_add_f32 v13, v13, v15\ns_nop 1\nv_permlane16_swap_b32 v12, v13\nv_add_f32 v12, v12, v13")
    e("v_cvt_pk_bf16_f32 v12, v12, v12")
    e(f"buffer_store_short v12, v3, s[{SRD_B}:{SRD_B+3}], s{sOFF} offen")
    ts(5)
    e(f"s_or_b32 s{sTMP}, s{sB}, s{sSC}\ns_cmp_lg_u32 s{sTMP}, 0\ns_cbranch_scc1 L_fin")
    e(f"s_lshl_b32 s{sTMP}, s{sBR}, 8\nv_mov_b32 v4, s{sT}\nv_mov_b32 v5, 0\ns_mov_b64 exec, 1")
    e(f"buffer_store_dword v4, v5, s[{SRD_WS}:{SRD_WS+3}], s{sTMP} offen sc1")
    e("L_fin:")
    if dbg: e("s_nop 1")
    dbg_out(0)
    e("L_end:\ns_endpgm")
    e(f""".section .rodata,"a"
.p2align 6
.amdhsa_kernel {KN}
  .amdhsa_next_free_vgpr 128
  .amdhsa_next_free_sgpr 96
  .amdhsa_accum_offset 128
  .amdhsa_group_segment_fixed_size 0
  .amdhsa_kernarg_size 104
  .amdhsa_user_sgpr_count 2
  .amdhsa_user_sgpr_kernarg_segment_ptr 1
  .amdhsa_system_sgpr_workgroup_id_x 1
.end_amdhsa_kernel""")
    return "\n".join(o) + "\n"

if __name__ == "__main__":
    kw = eval("dict(" + (sys.argv[2] if len(sys.argv) > 2 else "") + ")")
    open(sys.argv[1], "w").write(gen(**kw))
```

```python
import sys, re
sys.path.insert(0, "gen")
import gen1
KN = gen1.KN
def mk(path, order, base):
    lines = base.split("\n")
    li = [i for i, l in enumerate(lines) if "@launch" in l][0]
    m = re.search(r"grid=\S+ block=\S+ lds=\d+", lines[li]).group(0)
    new = []
    for k in order:
        if k == "R": new.append(f"; @launch kernel={KN} {m}")
        elif k == "E": new.append("; @launch kernel=empty_kernel grid=(256,1,1) block=(64,1,1) lds=0")
        elif k == "e": new.append("; @launch kernel=empty_kernel grid=(1,1,1) block=(64,1,1) lds=0")
    lines[li:li+1] = new
    s = "\n".join(lines)
    if "E" in order or "e" in order:
        s = s.replace('.section .rodata,"a"', '.globl empty_kernel\n.p2align 8\n.type empty_kernel,@function\nempty_kernel:\ns_endpgm\n.section .rodata,"a"')
        s += """.p2align 6
.amdhsa_kernel empty_kernel
  .amdhsa_next_free_vgpr 8
  .amdhsa_next_free_sgpr 16
  .amdhsa_accum_offset 8
  .amdhsa_group_segment_fixed_size 0
  .amdhsa_kernarg_size 104
  .amdhsa_user_sgpr_count 2
  .amdhsa_user_sgpr_kernarg_segment_ptr 1
  .amdhsa_system_sgpr_workgroup_id_x 1
.end_amdhsa_kernel
"""
    open(path, "w").write(s)
if __name__ == "__main__":
    base = gen1.gen()
    for o in ("R", "RE", "ER", "RR", "EEEER"):
        mk(f"v_list_{o}.s", o, base)
```

```python
import sys
KN = "concat_heads__sliding_block_cached__sliding_block_cached__decode_kernel"
REF = "concat_heads__sliding_block_cached__sliding_block_cached__decode.s.ref"

Q_BASE = 0x10000
S_BASE = 0xA0000
O_BASE = 0x100000
R_BASE = 0x200000
ALT = 0x400000
DBG_BASE = 0x800000
WS_BYTES = 0x1000000
F_Q1, F_Q, F_P, F_O1, F_O2 = 0, 4, 8, 12, 16
GO_V, GO_WO = 32, 48
QLDS = 64
PLDS = 2304
STLDS = 10496
OLDS = 10752
PART = 15360
LDS_BYTES = PART + 4 * 4224
sGRP, sIDX, sBR, sHKV, sI, sROLE = 3, 4, 5, 6, 7, 8
sX, sK, sV, sWQ, sWO, sOUT, sWS = 12, 14, 16, 18, 20, 22, 24
SRD_A, SRD_WS, SRD_B = 28, 32, 36
sT = 40
sSELLO, sSELHI = 44, 45
sOFF, sTMP, sTMP2, sCNT, sB, sSC, sOFF2, sH = 46, 47, 48, 49, 50, 51, 52, 53
TS0 = 60

def gen(pol="nt", dbg=False, prio=(2, 2, 3, 1), gprio=0, qsleep=2, osleep=0, win=(7, 7, 7, 7), slow=(16, 16), ho=4, cut=0, dual=True, na=8, warm=True, rdelay=0, xperm=False, chain=False):
    o = []
    def e(s): o.append(s)
    pf = (" " + pol) if pol else ""
    dpp = "row_mask:0xf bank_mask:0xf"
    def ts(k):
        if dbg: e(f"s_memrealtime s[{TS0+2*k}:{TS0+2*k+1}]")
    def cnt(k):
        if dbg: e(f"s_sub_u32 s{TS0+2*k}, 0x4000, s{sCNT}")
    def srd(d, base, nbytes):
        e(f"s_mov_b32 s{d}, s{base}\ns_mov_b32 s{d+1}, s{base+1}\ns_mov_b32 s{d+2}, {nbytes}\ns_mov_b32 s{d+3}, 0x20000")
    def q(a): return f"v[{a}:{a+3}]"
    uid = [0]
    def lab(n):
        uid[0] += 1; return f"L_{n}_{uid[0]}"
    def flag_add(off, va, vone, wait=True):
        if wait: e("s_waitcnt lgkmcnt(0)")
        e("s_mov_b64 exec, 1")
        e(f"ds_add_u32 v{va}, v{vone} offset:{off}")
        e("s_mov_b64 exec, -1")
    def spin(off, n, va, vt, sleep=0):
        l = lab("spin"); d = lab("spun")
        e(f"s_mov_b32 s{sCNT}, 0x80000")
        e(f"{l}:")
        e(f"ds_read_b32 v{vt}, v{va} offset:{off}")
        e("s_waitcnt lgkmcnt(0)")
        e(f"v_readfirstlane_b32 s{sTMP}, v{vt}")
        e(f"s_cmp_ge_u32 s{sTMP}, {n}")
        e(f"s_cbranch_scc1 {d}")
        if sleep: e(f"s_sleep {sleep}")
        e(f"s_sub_u32 s{sCNT}, s{sCNT}, 1")
        e(f"s_cbranch_scc0 {l}")
        e("s_endpgm")
        e(f"{d}:")
    def tag_setup():
        e(f"s_add_u32 s{sT}, s{sT}, 0x9E3779B1")
        e(f"s_lshr_b32 s{sT+1}, s{sT}, 8\ns_lshr_b32 s{sT+2}, s{sT}, 16\ns_lshr_b32 s{sT+3}, s{sT}, 24")
    def epoch_load():
        e(f"s_lshl_b32 s9, s{sBR}, 8")
        e(f"s_load_dword s{sT}, s[{sWS}:{sWS+1}], s9")
    def tag_insert(v, vmask):
        for r in range(4): e(f"v_bfi_b32 v{v+r}, v{vmask}, s{sT+r}, v{v+r}")
    def tag_check(regs, vacc, retry, first=True):
        for v in regs:
            for r in range(4):
                if first: e(f"v_xor_b32 v{vacc}, s{sT+r}, v{v+r}"); first = False
                else: e(f"v_bitop3_b32 v{vacc}, v{vacc}, v{v+r}, s{sT+r} bitop3:0xf6")
        e(f"v_and_b32 v{vacc}, 0xff, v{vacc}")
        e(f"v_cmp_ne_u32 vcc, 0, v{vacc}")
        e(f"s_cbranch_vccnz {retry}")
    def perm(dst, src, j, ip):
        u, p = j >> 1, j & 1
        e(f"v_perm_b32 v{dst}, v{src + (2*ip+1)*4 + u}, v{src + (2*ip)*4 + u}, s{sSELHI if p else sSELLO}")
    def mfma(d, a, b, c):
        e(f"v_mfma_f32_16x16x32_bf16 {q(d)}, {q(a)}, {q(b)}, {q(c) if c is not None else 0}")
    def pingpong(src, bop, acc, T, first):
        for ip in range(4): perm(T + ip, src, 0, ip)
        for j in range(8):
            if j < 7:
                for ip in range(4): perm(T + 4*((j+1) & 1) + ip, src, j + 1, ip)
            else:
                e("s_nop 0")
            mfma(acc + 4*j, T + 4*(j & 1), bop, None if first else acc + 4*j)
    def part_write(acc, va, lo, hi):
        e(f"s_mov_b32 exec_lo, {lo}\ns_mov_b32 exec_hi, {hi}\ns_nop 0")
        for j in range(8): e(f"ds_write_b128 v{va}, {q(acc+4*j)} offset:{PART + j*528}")
        e("s_mov_b64 exec, -1")
    def stream(loads, w):
        for n, (pre, ld) in enumerate(loads):
            if pre: e(pre)
            if n >= w: e(f"s_waitcnt vmcnt({w-1})")
            e(ld)
    def stream2(loads, w, wslow):
        if w == wslow: return stream(loads, w)
        a, b = lab("wide"), lab("join")
        e(f"s_cbranch_scc1 {a}"); stream(loads, w); e(f"s_branch {b}\n{a}:"); stream(loads, wslow); e(f"{b}:")
    def dbg_out():
        if not dbg: return
        e("s_waitcnt lgkmcnt(0)\ns_mov_b64 exec, 1")
        e(f"s_lshl_b32 s{sTMP}, s{sROLE}, 2\ns_add_u32 s{sTMP}, s{sTMP}, s{sI}\ns_lshl_b32 s{sTMP2}, s2, 4\ns_add_u32 s{sTMP}, s{sTMP}, s{sTMP2}")
        e(f"s_lshl_b32 s{sTMP}, s{sTMP}, 6\ns_add_u32 s{sTMP}, s{sTMP}, {DBG_BASE}")
        for k in range(12): e(f"v_mov_b32 v{4+k}, s{TS0+2*k}")
        e(f"s_getreg_b32 s{sTMP2}, hwreg(HW_REG_XCC_ID)\nv_mov_b32 v16, s{sTMP2}\nv_mov_b32 v17, s{sCNT}\nv_mov_b32 v18, 0\nv_mov_b32 v19, 0\nv_mov_b32 v2, 0")
        for k in range(4): e(f"buffer_store_dwordx4 {q(4+4*k)}, v2, s[{SRD_WS}:{SRD_WS+3}], s{sTMP} offen offset:{16*k}")
        e("s_mov_b64 exec, -1")
    def publish(v, va):
        WS = f"s[{SRD_WS}:{SRD_WS+3}]"
        if dual:
            e(f"buffer_store_dwordx4 {q(v)}, v{va}, {WS}, s{sOFF} offen")
            e(f"s_add_u32 s{sOFF}, s{sOFF}, {ALT}")
        e(f"buffer_store_dwordx4 {q(v)}, v{va}, {WS}, s{sOFF} offen sc1")
    def retry(offs, sleep):
        e(f"s_sub_u32 s{sCNT}, s{sCNT}, 1\ns_cbranch_scc1 L_end")
        if dual:
            e(f"s_cmp_lt_u32 s{sCNT}, {0x4000 - na}\ns_cselect_b32 s{sTMP}, {ALT}, 0")
            for r in offs: e(f"s_xor_b32 s{r}, s{r}, s{sTMP}")
        if sleep: e(f"s_sleep {sleep}")
    A = f"s[{SRD_A}:{SRD_A+3}]"; WS = f"s[{SRD_WS}:{SRD_WS+3}]"; B = f"s[{SRD_B}:{SRD_B+3}]"

    hdr = [l for l in open(REF).read().split("\n") if l.startswith(";") and "@launch" not in l]
    o += hdr
    e(f"; @launch grid=(256,1,1) block=(1024,1,1) lds={LDS_BYTES}")
    e('.amdgcn_target "amdgcn-amd-amdhsa--gfx950"\n.text')
    e(f".globl {KN}\n.p2align 8\n.type {KN},@function\n{KN}:")
    if dbg:
        for k in range(1, 12): e(f"s_mov_b32 s{TS0+2*k}, 0")
    ts(0)
    e("s_cmp_ge_u32 s2, 256\ns_cbranch_scc1 L_end")
    if xperm: e("s_and_b32 s3, s2, 7\ns_bfe_u32 s4, s2, 0x30003\ns_andn2_b32 s2, s2, 63\ns_lshl_b32 s3, s3, 3\ns_or_b32 s2, s2, s3\ns_or_b32 s2, s2, s4")
    e(f"s_and_b32 s{sBR}, s2, 1\ns_mul_i32 s9, s{sBR}, 40\ns_add_u32 s10, s0, s9\ns_addc_u32 s11, s1, 0")
    e(f"s_load_dwordx8 s[12:19], s[10:11], 0\ns_load_dwordx2 s[20:21], s[10:11], 32")
    e(f"s_load_dwordx2 s[22:23], s[0:1], 80\ns_load_dwordx2 s[24:25], s[0:1], 96")
    e("v_lshrrev_b32 v2, 6, v0\nv_and_b32 v1, 63, v0")
    e(f"v_readfirstlane_b32 s{sROLE}, v2")
    e(f"s_and_b32 s{sGRP}, s2, 7\ns_lshr_b32 s{sIDX}, s2, 3\ns_lshr_b32 s{sHKV}, s{sGRP}, 1")
    e(f"s_mov_b32 s{sSELLO}, 0x05040100\ns_mov_b32 s{sSELHI}, 0x07060302")
    e(f"s_and_b32 s{sI}, s{sROLE}, 3\ns_lshr_b32 s{sROLE}, s{sROLE}, 2")
    e(f"s_cmp_eq_u32 s{sROLE}, 1\ns_cbranch_scc1 L_K\ns_cmp_eq_u32 s{sROLE}, 2\ns_cbranch_scc1 L_V\ns_cmp_eq_u32 s{sROLE}, 3\ns_cbranch_scc1 L_WO")

    XO, W, D, T = 4, 12, 76, 108
    vZ, vONE, vA, vM, vB = 116, 117, 118, 119, 120
    e(f"s_setprio {prio[0]}")
    e("v_lshrrev_b32 v2, 3, v1\nv_and_b32 v3, 7, v1")
    e(f"v_lshlrev_b32 v{vA}, 16, v2\nv_lshl_add_u32 v{vA}, v3, 4, v{vA}")
    e(f"v_lshlrev_b32 v{vB}, 11, v3\nv_lshl_add_u32 v{vB}, v2, 4, v{vB}")
    e(f"s_and_b32 s{sTMP}, s{sIDX}, 1\ns_lshl_b32 s{sTMP}, s{sTMP}, 2\ns_add_u32 s{sTMP}, s{sTMP}, s{sI}")
    e(f"s_lshl_b32 s{sTMP2}, s{sTMP}, 8")
    e(f"s_lshl_b32 s{sOFF}, s{sTMP}, 20\ns_lshl_b32 s{sTMP}, s{sHKV}, 11\ns_add_u32 s{sOFF}, s{sOFF}, s{sTMP}")
    e(f"s_lshr_b32 s{sTMP}, s{sIDX}, 1\ns_lshl_b32 s{sTMP}, s{sTMP}, 7\ns_add_u32 s{sOFF}, s{sOFF}, s{sTMP}")
    e("s_waitcnt lgkmcnt(0)")
    srd(SRD_B, sX, 16384); srd(SRD_A, sWQ, 8 << 20)
    e(f"buffer_load_dwordx4 {q(XO)}, v{vB}, {B}, s{sTMP2} offen")
    e(f"buffer_load_dwordx4 {q(XO+4)}, v{vB}, {B}, s{sTMP2} offen offset:128")
    e(f"s_add_u32 s{sTMP}, s{sOFF}, s{sWQ}\ns_bfe_u32 s{sTMP}, s{sTMP}, 0x30007\ns_cmp_eq_u32 s{sTMP}, 3")
    loads = []
    for blk in range(2):
        for jj in range(8):
            n = 8*blk + jj
            pre = "" if n == 0 else f"s_add_u32 s{sOFF}, s{sOFF}, {8192 if jj else 57*8192}"
            loads.append((pre, f"buffer_load_dwordx4 {q(W + 4*n)}, v{vA}, {A}, s{sOFF} offen{pf}"))
    stream2(loads, win[0], slow[0])
    epoch_load()
    e(f"s_waitcnt vmcnt({ho})")
    e("s_barrier")
    ts(1)
    srd(SRD_WS, sWS, WS_BYTES)
    e(f"v_mov_b32 v{vZ}, 0\nv_mov_b32 v{vONE}, 1\nv_mov_b32 v{vM}, 0xff")
    e(f"v_lshrrev_b32 v2, 4, v1\nv_lshlrev_b32 v2, 3, v2\nv_add_u32 v2, v2, v3\nv_lshlrev_b32 v2, 4, v2")
    e(f"s_mul_i32 s{sTMP}, s{sI}, 4224\nv_add_u32 v{vA}, s{sTMP}, v2")
    if cut == 1:
        e("s_waitcnt vmcnt(0)"); ts(2); dbg_out(); e("s_endpgm")
    if ho > 8: e("s_waitcnt vmcnt(8)")
    pingpong(W, XO, D, T, True)
    e("s_waitcnt vmcnt(0)")
    ts(2)
    pingpong(W + 32, XO + 4, D, T, False)
    part_write(D, vA, "0x00ff00ff", "0xff00ff00")
    e(f"v_mul_u32_u24 v{vA}, 528, v3\nv_bfe_u32 v2, v1, 3, 1\nv_lshl_add_u32 v{vA}, v2, 7, v{vA}")
    e(f"v_bfe_u32 v2, v1, 4, 1\nv_lshl_add_u32 v{vA}, v2, 4, v{vA}\ns_lshl_b32 s{sTMP}, s{sI}, 5\nv_add_u32 v{vA}, s{sTMP}, v{vA}")
    flag_add(F_Q1, vZ, vONE)
    tag_setup()
    spin(F_Q1, 4, vZ, 2)
    e("s_mov_b32 exec_hi, 0")
    for w in range(4):
        for sub in range(2):
            e(f"ds_read_b128 {q(W + 8*w + 4*sub)}, v{vA} offset:{PART + w*4224 + sub*256}")
    e(f"v_lshlrev_b32 v2, 4, v1")
    e(f"s_lshl_b32 s{sOFF}, s{sGRP}, 5\ns_add_u32 s{sOFF}, s{sOFF}, s{sIDX}\ns_lshl_b32 s{sOFF}, s{sOFF}, 11\ns_lshl_b32 s{sTMP}, s{sI}, 9\ns_add_u32 s{sOFF}, s{sOFF}, s{sTMP}\ns_add_u32 s{sOFF}, s{sOFF}, {Q_BASE}")
    e("s_waitcnt lgkmcnt(0)")
    for st in (16, 8, 4):
        for k in range(st): e(f"v_add_f32 v{W+k}, v{W+k}, v{W+st+k}")
    tag_insert(W, vM)
    publish(W, 2)
    e("s_mov_b64 exec, -1")
    ts(3)
    e(f"v_lshrrev_b32 v2, 4, v1\nv_lshlrev_b32 v2, 12, v2\nv_and_b32 v{vB}, 15, v1\nv_lshl_add_u32 v2, v{vB}, 4, v2")
    e(f"s_lshl_b32 s{sOFF}, s{sGRP}, 16\ns_lshl_b32 s{sTMP}, s{sI}, 14\ns_add_u32 s{sOFF}, s{sOFF}, s{sTMP}")
    e(f"s_lshr_b32 s{sTMP}, s{sIDX}, 2\ns_lshl_b32 s{sTMP}, s{sTMP}, 8\ns_add_u32 s{sOFF}, s{sOFF}, s{sTMP}\ns_add_u32 s{sOFF}, s{sOFF}, {Q_BASE}")
    e(f"v_lshrrev_b32 v{vA}, 5, v1\nv_mul_u32_u24 v{vA}, 272, v{vA}\nv_bfe_u32 v{vB}, v1, 3, 2\nv_lshl_add_u32 v{vA}, v{vB}, 6, v{vA}")
    e(f"v_lshl_add_u32 v{vA}, v3, 1, v{vA}\ns_mul_i32 s{sTMP}, s{sI}, 544\nv_add_u32 v{vA}, s{sTMP}, v{vA}")
    e(f"s_mov_b32 s{sCNT}, 0x4000")
    e("s_branch L_qpoll")
    e("L_qretry:")
    retry([sOFF], qsleep)
    e("L_qpoll:")
    e(f"buffer_load_dwordx4 {q(20)}, v2, {WS}, s{sOFF} offen sc1")
    e(f"buffer_load_dwordx4 {q(24)}, v2, {WS}, s{sOFF} offen offset:2048 sc1")
    e("s_waitcnt vmcnt(0)")
    tag_check([20, 24], 28, "L_qretry")
    for r in range(4): e(f"v_add_f32 v{20+r}, v{20+r}, v{24+r}")
    e("v_cvt_pk_bf16_f32 v20, v20, v21\nv_cvt_pk_bf16_f32 v22, v22, v23")
    e(f"ds_write_b16 v{vA}, v20 offset:{QLDS}\nds_write_b16_d16_hi v{vA}, v20 offset:{QLDS+16}")
    e(f"ds_write_b16 v{vA}, v22 offset:{QLDS+32}\nds_write_b16_d16_hi v{vA}, v22 offset:{QLDS+48}")
    flag_add(F_Q, vZ, vONE)
    ts(4); cnt(8)
    e(f"s_mov_b32 s{sB}, s{sI}")

    e("L_G:")
    e(f"s_setprio {gprio}")
    e(f"s_lshr_b32 s{sH}, s{sIDX}, 3")
    e(f"v_lshrrev_b32 v2, 5, v1\nv_lshlrev_b32 v2, 6, v2\nv_and_b32 v3, 3, v1\nv_lshl_add_u32 v3, v3, 7, v2")
    e(f"s_lshl_b32 s{sOFF}, s{sGRP}, 2\ns_add_u32 s{sOFF}, s{sOFF}, s{sH}\ns_lshl_b32 s{sOFF}, s{sOFF}, 3\ns_add_u32 s{sOFF}, s{sOFF}, s{sB}")
    e(f"s_lshl_b32 s{sOFF2}, s{sOFF}, 9\ns_add_u32 s{sOFF2}, s{sOFF2}, {S_BASE}")
    e(f"s_lshl_b32 s{sOFF}, s{sOFF}, 12\ns_add_u32 s{sOFF}, s{sOFF}, {O_BASE}")
    e(f"v_lshlrev_b32 v2, 4, v1\nv_lshlrev_b32 v30, 3, v1\ns_mul_i32 s{sTMP}, s{sB}, 528\nv_add_u32 v30, s{sTMP}, v30")
    spin(F_O2, 4, vZ, 31, sleep=1)
    ts(5)
    e(f"s_mov_b32 s{sCNT}, 0x4000")
    e("s_branch L_opoll")
    e("L_oretry:")
    retry([sOFF, sOFF2], osleep)
    e("L_opoll:")
    e(f"buffer_load_dwordx2 v[4:5], v3, {WS}, s{sOFF2} offen sc1")
    for k in range(4): e(f"buffer_load_dwordx4 {q(12+4*k)}, v2, {WS}, s{sOFF} offen offset:{1024*k} sc1")
    e("s_waitcnt vmcnt(4)")
    e(f"v_max_f32_dpp v6, v4, v4 quad_perm:[1,0,3,2] {dpp}\nv_xor_b32 v28, s{sT}, v5\nv_min_u32 v28, 1, v28")
    e(f"v_max_f32_dpp v6, v6, v6 quad_perm:[2,3,0,1] {dpp}")
    e("v_sub_f32 v6, v4, v6\nv_exp_f32 v6, v6\ns_nop 1")
    e(f"v_add_f32_dpp v7, v6, v6 quad_perm:[1,0,3,2] {dpp}\ns_nop 1")
    e(f"v_add_f32_dpp v7, v7, v7 quad_perm:[2,3,0,1] {dpp}")
    e("v_rcp_f32 v7, v7\ns_waitcnt vmcnt(0)\nv_mul_f32 v6, v6, v7")
    tag_check([12, 16, 20, 24], 28, "L_oretry", first=False)
    for r in range(4): e(f"v_mul_f32_dpp v{12+r}, v6, v{12+r} quad_perm:[0,0,0,0] {dpp}")
    for k in range(1, 4):
        for r in range(4): e(f"v_fmac_f32_dpp v{12+r}, v6, v{12+4*k+r} quad_perm:[{k},{k},{k},{k}] {dpp}")
    e("v_cvt_pk_bf16_f32 v12, v12, v13\nv_cvt_pk_bf16_f32 v13, v14, v15")
    e(f"ds_write_b64 v30, v[12:13] offset:{OLDS}")
    ts(6); cnt(10)
    e("s_waitcnt lgkmcnt(0)\ns_barrier")
    dbg_out()
    e("s_endpgm")

    KD, QO, S = 4, 68, 76
    e("L_K:")
    e(f"s_setprio {prio[1]}")
    e(f"v_bfe_u32 v2, v1, 1, 1\nv_lshlrev_b32 v{vA}, 10, v2\nv_bfe_u32 v2, v1, 2, 2\nv_lshl_add_u32 v{vA}, v2, 8, v{vA}")
    e(f"v_lshrrev_b32 v2, 4, v1\nv_lshl_add_u32 v{vA}, v2, 5, v{vA}\nv_and_b32 v2, 1, v1\nv_lshl_add_u32 v{vA}, v2, 4, v{vA}")
    def kv_base():
        e(f"s_lshr_b32 s{sOFF}, s{sIDX}, 2\ns_lshl_b32 s{sOFF}, s{sOFF}, 22\ns_lshl_b32 s{sTMP}, s{sHKV}, 20\ns_add_u32 s{sOFF}, s{sOFF}, s{sTMP}")
        e(f"s_and_b32 s{sTMP}, s{sIDX}, 3\ns_lshl_b32 s{sTMP}, s{sTMP}, 16\ns_add_u32 s{sOFF}, s{sOFF}, s{sTMP}")
        e(f"s_lshl_b32 s{sTMP}, s{sI}, 14\ns_add_u32 s{sOFF}, s{sOFF}, s{sTMP}\ns_add_u32 s{sOFF}, s{sOFF}, 0xC0000")
    kv_base()
    e(f"v_mov_b32 v{vZ}, 0\nv_mov_b32 v{vONE}, 1\ns_lshl_b32 s{sTMP}, s{sI}, 2\nv_mov_b32 v121, s{sTMP}")
    e("s_waitcnt lgkmcnt(0)")
    srd(SRD_A, sK, 32 << 20); srd(SRD_WS, sWS, WS_BYTES)
    epoch_load()
    e("s_barrier")
    loads = []
    for t in range(8):
        for hh in range(2):
            pre = f"s_add_u32 s{sOFF}, s{sOFF}, 4096" if (t and not t & 1 and not hh) else ""
            loads.append((pre, f"buffer_load_dwordx4 {q(KD + 8*t + 4*hh)}, v{vA}, {A}, s{sOFF} offen offset:{(t&1)*2048 + hh*128}{pf}"))
    stream(loads, win[1])
    e(f"s_waitcnt vmcnt({ho})")
    if chain: e(f"ds_write_b32 v121, v{vONE} offset:{GO_V}")
    else: flag_add(GO_V, vZ, vONE, wait=False)
    ts(1)
    e(f"v_and_b32 v2, 7, v1\nv_mul_u32_u24 v{vA}, 272, v2\nv_lshrrev_b32 v2, 3, v1\nv_lshl_add_u32 v{vA}, v2, 4, v{vA}")
    e(f"v_lshlrev_b32 v{vB}, 4, v1\ns_lshl_b32 s{sTMP}, s{sI}, 11\nv_add_u32 v{vB}, s{sTMP}, v{vB}")
    e(f"s_mov_b32 s{sSC}, 0x3e0293ee")
    e("s_waitcnt vmcnt(0) lgkmcnt(0)")
    ts(2)
    if cut:
        dbg_out(); e("s_endpgm")
    tag_setup()
    spin(F_Q, 4, vZ, 2, sleep=1)
    ts(3)
    e(f"ds_read_b128 {q(QO)}, v{vA} offset:{QLDS}\nds_read_b128 {q(QO+4)}, v{vA} offset:{QLDS+128}")
    e("s_waitcnt lgkmcnt(0)")
    for t in range(8): mfma(S + 4*t, KD + 8*t, QO, None)
    for t in range(8): mfma(S + 4*t, KD + 8*t + 4, QO + 4, S + 4*t)
    e("s_nop 1")
    for t in range(8):
        for u in range(2):
            e(f"v_add_f32_dpp v{KD + 2*t + u}, v{S + 4*t + 2*u + 1}, v{S + 4*t + 2*u} row_ror:8 {dpp}")
    e(f"v_max3_f32 v20, v{KD}, v{KD+1}, v{KD+2}")
    for k in range(3, 15, 2): e(f"v_max3_f32 v20, v20, v{KD+k}, v{KD+k+1}")
    e(f"v_max_f32 v20, v20, v{KD+15}")
    def allred(v, t, op):
        e(f"v_mov_b32 v{t}, v{v}\ns_nop 1\nv_permlane32_swap_b32 v{v}, v{t}\nv_{op}_f32 v{v}, v{v}, v{t}")
        e(f"v_mov_b32 v{t}, v{v}\ns_nop 1\nv_permlane16_swap_b32 v{v}, v{t}\nv_{op}_f32 v{v}, v{v}, v{t}")
    allred(20, 21, "max")
    e(f"v_mul_f32 v20, s{sSC}, v20")
    for k in range(16): e(f"v_fma_f32 v{KD+k}, v{KD+k}, s{sSC}, -v20")
    for k in range(16): e(f"v_exp_f32 v{KD+k}, v{KD+k}")
    e("s_nop 0")
    for k in range(8): e(f"v_cvt_pk_bf16_f32 v{24+k}, v{KD+2*k}, v{KD+2*k+1}")
    e(f"ds_write_b128 v{vB}, {q(24)} offset:{PLDS}\nds_write_b128 v{vB}, {q(28)} offset:{PLDS+1024}")
    for st in (8, 4, 2, 1):
        for k in range(st): e(f"v_add_f32 v{KD+k}, v{KD+k}, v{KD+st+k}")
    e(f"v_mov_b32 v21, v{KD}")
    allred(21, 22, "add")
    e(f"v_lshlrev_b32 v2, 3, v1\ns_lshl_b32 s{sTMP}, s{sI}, 6\nv_add_u32 v2, s{sTMP}, v2")
    e("s_mov_b64 exec, 0xff")
    e(f"ds_write_b64 v2, v[20:21] offset:{STLDS}")
    flag_add(F_P, vZ, vONE)
    ts(4)
    e(f"s_add_u32 s{sB}, s{sI}, 4")
    e("s_branch L_G")

    VD, ACC, TV, PO, G = 4, 68, 100, 108, 122
    e("L_V:")
    e(f"s_setprio {prio[2]}")
    e(f"v_lshlrev_b32 v{vA}, 4, v1")
    kv_base()
    e(f"v_mov_b32 v{vZ}, 0\nv_mov_b32 v{vONE}, 1\nv_mov_b32 v{vM}, 0xff\ns_lshl_b32 s{sTMP}, s{sI}, 2\nv_mov_b32 v2, s{sTMP}")
    e("s_waitcnt lgkmcnt(0)")
    srd(SRD_A, sV, 32 << 20); srd(SRD_WS, sWS, WS_BYTES)
    epoch_load()
    e("s_barrier")
    if chain: spin(GO_V, 1, 2, 121, sleep=1)
    else: spin(GO_V, 4, vZ, 121, sleep=1)
    loads = []
    for k in range(16):
        pre = f"s_add_u32 s{sOFF}, s{sOFF}, 4096" if (k and not k & 3) else ""
        loads.append((pre, f"buffer_load_dwordx4 {q(VD + 4*k)}, v{vA}, {A}, s{sOFF} offen offset:{(k&3)*1024}{pf}"))
    stream(loads, win[2])
    e(f"s_waitcnt vmcnt({ho})")
    if chain: e(f"ds_write_b32 v2, v{vONE} offset:{GO_WO}")
    else: flag_add(GO_WO, vZ, vONE, wait=False)
    ts(1)
    if cut:
        e("s_waitcnt vmcnt(0)"); ts(3); dbg_out(); e("s_endpgm")
    e(f"s_lshl_b32 s{sTMP}, s{sI}, 11\nv_add_u32 v{vB}, s{sTMP}, v{vA}")
    e(f"v_lshrrev_b32 v2, 5, v1\nv_lshlrev_b32 v3, 3, v2\ns_lshl_b32 s{sTMP}, s{sI}, 4\nv_add_u32 v3, s{sTMP}, v3")
    tag_setup()
    spin(F_P, 4, vZ, 121)
    ts(2)
    e(f"ds_read_b128 {q(PO)}, v{vB} offset:{PLDS}\nds_read_b128 {q(PO+4)}, v{vB} offset:{PLDS+1024}")
    for w in range(4): e(f"ds_read_b64 v[{TV+2*w}:{TV+2*w+1}], v3 offset:{STLDS + 64*w}")
    e(f"v_lshlrev_b32 v2, 6, v2\nv_and_b32 v126, 3, v1\nv_lshl_add_u32 v2, v126, 4, v2")
    e(f"s_lshl_b32 s{sOFF}, s{sGRP}, 14\ns_lshl_b32 s{sTMP}, s{sI}, 12\ns_add_u32 s{sOFF}, s{sOFF}, s{sTMP}")
    e(f"s_lshl_b32 s{sTMP}, s{sIDX}, 7\ns_add_u32 s{sOFF}, s{sOFF}, s{sTMP}\ns_add_u32 s{sOFF}, s{sOFF}, {S_BASE}")
    e("s_waitcnt lgkmcnt(0)")
    e(f"v_max3_f32 v126, v{TV}, v{TV+2}, v{TV+4}\nv_max_f32 v126, v126, v{TV+6}")
    for w in range(4): e(f"v_sub_f32 v{G+w}, v{TV+2*w}, v126")
    for w in range(4): e(f"v_exp_f32 v{G+w}, v{G+w}")
    e(f"s_nop 0\nv_mul_f32 v127, v{G}, v{TV+1}")
    for w in range(1, 4): e(f"v_fmac_f32 v127, v{G+w}, v{TV+2*w+1}")
    e(f"v_log_f32 v{TV}, v127\nv_rcp_f32 v127, v127\nv_mov_b32 v{TV+1}, s{sT}\nv_add_f32 v{TV}, v{TV}, v126")
    for w in range(4): e(f"v_mul_f32 v{G+w}, v{G+w}, v127")
    e(f"v_mov_b32 v{TV+2}, v{TV}\nv_mov_b32 v{TV+3}, s{sT}")
    e("s_mov_b32 exec_lo, 15\ns_mov_b32 exec_hi, 15")
    publish(TV, 2)
    e("s_mov_b64 exec, -1")
    def tail_addrs():
        e(f"v_lshrrev_b32 v2, 4, v1\nv_lshlrev_b32 v2, 3, v2\nv_and_b32 v3, 7, v1\nv_add_u32 v2, v2, v3\nv_lshlrev_b32 v2, 4, v2")
        e(f"s_mul_i32 s{sTMP}, s{sI}, 4224\nv_add_u32 v{vB}, s{sTMP}, v2")
        e(f"v_mul_u32_u24 v3, 528, v3\nv_bfe_u32 v2, v1, 3, 2\nv_lshl_add_u32 v3, v2, 7, v3\nv_lshrrev_b32 v2, 5, v1\nv_lshl_add_u32 v3, v2, 4, v3")
        e(f"s_lshl_b32 s{sTMP}, s{sI}, 5\nv_add_u32 v3, s{sTMP}, v3")
    tail_addrs()
    e(f"s_lshl_b32 s{sOFF}, s{sGRP}, 2\ns_add_u32 s{sOFF}, s{sOFF}, s{sI}\ns_lshl_b32 s{sOFF}, s{sOFF}, 5\ns_add_u32 s{sOFF}, s{sOFF}, s{sIDX}")
    e(f"s_lshl_b32 s{sOFF}, s{sOFF}, 10\ns_add_u32 s{sOFF}, s{sOFF}, {O_BASE}")
    nst = 2 if dual else 1
    if ho > 8: e(f"s_waitcnt vmcnt({8 + nst})")
    pingpong(VD, PO, ACC, TV, True)
    for ip in range(4):
        e(f"s_waitcnt vmcnt({6 + nst - 2*ip})")
        if ip < 3:
            for j in range(8): perm(VD + 4*j + ip, VD + 32, j, ip)
    ts(3)
    perm(VD + 3, VD + 32, 0, 3); perm(VD + 7, VD + 32, 1, 3)
    for j in range(8):
        if j < 6: perm(VD + 4*(j+2) + 3, VD + 32, j + 2, 3)
        elif j == 6: e("s_nop 0")
        mfma(ACC + 4*j, VD + 4*j, PO + 4, ACC + 4*j)
    part_write(ACC, vB, "0x00ff00ff", "0x00ff00ff")
    flag_add(F_O1, vZ, vONE)
    spin(F_O1, 4, vZ, 121)
    for w in range(4): e(f"ds_read_b128 {q(VD + 4*w)}, v3 offset:{PART + w*4224}")
    e("s_waitcnt lgkmcnt(0)")
    for r in range(4): e(f"v_mul_f32 v{VD+r}, v{G}, v{VD+r}")
    for w in range(1, 4):
        for r in range(4): e(f"v_fmac_f32 v{VD+r}, v{G+w}, v{VD+4*w+r}")
    tag_insert(VD, vM)
    publish(VD, vA)
    flag_add(F_O2, vZ, vONE, wait=False)
    ts(4)
    dbg_out()
    e("s_endpgm")

    WD, T0, OO, Z = 4, 68, 100, 108
    e("L_WO:")
    e(f"s_setprio {prio[3]}")
    e(f"v_mov_b32 v{vZ}, 0\nv_lshlrev_b32 v2, 2, v1")
    e("s_mov_b64 exec, 0xffff")
    e(f"ds_write_b32 v2, v{vZ}")
    e("s_mov_b64 exec, -1")
    if warm:
        e(f"s_getpc_b64 s[54:55]\nL_pc:\ns_sub_u32 s54, s54, L_pc-{KN}\ns_subb_u32 s55, s55, 0")
        e(f"s_lshl_b32 s{sTMP}, s{sI}, 5\ns_add_u32 s{sTMP}, s{sTMP}, s{sIDX}\ns_lshl_b32 s56, s{sTMP}, 7\ns_min_u32 s56, s56, L_end-{KN}")
        e("s_load_dword s57, s[54:55], s56")
    e(f"v_lshrrev_b32 v2, 4, v1\nv_lshlrev_b32 v{vA}, 12, v2\nv_and_b32 v3, 15, v1\nv_lshl_add_u32 v{vA}, v3, 4, v{vA}")
    e(f"s_lshr_b32 s{sTMP2}, s{sIDX}, 3\ns_lshl_b32 s{sB}, s{sHKV}, 2\ns_add_u32 s{sB}, s{sB}, s{sTMP2}")
    e(f"s_lshl_b32 s{sOFF}, s{sB}, 2\ns_add_u32 s{sOFF}, s{sOFF}, s{sI}\ns_lshl_b32 s{sOFF}, s{sOFF}, 17")
    e(f"s_and_b32 s{sSC}, s{sIDX}, 7\ns_lshl_b32 s{sTMP}, s{sSC}, 8\ns_add_u32 s{sOFF}, s{sOFF}, s{sTMP}")
    e(f"v_and_b32 v3, 7, v1\nv_mul_u32_u24 v{vONE}, 528, v3\nv_lshl_add_u32 v{vONE}, v2, 4, v{vONE}\ns_lshl_b32 s{sTMP}, s{sI}, 7\nv_add_u32 v{vONE}, s{sTMP}, v{vONE}")
    tail_addrs()
    e(f"s_lshl_b32 s{sTMP}, s{sI}, 2\nv_mov_b32 v2, s{sTMP}\nv_mov_b32 v{vM}, 0xff")
    e("s_waitcnt lgkmcnt(0)")
    srd(SRD_A, sWO, 8 << 20); srd(SRD_WS, sWS, WS_BYTES); srd(SRD_B, sOUT, 32768)
    epoch_load()
    e("s_barrier")
    if chain: spin(GO_WO, 1, 2, 121, sleep=1)
    else: spin(GO_WO, 4, vZ, 121, sleep=1)
    e(f"s_add_u32 s{sTMP}, s{sOFF}, s{sWO}\ns_bfe_u32 s{sTMP}, s{sTMP}, 0x20008\ns_cmp_eq_u32 s{sTMP}, 1")
    loads = []; cur = 0
    for blk in range(2):
        for jj in range(8):
            row = 32*blk + 8*(jj & 3) + (jj >> 2)
            d = (row - cur) * 2048; cur = row
            pre = "" if d == 0 else (f"s_add_u32 s{sOFF}, s{sOFF}, {d}" if d > 0 else f"s_sub_u32 s{sOFF}, s{sOFF}, {-d}")
            loads.append((pre, f"buffer_load_dwordx4 {q(WD + 32*blk + 4*jj)}, v{vA}, {A}, s{sOFF} offen{pf}"))
    stream2(loads, win[3], slow[1])
    ts(1)
    tag_setup()
    e(f"s_lshl_b32 s{sOFF}, s{sBR}, 3\ns_add_u32 s{sOFF}, s{sOFF}, s{sSC}\ns_lshl_b32 s{sOFF}, s{sOFF}, 16\ns_add_u32 s{sOFF}, s{sOFF}, {R_BASE}")
    e(f"s_lshl_b32 s{sTMP}, s{sB}, 12\ns_add_u32 s{sTMP2}, s{sOFF}, s{sTMP}")
    e(f"s_lshl_b32 s{sTMP}, s{sI}, 14\ns_add_u32 s{sOFF}, s{sOFF}, s{sTMP}\ns_lshl_b32 s{sTMP}, s{sB}, 8\ns_add_u32 s{sOFF}, s{sOFF}, s{sTMP}")
    e(f"v_bfe_u32 v122, v1, 3, 1\nv_lshlrev_b32 v122, 6, v122\nv_lshrrev_b32 v2, 4, v1\nv_lshl_add_u32 v122, v2, 4, v122\nv_and_b32 v2, 7, v1\nv_lshl_add_u32 v122, v2, 1, v122")
    e(f"s_lshr_b32 s{sOFF2}, s{sB}, 1\ns_lshl_b32 s{sOFF2}, s{sOFF2}, 12\ns_lshl_b32 s{sTMP}, s{sBR}, 11\ns_add_u32 s{sOFF2}, s{sOFF2}, s{sTMP}")
    e(f"s_lshl_b32 s{sTMP}, s{sSC}, 8\ns_add_u32 s{sOFF2}, s{sOFF2}, s{sTMP}\ns_and_b32 s{sTMP}, s{sB}, 1\ns_lshl_b32 s{sTMP}, s{sTMP}, 7\ns_add_u32 s{sOFF2}, s{sOFF2}, s{sTMP}")
    e(f"v_lshlrev_b32 v2, 4, v1\ns_mov_b32 s{sCNT}, 0x4000")
    for blk in range(2):
        for ip in range(4):
            e(f"s_waitcnt vmcnt({14 - 8*blk - 2*ip})")
            for j in range(8): perm((T0 if blk == 0 else WD) + 4*j + ip, WD + 32*blk, j, ip)
    ts(2)
    if cut:
        dbg_out(); e("s_endpgm")
    e("s_barrier")
    ts(3)
    e(f"ds_read_b128 {q(OO)}, v{vONE} offset:{OLDS}\nds_read_b128 {q(OO+4)}, v{vONE} offset:{OLDS+64}")
    AC = WD + 32
    e("s_waitcnt lgkmcnt(0)")
    for j in range(8): mfma(AC + 4*j, T0 + 4*j, OO, None)
    for j in range(8): mfma(AC + 4*j, WD + 4*j, OO + 4, AC + 4*j)
    part_write(AC, vB, "0x00ff00ff", "0x00ff00ff")
    e("s_waitcnt lgkmcnt(0)\ns_barrier")
    for w in range(4): e(f"ds_read_b128 {q(T0 + 4*w)}, v3 offset:{PART + w*4224}")
    e("s_waitcnt lgkmcnt(0)")
    for st in (8, 4):
        for k in range(st): e(f"v_add_f32 v{T0+k}, v{T0+k}, v{T0+st+k}")
    tag_insert(T0, vM)
    e(f"buffer_store_dwordx4 {q(T0)}, v{vA}, {WS}, s{sOFF} offen sc1")
    ts(4)
    e(f"s_cmp_lg_u32 s{sI}, 0\ns_cbranch_scc1 L_fin")
    if rdelay: e(f"s_sleep {rdelay}")
    e("s_branch L_rpoll")
    e("L_rretry:")
    e(f"s_sub_u32 s{sCNT}, s{sCNT}, 1\ns_cbranch_scc1 L_end")
    e("L_rpoll:")
    for k in range(4): e(f"buffer_load_dwordx4 {q(12+4*k)}, v2, {WS}, s{sTMP2} offen offset:{1024*k} sc1")
    e("s_waitcnt vmcnt(0)")
    tag_check([12, 16, 20, 24], 28, "L_rretry")
    for st in (8, 4):
        for k in range(st): e(f"v_add_f32 v{12+k}, v{12+k}, v{12+st+k}")
    e("s_nop 1\nv_permlane32_swap_b32 v12, v14\nv_permlane32_swap_b32 v13, v15")
    e("v_add_f32 v12, v12, v14\nv_add_f32 v13, v13, v15\ns_nop 1\nv_permlane16_swap_b32 v12, v13\nv_add_f32 v12, v12, v13")
    e("v_cvt_pk_bf16_f32 v12, v12, v12")
    e(f"buffer_store_short v12, v122, {B}, s{sOFF2} offen")
    ts(5); cnt(8)
    e(f"s_or_b32 s{sTMP}, s{sHKV}, s{sIDX}\ns_cmp_lg_u32 s{sTMP}, 0\ns_cbranch_scc1 L_fin")
    e(f"s_lshl_b32 s{sTMP}, s{sBR}, 8\nv_mov_b32 v4, s{sT}\nv_mov_b32 v5, 0\ns_mov_b64 exec, 1")
    e(f"buffer_store_dword v4, v5, {WS}, s{sTMP} offen sc1")
    e("L_fin:")
    if dbg: e("s_nop 1")
    dbg_out()
    e("L_end:\ns_endpgm")
    e(f""".section .rodata,"a"
.p2align 6
.amdhsa_kernel {KN}
  .amdhsa_next_free_vgpr 128
  .amdhsa_next_free_sgpr 96
  .amdhsa_accum_offset 128
  .amdhsa_group_segment_fixed_size 0
  .amdhsa_kernarg_size 104
  .amdhsa_user_sgpr_count 2
  .amdhsa_user_sgpr_kernarg_segment_ptr 1
  .amdhsa_system_sgpr_workgroup_id_x 1
.end_amdhsa_kernel""")
    return "\n".join(o) + "\n"

if __name__ == "__main__":
    kw = eval("dict(" + (sys.argv[2] if len(sys.argv) > 2 else "") + ")")
    open(sys.argv[1], "w").write(gen(**kw))
```

```python
import sys
KN = "concat_heads__sliding_block_cached__sliding_block_cached__decode_kernel"
REF = "concat_heads__sliding_block_cached__sliding_block_cached__decode.s.ref"

Q_BASE = 0x10000
S_BASE = 0xA0000
O_BASE = 0x100000
R_BASE = 0x200000
ALT = 0x400000
DBG_BASE = 0x800000
WS_BYTES = 0x1000000
F_Q1, F_Q, F_P, F_O1, F_O2 = 0, 4, 8, 12, 16
GO_V, GO_WO = 32, 48
QLDS = 64
PLDS = 2304
STLDS = 10496
OLDS = 10752
PART = 15360
LDS_BYTES = PART + 4 * 4224
sGRP, sIDX, sBR, sHKV, sI, sROLE = 3, 4, 5, 6, 7, 8
sX, sK, sV, sWQ, sWO, sOUT, sWS = 12, 14, 16, 18, 20, 22, 24
SRD_A, SRD_WS, SRD_B = 28, 32, 36
sT = 40
sSELLO, sSELHI = 44, 45
sOFF, sTMP, sTMP2, sCNT, sB, sSC, sOFF2, sH = 46, 47, 48, 49, 50, 51, 52, 53
TS0 = 60

def gen(pol="nt", dbg=False, prio=(2, 2, 3, 1), gprio=0, qsleep=2, osleep=0, win=(7, 7, 7, 7), slow=(16, 16), ho=4, cut=0, dual=True, na=8, warm=True, rdelay=0, xperm=False, chain=False, hold=0):
    o = []
    def e(s): o.append(s)
    pf = (" " + pol) if pol else ""
    dpp = "row_mask:0xf bank_mask:0xf"
    def ts(k):
        if dbg: e(f"s_memrealtime s[{TS0+2*k}:{TS0+2*k+1}]")
    def cnt(k):
        if dbg: e(f"s_sub_u32 s{TS0+2*k}, 0x4000, s{sCNT}")
    def srd(d, base, nbytes):
        e(f"s_mov_b32 s{d}, s{base}\ns_mov_b32 s{d+1}, s{base+1}\ns_mov_b32 s{d+2}, {nbytes}\ns_mov_b32 s{d+3}, 0x20000")
    def q(a): return f"v[{a}:{a+3}]"
    uid = [0]
    def lab(n):
        uid[0] += 1; return f"L_{n}_{uid[0]}"
    def flag_add(off, va, vone, wait=True):
        if wait: e("s_waitcnt lgkmcnt(0)")
        e("s_mov_b64 exec, 1")
        e(f"ds_add_u32 v{va}, v{vone} offset:{off}")
        e("s_mov_b64 exec, -1")
    def spin(off, n, va, vt, sleep=0):
        l = lab("spin"); d = lab("spun")
        e(f"s_mov_b32 s{sCNT}, 0x80000")
        e(f"{l}:")
        e(f"ds_read_b32 v{vt}, v{va} offset:{off}")
        e("s_waitcnt lgkmcnt(0)")
        e(f"v_readfirstlane_b32 s{sTMP}, v{vt}")
        e(f"s_cmp_ge_u32 s{sTMP}, {n}")
        e(f"s_cbranch_scc1 {d}")
        if sleep: e(f"s_sleep {sleep}")
        e(f"s_sub_u32 s{sCNT}, s{sCNT}, 1")
        e(f"s_cbranch_scc0 {l}")
        e("s_endpgm")
        e(f"{d}:")
    def tag_setup():
        e(f"s_add_u32 s{sT}, s{sT}, 0x9E3779B1")
        e(f"s_lshr_b32 s{sT+1}, s{sT}, 8\ns_lshr_b32 s{sT+2}, s{sT}, 16\ns_lshr_b32 s{sT+3}, s{sT}, 24")
    def epoch_load():
        e(f"s_lshl_b32 s9, s{sBR}, 8")
        e(f"s_load_dword s{sT}, s[{sWS}:{sWS+1}], s9")
    def tag_insert(v, vmask):
        for r in range(4): e(f"v_bfi_b32 v{v+r}, v{vmask}, s{sT+r}, v{v+r}")
    def tag_check(regs, vacc, retry, first=True):
        for v in regs:
            for r in range(4):
                if first: e(f"v_xor_b32 v{vacc}, s{sT+r}, v{v+r}"); first = False
                else: e(f"v_bitop3_b32 v{vacc}, v{vacc}, v{v+r}, s{sT+r} bitop3:0xf6")
        e(f"v_and_b32 v{vacc}, 0xff, v{vacc}")
        e(f"v_cmp_ne_u32 vcc, 0, v{vacc}")
        e(f"s_cbranch_vccnz {retry}")
    def perm(dst, src, j, ip):
        u, p = j >> 1, j & 1
        e(f"v_perm_b32 v{dst}, v{src + (2*ip+1)*4 + u}, v{src + (2*ip)*4 + u}, s{sSELHI if p else sSELLO}")
    def mfma(d, a, b, c):
        e(f"v_mfma_f32_16x16x32_bf16 {q(d)}, {q(a)}, {q(b)}, {q(c) if c is not None else 0}")
    def pingpong(src, bop, acc, T, first):
        for ip in range(4): perm(T + ip, src, 0, ip)
        for j in range(8):
            if j < 7:
                for ip in range(4): perm(T + 4*((j+1) & 1) + ip, src, j + 1, ip)
            else:
                e("s_nop 0")
            mfma(acc + 4*j, T + 4*(j & 1), bop, None if first else acc + 4*j)
    def part_write(acc, va, lo, hi):
        e(f"s_mov_b32 exec_lo, {lo}\ns_mov_b32 exec_hi, {hi}\ns_nop 0")
        for j in range(8): e(f"ds_write_b128 v{va}, {q(acc+4*j)} offset:{PART + j*528}")
        e("s_mov_b64 exec, -1")
    def stream(loads, w):
        for n, (pre, ld) in enumerate(loads):
            if pre: e(pre)
            if n >= w: e(f"s_waitcnt vmcnt({w-1})")
            e(ld)
    def stream2(loads, w, wslow):
        if w == wslow: return stream(loads, w)
        a, b = lab("wide"), lab("join")
        e(f"s_cbranch_scc1 {a}"); stream(loads, w); e(f"s_branch {b}\n{a}:"); stream(loads, wslow); e(f"{b}:")
    def dbg_out():
        if not dbg: return
        e("s_waitcnt lgkmcnt(0)\ns_mov_b64 exec, 1")
        e(f"s_lshl_b32 s{sTMP}, s{sROLE}, 2\ns_add_u32 s{sTMP}, s{sTMP}, s{sI}\ns_lshl_b32 s{sTMP2}, s2, 4\ns_add_u32 s{sTMP}, s{sTMP}, s{sTMP2}")
        e(f"s_lshl_b32 s{sTMP}, s{sTMP}, 6\ns_add_u32 s{sTMP}, s{sTMP}, {DBG_BASE}")
        for k in range(12): e(f"v_mov_b32 v{4+k}, s{TS0+2*k}")
        e(f"s_getreg_b32 s{sTMP2}, hwreg(HW_REG_XCC_ID)\nv_mov_b32 v16, s{sTMP2}\nv_mov_b32 v17, s{sCNT}\nv_mov_b32 v18, 0\nv_mov_b32 v19, 0\nv_mov_b32 v2, 0")
        for k in range(4): e(f"buffer_store_dwordx4 {q(4+4*k)}, v2, s[{SRD_WS}:{SRD_WS+3}], s{sTMP} offen offset:{16*k}")
        e("s_mov_b64 exec, -1")
    def publish(v, va):
        WS = f"s[{SRD_WS}:{SRD_WS+3}]"
        if dual:
            e(f"buffer_store_dwordx4 {q(v)}, v{va}, {WS}, s{sOFF} offen")
            e(f"s_add_u32 s{sOFF}, s{sOFF}, {ALT}")
        e(f"buffer_store_dwordx4 {q(v)}, v{va}, {WS}, s{sOFF} offen sc1")
    def retry(offs, sleep):
        e(f"s_sub_u32 s{sCNT}, s{sCNT}, 1\ns_cbranch_scc1 L_end")
        if dual:
            e(f"s_cmp_lt_u32 s{sCNT}, {0x4000 - na}\ns_cselect_b32 s{sTMP}, {ALT}, 0")
            for r in offs: e(f"s_xor_b32 s{r}, s{r}, s{sTMP}")
        if sleep: e(f"s_sleep {sleep}")
    A = f"s[{SRD_A}:{SRD_A+3}]"; WS = f"s[{SRD_WS}:{SRD_WS+3}]"; B = f"s[{SRD_B}:{SRD_B+3}]"

    hdr = [l for l in open(REF).read().split("\n") if l.startswith(";") and "@launch" not in l]
    o += hdr
    e(f"; @launch grid=(256,1,1) block=(1024,1,1) lds={LDS_BYTES}")
    e('.amdgcn_target "amdgcn-amd-amdhsa--gfx950"\n.text')
    e(f".globl {KN}\n.p2align 8\n.type {KN},@function\n{KN}:")
    if dbg:
        for k in range(1, 12): e(f"s_mov_b32 s{TS0+2*k}, 0")
    ts(0)
    if hold: e("s_memrealtime s[58:59]")
    e("s_cmp_ge_u32 s2, 256\ns_cbranch_scc1 L_end")
    if xperm: e("s_and_b32 s3, s2, 7\ns_bfe_u32 s4, s2, 0x30003\ns_andn2_b32 s2, s2, 63\ns_lshl_b32 s3, s3, 3\ns_or_b32 s2, s2, s3\ns_or_b32 s2, s2, s4")
    e(f"s_and_b32 s{sBR}, s2, 1\ns_mul_i32 s9, s{sBR}, 40\ns_add_u32 s10, s0, s9\ns_addc_u32 s11, s1, 0")
    e(f"s_load_dwordx8 s[12:19], s[10:11], 0\ns_load_dwordx2 s[20:21], s[10:11], 32")
    e(f"s_load_dwordx2 s[22:23], s[0:1], 80\ns_load_dwordx2 s[24:25], s[0:1], 96")
    e("v_lshrrev_b32 v2, 6, v0\nv_and_b32 v1, 63, v0")
    e(f"v_readfirstlane_b32 s{sROLE}, v2")
    e(f"s_and_b32 s{sGRP}, s2, 7\ns_lshr_b32 s{sIDX}, s2, 3\ns_lshr_b32 s{sHKV}, s{sGRP}, 1")
    e(f"s_mov_b32 s{sSELLO}, 0x05040100\ns_mov_b32 s{sSELHI}, 0x07060302")
    e(f"s_and_b32 s{sI}, s{sROLE}, 3\ns_lshr_b32 s{sROLE}, s{sROLE}, 2")
    e(f"s_cmp_eq_u32 s{sROLE}, 1\ns_cbranch_scc1 L_K\ns_cmp_eq_u32 s{sROLE}, 2\ns_cbranch_scc1 L_V\ns_cmp_eq_u32 s{sROLE}, 3\ns_cbranch_scc1 L_WO")

    XO, W, D, T = 4, 12, 76, 108
    vZ, vONE, vA, vM, vB = 116, 117, 118, 119, 120
    e(f"s_setprio {prio[0]}")
    e("v_lshrrev_b32 v2, 3, v1\nv_and_b32 v3, 7, v1")
    e(f"v_lshlrev_b32 v{vA}, 16, v2\nv_lshl_add_u32 v{vA}, v3, 4, v{vA}")
    e(f"v_lshlrev_b32 v{vB}, 11, v3\nv_lshl_add_u32 v{vB}, v2, 4, v{vB}")
    e(f"s_and_b32 s{sTMP}, s{sIDX}, 1\ns_lshl_b32 s{sTMP}, s{sTMP}, 2\ns_add_u32 s{sTMP}, s{sTMP}, s{sI}")
    e(f"s_lshl_b32 s{sTMP2}, s{sTMP}, 8")
    e(f"s_lshl_b32 s{sOFF}, s{sTMP}, 20\ns_lshl_b32 s{sTMP}, s{sHKV}, 11\ns_add_u32 s{sOFF}, s{sOFF}, s{sTMP}")
    e(f"s_lshr_b32 s{sTMP}, s{sIDX}, 1\ns_lshl_b32 s{sTMP}, s{sTMP}, 7\ns_add_u32 s{sOFF}, s{sOFF}, s{sTMP}")
    e("s_waitcnt lgkmcnt(0)")
    srd(SRD_B, sX, 16384); srd(SRD_A, sWQ, 8 << 20)
    e(f"buffer_load_dwordx4 {q(XO)}, v{vB}, {B}, s{sTMP2} offen")
    e(f"buffer_load_dwordx4 {q(XO+4)}, v{vB}, {B}, s{sTMP2} offen offset:128")
    e(f"s_add_u32 s{sTMP}, s{sOFF}, s{sWQ}\ns_bfe_u32 s{sTMP}, s{sTMP}, 0x30007\ns_cmp_eq_u32 s{sTMP}, 3")
    loads = []
    for blk in range(2):
        for jj in range(8):
            n = 8*blk + jj
            pre = "" if n == 0 else f"s_add_u32 s{sOFF}, s{sOFF}, {8192 if jj else 57*8192}"
            loads.append((pre, f"buffer_load_dwordx4 {q(W + 4*n)}, v{vA}, {A}, s{sOFF} offen{pf}"))
    stream2(loads, win[0], slow[0])
    epoch_load()
    e(f"s_waitcnt vmcnt({ho})")
    e("s_barrier")
    ts(1)
    srd(SRD_WS, sWS, WS_BYTES)
    e(f"v_mov_b32 v{vZ}, 0\nv_mov_b32 v{vONE}, 1\nv_mov_b32 v{vM}, 0xff")
    e(f"v_lshrrev_b32 v2, 4, v1\nv_lshlrev_b32 v2, 3, v2\nv_add_u32 v2, v2, v3\nv_lshlrev_b32 v2, 4, v2")
    e(f"s_mul_i32 s{sTMP}, s{sI}, 4224\nv_add_u32 v{vA}, s{sTMP}, v2")
    if cut == 1:
        e("s_waitcnt vmcnt(0)"); ts(2); dbg_out(); e("s_endpgm")
    if ho > 8: e("s_waitcnt vmcnt(8)")
    pingpong(W, XO, D, T, True)
    e("s_waitcnt vmcnt(0)")
    ts(2)
    pingpong(W + 32, XO + 4, D, T, False)
    part_write(D, vA, "0x00ff00ff", "0xff00ff00")
    e(f"v_mul_u32_u24 v{vA}, 528, v3\nv_bfe_u32 v2, v1, 3, 1\nv_lshl_add_u32 v{vA}, v2, 7, v{vA}")
    e(f"v_bfe_u32 v2, v1, 4, 1\nv_lshl_add_u32 v{vA}, v2, 4, v{vA}\ns_lshl_b32 s{sTMP}, s{sI}, 5\nv_add_u32 v{vA}, s{sTMP}, v{vA}")
    flag_add(F_Q1, vZ, vONE)
    tag_setup()
    spin(F_Q1, 4, vZ, 2)
    e("s_mov_b32 exec_hi, 0")
    for w in range(4):
        for sub in range(2):
            e(f"ds_read_b128 {q(W + 8*w + 4*sub)}, v{vA} offset:{PART + w*4224 + sub*256}")
    e(f"v_lshlrev_b32 v2, 4, v1")
    e(f"s_lshl_b32 s{sOFF}, s{sGRP}, 5\ns_add_u32 s{sOFF}, s{sOFF}, s{sIDX}\ns_lshl_b32 s{sOFF}, s{sOFF}, 11\ns_lshl_b32 s{sTMP}, s{sI}, 9\ns_add_u32 s{sOFF}, s{sOFF}, s{sTMP}\ns_add_u32 s{sOFF}, s{sOFF}, {Q_BASE}")
    e("s_waitcnt lgkmcnt(0)")
    for st in (16, 8, 4):
        for k in range(st): e(f"v_add_f32 v{W+k}, v{W+k}, v{W+st+k}")
    tag_insert(W, vM)
    publish(W, 2)
    e("s_mov_b64 exec, -1")
    ts(3)
    e(f"v_lshrrev_b32 v2, 4, v1\nv_lshlrev_b32 v2, 12, v2\nv_and_b32 v{vB}, 15, v1\nv_lshl_add_u32 v2, v{vB}, 4, v2")
    e(f"s_lshl_b32 s{sOFF}, s{sGRP}, 16\ns_lshl_b32 s{sTMP}, s{sI}, 14\ns_add_u32 s{sOFF}, s{sOFF}, s{sTMP}")
    e(f"s_lshr_b32 s{sTMP}, s{sIDX}, 2\ns_lshl_b32 s{sTMP}, s{sTMP}, 8\ns_add_u32 s{sOFF}, s{sOFF}, s{sTMP}\ns_add_u32 s{sOFF}, s{sOFF}, {Q_BASE}")
    e(f"v_lshrrev_b32 v{vA}, 5, v1\nv_mul_u32_u24 v{vA}, 272, v{vA}\nv_bfe_u32 v{vB}, v1, 3, 2\nv_lshl_add_u32 v{vA}, v{vB}, 6, v{vA}")
    e(f"v_lshl_add_u32 v{vA}, v3, 1, v{vA}\ns_mul_i32 s{sTMP}, s{sI}, 544\nv_add_u32 v{vA}, s{sTMP}, v{vA}")
    e(f"s_mov_b32 s{sCNT}, 0x4000")
    e("s_branch L_qpoll")
    e("L_qretry:")
    retry([sOFF], qsleep)
    e("L_qpoll:")
    e(f"buffer_load_dwordx4 {q(20)}, v2, {WS}, s{sOFF} offen sc1")
    e(f"buffer_load_dwordx4 {q(24)}, v2, {WS}, s{sOFF} offen offset:2048 sc1")
    e("s_waitcnt vmcnt(0)")
    tag_check([20, 24], 28, "L_qretry")
    for r in range(4): e(f"v_add_f32 v{20+r}, v{20+r}, v{24+r}")
    e("v_cvt_pk_bf16_f32 v20, v20, v21\nv_cvt_pk_bf16_f32 v22, v22, v23")
    e(f"ds_write_b16 v{vA}, v20 offset:{QLDS}\nds_write_b16_d16_hi v{vA}, v20 offset:{QLDS+16}")
    e(f"ds_write_b16 v{vA}, v22 offset:{QLDS+32}\nds_write_b16_d16_hi v{vA}, v22 offset:{QLDS+48}")
    flag_add(F_Q, vZ, vONE)
    ts(4); cnt(8)
    e(f"s_mov_b32 s{sB}, s{sI}")

    e("L_G:")
    e(f"s_setprio {gprio}")
    e(f"s_lshr_b32 s{sH}, s{sIDX}, 3")
    e(f"v_lshrrev_b32 v2, 5, v1\nv_lshlrev_b32 v2, 6, v2\nv_and_b32 v3, 3, v1\nv_lshl_add_u32 v3, v3, 7, v2")
    e(f"s_lshl_b32 s{sOFF}, s{sGRP}, 2\ns_add_u32 s{sOFF}, s{sOFF}, s{sH}\ns_lshl_b32 s{sOFF}, s{sOFF}, 3\ns_add_u32 s{sOFF}, s{sOFF}, s{sB}")
    e(f"s_lshl_b32 s{sOFF2}, s{sOFF}, 9\ns_add_u32 s{sOFF2}, s{sOFF2}, {S_BASE}")
    e(f"s_lshl_b32 s{sOFF}, s{sOFF}, 12\ns_add_u32 s{sOFF}, s{sOFF}, {O_BASE}")
    e(f"v_lshlrev_b32 v2, 4, v1\nv_lshlrev_b32 v30, 3, v1\ns_mul_i32 s{sTMP}, s{sB}, 528\nv_add_u32 v30, s{sTMP}, v30")
    spin(F_O2, 4, vZ, 31, sleep=1)
    ts(5)
    e(f"s_mov_b32 s{sCNT}, 0x4000")
    e("s_branch L_opoll")
    e("L_oretry:")
    retry([sOFF, sOFF2], osleep)
    e("L_opoll:")
    e(f"buffer_load_dwordx2 v[4:5], v3, {WS}, s{sOFF2} offen sc1")
    for k in range(4): e(f"buffer_load_dwordx4 {q(12+4*k)}, v2, {WS}, s{sOFF} offen offset:{1024*k} sc1")
    e("s_waitcnt vmcnt(4)")
    e(f"v_max_f32_dpp v6, v4, v4 quad_perm:[1,0,3,2] {dpp}\nv_xor_b32 v28, s{sT}, v5\nv_min_u32 v28, 1, v28")
    e(f"v_max_f32_dpp v6, v6, v6 quad_perm:[2,3,0,1] {dpp}")
    e("v_sub_f32 v6, v4, v6\nv_exp_f32 v6, v6\ns_nop 1")
    e(f"v_add_f32_dpp v7, v6, v6 quad_perm:[1,0,3,2] {dpp}\ns_nop 1")
    e(f"v_add_f32_dpp v7, v7, v7 quad_perm:[2,3,0,1] {dpp}")
    e("v_rcp_f32 v7, v7\ns_waitcnt vmcnt(0)\nv_mul_f32 v6, v6, v7")
    tag_check([12, 16, 20, 24], 28, "L_oretry", first=False)
    for r in range(4): e(f"v_mul_f32_dpp v{12+r}, v6, v{12+r} quad_perm:[0,0,0,0] {dpp}")
    for k in range(1, 4):
        for r in range(4): e(f"v_fmac_f32_dpp v{12+r}, v6, v{12+4*k+r} quad_perm:[{k},{k},{k},{k}] {dpp}")
    e("v_cvt_pk_bf16_f32 v12, v12, v13\nv_cvt_pk_bf16_f32 v13, v14, v15")
    e(f"ds_write_b64 v30, v[12:13] offset:{OLDS}")
    ts(6); cnt(10)
    e("s_waitcnt lgkmcnt(0)\ns_barrier")
    dbg_out()
    e("s_endpgm")

    KD, QO, S = 4, 68, 76
    e("L_K:")
    e(f"s_setprio {prio[1]}")
    e(f"v_bfe_u32 v2, v1, 1, 1\nv_lshlrev_b32 v{vA}, 10, v2\nv_bfe_u32 v2, v1, 2, 2\nv_lshl_add_u32 v{vA}, v2, 8, v{vA}")
    e(f"v_lshrrev_b32 v2, 4, v1\nv_lshl_add_u32 v{vA}, v2, 5, v{vA}\nv_and_b32 v2, 1, v1\nv_lshl_add_u32 v{vA}, v2, 4, v{vA}")
    def kv_base():
        e(f"s_lshr_b32 s{sOFF}, s{sIDX}, 2\ns_lshl_b32 s{sOFF}, s{sOFF}, 22\ns_lshl_b32 s{sTMP}, s{sHKV}, 20\ns_add_u32 s{sOFF}, s{sOFF}, s{sTMP}")
        e(f"s_and_b32 s{sTMP}, s{sIDX}, 3\ns_lshl_b32 s{sTMP}, s{sTMP}, 16\ns_add_u32 s{sOFF}, s{sOFF}, s{sTMP}")
        e(f"s_lshl_b32 s{sTMP}, s{sI}, 14\ns_add_u32 s{sOFF}, s{sOFF}, s{sTMP}\ns_add_u32 s{sOFF}, s{sOFF}, 0xC0000")
    kv_base()
    e(f"v_mov_b32 v{vZ}, 0\nv_mov_b32 v{vONE}, 1\ns_lshl_b32 s{sTMP}, s{sI}, 2\nv_mov_b32 v121, s{sTMP}")
    e("s_waitcnt lgkmcnt(0)")
    srd(SRD_A, sK, 32 << 20); srd(SRD_WS, sWS, WS_BYTES)
    epoch_load()
    e("s_barrier")
    loads = []
    for t in range(8):
        for hh in range(2):
            pre = f"s_add_u32 s{sOFF}, s{sOFF}, 4096" if (t and not t & 1 and not hh) else ""
            loads.append((pre, f"buffer_load_dwordx4 {q(KD + 8*t + 4*hh)}, v{vA}, {A}, s{sOFF} offen offset:{(t&1)*2048 + hh*128}{pf}"))
    stream(loads, win[1])
    e(f"s_waitcnt vmcnt({ho})")
    if chain: e(f"ds_write_b32 v121, v{vONE} offset:{GO_V}")
    else: flag_add(GO_V, vZ, vONE, wait=False)
    ts(1)
    e(f"v_and_b32 v2, 7, v1\nv_mul_u32_u24 v{vA}, 272, v2\nv_lshrrev_b32 v2, 3, v1\nv_lshl_add_u32 v{vA}, v2, 4, v{vA}")
    e(f"v_lshlrev_b32 v{vB}, 4, v1\ns_lshl_b32 s{sTMP}, s{sI}, 11\nv_add_u32 v{vB}, s{sTMP}, v{vB}")
    e(f"s_mov_b32 s{sSC}, 0x3e0293ee")
    e("s_waitcnt vmcnt(0) lgkmcnt(0)")
    ts(2)
    if cut:
        dbg_out(); e("s_endpgm")
    tag_setup()
    spin(F_Q, 4, vZ, 2, sleep=1)
    ts(3)
    e(f"ds_read_b128 {q(QO)}, v{vA} offset:{QLDS}\nds_read_b128 {q(QO+4)}, v{vA} offset:{QLDS+128}")
    e("s_waitcnt lgkmcnt(0)")
    for t in range(8): mfma(S + 4*t, KD + 8*t, QO, None)
    for t in range(8): mfma(S + 4*t, KD + 8*t + 4, QO + 4, S + 4*t)
    e("s_nop 1")
    for t in range(8):
        for u in range(2):
            e(f"v_add_f32_dpp v{KD + 2*t + u}, v{S + 4*t + 2*u + 1}, v{S + 4*t + 2*u} row_ror:8 {dpp}")
    e(f"v_max3_f32 v20, v{KD}, v{KD+1}, v{KD+2}")
    for k in range(3, 15, 2): e(f"v_max3_f32 v20, v20, v{KD+k}, v{KD+k+1}")
    e(f"v_max_f32 v20, v20, v{KD+15}")
    def allred(v, t, op):
        e(f"v_mov_b32 v{t}, v{v}\ns_nop 1\nv_permlane32_swap_b32 v{v}, v{t}\nv_{op}_f32 v{v}, v{v}, v{t}")
        e(f"v_mov_b32 v{t}, v{v}\ns_nop 1\nv_permlane16_swap_b32 v{v}, v{t}\nv_{op}_f32 v{v}, v{v}, v{t}")
    allred(20, 21, "max")
    e(f"v_mul_f32 v20, s{sSC}, v20")
    for k in range(16): e(f"v_fma_f32 v{KD+k}, v{KD+k}, s{sSC}, -v20")
    for k in range(16): e(f"v_exp_f32 v{KD+k}, v{KD+k}")
    e("s_nop 0")
    for k in range(8): e(f"v_cvt_pk_bf16_f32 v{24+k}, v{KD+2*k}, v{KD+2*k+1}")
    e(f"ds_write_b128 v{vB}, {q(24)} offset:{PLDS}\nds_write_b128 v{vB}, {q(28)} offset:{PLDS+1024}")
    for st in (8, 4, 2, 1):
        for k in range(st): e(f"v_add_f32 v{KD+k}, v{KD+k}, v{KD+st+k}")
    e(f"v_mov_b32 v21, v{KD}")
    allred(21, 22, "add")
    e(f"v_lshlrev_b32 v2, 3, v1\ns_lshl_b32 s{sTMP}, s{sI}, 6\nv_add_u32 v2, s{sTMP}, v2")
    e("s_mov_b64 exec, 0xff")
    e(f"ds_write_b64 v2, v[20:21] offset:{STLDS}")
    flag_add(F_P, vZ, vONE)
    ts(4)
    e(f"s_add_u32 s{sB}, s{sI}, 4")
    e("s_branch L_G")

    VD, ACC, TV, PO, G = 4, 68, 100, 108, 122
    e("L_V:")
    e(f"s_setprio {prio[2]}")
    e(f"v_lshlrev_b32 v{vA}, 4, v1")
    kv_base()
    e(f"v_mov_b32 v{vZ}, 0\nv_mov_b32 v{vONE}, 1\nv_mov_b32 v{vM}, 0xff\ns_lshl_b32 s{sTMP}, s{sI}, 2\nv_mov_b32 v2, s{sTMP}")
    e("s_waitcnt lgkmcnt(0)")
    srd(SRD_A, sV, 32 << 20); srd(SRD_WS, sWS, WS_BYTES)
    epoch_load()
    e("s_barrier")
    if chain: spin(GO_V, 1, 2, 121, sleep=1)
    else: spin(GO_V, 4, vZ, 121, sleep=1)
    loads = []
    for k in range(16):
        pre = f"s_add_u32 s{sOFF}, s{sOFF}, 4096" if (k and not k & 3) else ""
        loads.append((pre, f"buffer_load_dwordx4 {q(VD + 4*k)}, v{vA}, {A}, s{sOFF} offen offset:{(k&3)*1024}{pf}"))
    stream(loads, win[2])
    e(f"s_waitcnt vmcnt({ho})")
    if chain: e(f"ds_write_b32 v2, v{vONE} offset:{GO_WO}")
    else: flag_add(GO_WO, vZ, vONE, wait=False)
    ts(1)
    if cut:
        e("s_waitcnt vmcnt(0)"); ts(3); dbg_out(); e("s_endpgm")
    e(f"s_lshl_b32 s{sTMP}, s{sI}, 11\nv_add_u32 v{vB}, s{sTMP}, v{vA}")
    e(f"v_lshrrev_b32 v2, 5, v1\nv_lshlrev_b32 v3, 3, v2\ns_lshl_b32 s{sTMP}, s{sI}, 4\nv_add_u32 v3, s{sTMP}, v3")
    tag_setup()
    spin(F_P, 4, vZ, 121)
    ts(2)
    e(f"ds_read_b128 {q(PO)}, v{vB} offset:{PLDS}\nds_read_b128 {q(PO+4)}, v{vB} offset:{PLDS+1024}")
    for w in range(4): e(f"ds_read_b64 v[{TV+2*w}:{TV+2*w+1}], v3 offset:{STLDS + 64*w}")
    e(f"v_lshlrev_b32 v2, 6, v2\nv_and_b32 v126, 3, v1\nv_lshl_add_u32 v2, v126, 4, v2")
    e(f"s_lshl_b32 s{sOFF}, s{sGRP}, 14\ns_lshl_b32 s{sTMP}, s{sI}, 12\ns_add_u32 s{sOFF}, s{sOFF}, s{sTMP}")
    e(f"s_lshl_b32 s{sTMP}, s{sIDX}, 7\ns_add_u32 s{sOFF}, s{sOFF}, s{sTMP}\ns_add_u32 s{sOFF}, s{sOFF}, {S_BASE}")
    e("s_waitcnt lgkmcnt(0)")
    e(f"v_max3_f32 v126, v{TV}, v{TV+2}, v{TV+4}\nv_max_f32 v126, v126, v{TV+6}")
    for w in range(4): e(f"v_sub_f32 v{G+w}, v{TV+2*w}, v126")
    for w in range(4): e(f"v_exp_f32 v{G+w}, v{G+w}")
    e(f"s_nop 0\nv_mul_f32 v127, v{G}, v{TV+1}")
    for w in range(1, 4): e(f"v_fmac_f32 v127, v{G+w}, v{TV+2*w+1}")
    e(f"v_log_f32 v{TV}, v127\nv_rcp_f32 v127, v127\nv_mov_b32 v{TV+1}, s{sT}\nv_add_f32 v{TV}, v{TV}, v126")
    for w in range(4): e(f"v_mul_f32 v{G+w}, v{G+w}, v127")
    e(f"v_mov_b32 v{TV+2}, v{TV}\nv_mov_b32 v{TV+3}, s{sT}")
    e("s_mov_b32 exec_lo, 15\ns_mov_b32 exec_hi, 15")
    publish(TV, 2)
    e("s_mov_b64 exec, -1")
    def tail_addrs():
        e(f"v_lshrrev_b32 v2, 4, v1\nv_lshlrev_b32 v2, 3, v2\nv_and_b32 v3, 7, v1\nv_add_u32 v2, v2, v3\nv_lshlrev_b32 v2, 4, v2")
        e(f"s_mul_i32 s{sTMP}, s{sI}, 4224\nv_add_u32 v{vB}, s{sTMP}, v2")
        e(f"v_mul_u32_u24 v3, 528, v3\nv_bfe_u32 v2, v1, 3, 2\nv_lshl_add_u32 v3, v2, 7, v3\nv_lshrrev_b32 v2, 5, v1\nv_lshl_add_u32 v3, v2, 4, v3")
        e(f"s_lshl_b32 s{sTMP}, s{sI}, 5\nv_add_u32 v3, s{sTMP}, v3")
    tail_addrs()
    e(f"s_lshl_b32 s{sOFF}, s{sGRP}, 2\ns_add_u32 s{sOFF}, s{sOFF}, s{sI}\ns_lshl_b32 s{sOFF}, s{sOFF}, 5\ns_add_u32 s{sOFF}, s{sOFF}, s{sIDX}")
    e(f"s_lshl_b32 s{sOFF}, s{sOFF}, 10\ns_add_u32 s{sOFF}, s{sOFF}, {O_BASE}")
    nst = 2 if dual else 1
    if ho > 8: e(f"s_waitcnt vmcnt({8 + nst})")
    pingpong(VD, PO, ACC, TV, True)
    for ip in range(4):
        e(f"s_waitcnt vmcnt({6 + nst - 2*ip})")
        if ip < 3:
            for j in range(8): perm(VD + 4*j + ip, VD + 32, j, ip)
    ts(3)
    perm(VD + 3, VD + 32, 0, 3); perm(VD + 7, VD + 32, 1, 3)
    for j in range(8):
        if j < 6: perm(VD + 4*(j+2) + 3, VD + 32, j + 2, 3)
        elif j == 6: e("s_nop 0")
        mfma(ACC + 4*j, VD + 4*j, PO + 4, ACC + 4*j)
    part_write(ACC, vB, "0x00ff00ff", "0x00ff00ff")
    flag_add(F_O1, vZ, vONE)
    spin(F_O1, 4, vZ, 121)
    for w in range(4): e(f"ds_read_b128 {q(VD + 4*w)}, v3 offset:{PART + w*4224}")
    e("s_waitcnt lgkmcnt(0)")
    for r in range(4): e(f"v_mul_f32 v{VD+r}, v{G}, v{VD+r}")
    for w in range(1, 4):
        for r in range(4): e(f"v_fmac_f32 v{VD+r}, v{G+w}, v{VD+4*w+r}")
    tag_insert(VD, vM)
    publish(VD, vA)
    flag_add(F_O2, vZ, vONE, wait=False)
    ts(4)
    dbg_out()
    e("s_endpgm")

    WD, T0, OO, Z = 4, 68, 100, 108
    e("L_WO:")
    e(f"s_setprio {prio[3]}")
    e(f"v_mov_b32 v{vZ}, 0\nv_lshlrev_b32 v2, 2, v1")
    e("s_mov_b64 exec, 0xffff")
    e(f"ds_write_b32 v2, v{vZ}")
    e("s_mov_b64 exec, -1")
    if warm:
        e(f"s_getpc_b64 s[54:55]\nL_pc:\ns_sub_u32 s54, s54, L_pc-{KN}\ns_subb_u32 s55, s55, 0")
        e(f"s_lshl_b32 s{sTMP}, s{sI}, 5\ns_add_u32 s{sTMP}, s{sTMP}, s{sIDX}\ns_lshl_b32 s56, s{sTMP}, 7\ns_min_u32 s56, s56, L_end-{KN}")
        e("s_load_dword s57, s[54:55], s56")
    e(f"v_lshrrev_b32 v2, 4, v1\nv_lshlrev_b32 v{vA}, 12, v2\nv_and_b32 v3, 15, v1\nv_lshl_add_u32 v{vA}, v3, 4, v{vA}")
    e(f"s_lshr_b32 s{sTMP2}, s{sIDX}, 3\ns_lshl_b32 s{sB}, s{sHKV}, 2\ns_add_u32 s{sB}, s{sB}, s{sTMP2}")
    e(f"s_lshl_b32 s{sOFF}, s{sB}, 2\ns_add_u32 s{sOFF}, s{sOFF}, s{sI}\ns_lshl_b32 s{sOFF}, s{sOFF}, 17")
    e(f"s_and_b32 s{sSC}, s{sIDX}, 7\ns_lshl_b32 s{sTMP}, s{sSC}, 8\ns_add_u32 s{sOFF}, s{sOFF}, s{sTMP}")
    e(f"v_and_b32 v3, 7, v1\nv_mul_u32_u24 v{vONE}, 528, v3\nv_lshl_add_u32 v{vONE}, v2, 4, v{vONE}\ns_lshl_b32 s{sTMP}, s{sI}, 7\nv_add_u32 v{vONE}, s{sTMP}, v{vONE}")
    tail_addrs()
    e(f"s_lshl_b32 s{sTMP}, s{sI}, 2\nv_mov_b32 v2, s{sTMP}\nv_mov_b32 v{vM}, 0xff")
    e("s_waitcnt lgkmcnt(0)")
    srd(SRD_A, sWO, 8 << 20); srd(SRD_WS, sWS, WS_BYTES); srd(SRD_B, sOUT, 32768)
    epoch_load()
    e("s_barrier")
    if chain: spin(GO_WO, 1, 2, 121, sleep=1)
    else: spin(GO_WO, 4, vZ, 121, sleep=1)
    e(f"s_add_u32 s{sTMP}, s{sOFF}, s{sWO}\ns_bfe_u32 s{sTMP}, s{sTMP}, 0x20008\ns_cmp_eq_u32 s{sTMP}, 1")
    loads = []; cur = 0
    for blk in range(2):
        for jj in range(8):
            row = 32*blk + 8*(jj & 3) + (jj >> 2)
            d = (row - cur) * 2048; cur = row
            pre = "" if d == 0 else (f"s_add_u32 s{sOFF}, s{sOFF}, {d}" if d > 0 else f"s_sub_u32 s{sOFF}, s{sOFF}, {-d}")
            loads.append((pre, f"buffer_load_dwordx4 {q(WD + 32*blk + 4*jj)}, v{vA}, {A}, s{sOFF} offen{pf}"))
    stream2(loads, win[3], slow[1])
    ts(1)
    tag_setup()
    e(f"s_lshl_b32 s{sOFF}, s{sBR}, 3\ns_add_u32 s{sOFF}, s{sOFF}, s{sSC}\ns_lshl_b32 s{sOFF}, s{sOFF}, 16\ns_add_u32 s{sOFF}, s{sOFF}, {R_BASE}")
    e(f"s_lshl_b32 s{sTMP}, s{sB}, 12\ns_add_u32 s{sTMP2}, s{sOFF}, s{sTMP}")
    e(f"s_lshl_b32 s{sTMP}, s{sI}, 14\ns_add_u32 s{sOFF}, s{sOFF}, s{sTMP}\ns_lshl_b32 s{sTMP}, s{sB}, 8\ns_add_u32 s{sOFF}, s{sOFF}, s{sTMP}")
    e(f"v_bfe_u32 v122, v1, 3, 1\nv_lshlrev_b32 v122, 6, v122\nv_lshrrev_b32 v2, 4, v1\nv_lshl_add_u32 v122, v2, 4, v122\nv_and_b32 v2, 7, v1\nv_lshl_add_u32 v122, v2, 1, v122")
    e(f"s_lshr_b32 s{sOFF2}, s{sB}, 1\ns_lshl_b32 s{sOFF2}, s{sOFF2}, 12\ns_lshl_b32 s{sTMP}, s{sBR}, 11\ns_add_u32 s{sOFF2}, s{sOFF2}, s{sTMP}")
    e(f"s_lshl_b32 s{sTMP}, s{sSC}, 8\ns_add_u32 s{sOFF2}, s{sOFF2}, s{sTMP}\ns_and_b32 s{sTMP}, s{sB}, 1\ns_lshl_b32 s{sTMP}, s{sTMP}, 7\ns_add_u32 s{sOFF2}, s{sOFF2}, s{sTMP}")
    e(f"v_lshlrev_b32 v2, 4, v1\ns_mov_b32 s{sCNT}, 0x4000")
    for blk in range(2):
        for ip in range(4):
            e(f"s_waitcnt vmcnt({14 - 8*blk - 2*ip})")
            for j in range(8): perm((T0 if blk == 0 else WD) + 4*j + ip, WD + 32*blk, j, ip)
    ts(2)
    if cut:
        dbg_out(); e("s_endpgm")
    e("s_barrier")
    ts(3)
    e(f"ds_read_b128 {q(OO)}, v{vONE} offset:{OLDS}\nds_read_b128 {q(OO+4)}, v{vONE} offset:{OLDS+64}")
    AC = WD + 32
    e("s_waitcnt lgkmcnt(0)")
    for j in range(8): mfma(AC + 4*j, T0 + 4*j, OO, None)
    for j in range(8): mfma(AC + 4*j, WD + 4*j, OO + 4, AC + 4*j)
    part_write(AC, vB, "0x00ff00ff", "0x00ff00ff")
    e("s_waitcnt lgkmcnt(0)\ns_barrier")
    for w in range(4): e(f"ds_read_b128 {q(T0 + 4*w)}, v3 offset:{PART + w*4224}")
    e("s_waitcnt lgkmcnt(0)")
    for st in (8, 4):
        for k in range(st): e(f"v_add_f32 v{T0+k}, v{T0+k}, v{T0+st+k}")
    tag_insert(T0, vM)
    e(f"buffer_store_dwordx4 {q(T0)}, v{vA}, {WS}, s{sOFF} offen sc1")
    ts(4)
    e(f"s_cmp_lg_u32 s{sI}, 0\ns_cbranch_scc1 L_fin")
    if rdelay: e(f"s_sleep {rdelay}")
    e("s_branch L_rpoll")
    e("L_rretry:")
    e(f"s_sub_u32 s{sCNT}, s{sCNT}, 1\ns_cbranch_scc1 L_end")
    e("L_rpoll:")
    for k in range(4): e(f"buffer_load_dwordx4 {q(12+4*k)}, v2, {WS}, s{sTMP2} offen offset:{1024*k} sc1")
    e("s_waitcnt vmcnt(0)")
    tag_check([12, 16, 20, 24], 28, "L_rretry")
    for st in (8, 4):
        for k in range(st): e(f"v_add_f32 v{12+k}, v{12+k}, v{12+st+k}")
    e("s_nop 1\nv_permlane32_swap_b32 v12, v14\nv_permlane32_swap_b32 v13, v15")
    e("v_add_f32 v12, v12, v14\nv_add_f32 v13, v13, v15\ns_nop 1\nv_permlane16_swap_b32 v12, v13\nv_add_f32 v12, v12, v13")
    e("v_cvt_pk_bf16_f32 v12, v12, v12")
    e(f"buffer_store_short v12, v122, {B}, s{sOFF2} offen")
    if hold:
        e(f"L_hold:\ns_memrealtime s[56:57]\ns_waitcnt lgkmcnt(0)\ns_sub_u32 s56, s56, s58\ns_cmp_lt_u32 s56, {hold}\ns_cbranch_scc1 L_hold")
    ts(5); cnt(8)
    e(f"s_or_b32 s{sTMP}, s{sHKV}, s{sIDX}\ns_cmp_lg_u32 s{sTMP}, 0\ns_cbranch_scc1 L_fin")
    e(f"s_lshl_b32 s{sTMP}, s{sBR}, 8\nv_mov_b32 v4, s{sT}\nv_mov_b32 v5, 0\ns_mov_b64 exec, 1")
    e(f"buffer_store_dword v4, v5, {WS}, s{sTMP} offen sc1")
    e("L_fin:")
    if dbg: e("s_nop 1")
    dbg_out()
    e("L_end:\ns_endpgm")
    e(f""".section .rodata,"a"
.p2align 6
.amdhsa_kernel {KN}
  .amdhsa_next_free_vgpr 128
  .amdhsa_next_free_sgpr 96
  .amdhsa_accum_offset 128
  .amdhsa_group_segment_fixed_size 0
  .amdhsa_kernarg_size 104
  .amdhsa_user_sgpr_count 2
  .amdhsa_user_sgpr_kernarg_segment_ptr 1
  .amdhsa_system_sgpr_workgroup_id_x 1
.end_amdhsa_kernel""")
    return "\n".join(o) + "\n"

if __name__ == "__main__":
    kw = eval("dict(" + (sys.argv[2] if len(sys.argv) > 2 else "") + ")")
    open(sys.argv[1], "w").write(gen(**kw))
```

```python
import sys
KN = "concat_heads__sliding_block_cached__sliding_block_cached__decode_kernel"
REF = "concat_heads__sliding_block_cached__sliding_block_cached__decode.s.ref"

Q_BASE = 0x10000
S_BASE = 0xA0000
O_BASE = 0x100000
R_BASE = 0x200000
ALT = 0x400000
DBG_BASE = 0x800000
WS_BYTES = 0x1000000
F_Q1, F_Q, F_P, F_O1, F_O2 = 0, 4, 8, 12, 16
GO_V, GO_WO = 32, 48
QLDS = 64
PLDS = 2304
STLDS = 10496
OLDS = 10752
PART = 15360
LDS_BYTES = PART + 4 * 4224
sGRP, sIDX, sBR, sHKV, sI, sROLE = 3, 4, 5, 6, 7, 8
sX, sK, sV, sWQ, sWO, sOUT, sWS = 12, 14, 16, 18, 20, 22, 24
SRD_A, SRD_WS, SRD_B = 28, 32, 36
sT = 40
sSELLO, sSELHI = 44, 45
sOFF, sTMP, sTMP2, sCNT, sB, sSC, sOFF2, sH = 46, 47, 48, 49, 50, 51, 52, 53
TS0 = 60

def gen(pol="nt", dbg=False, prio=(2, 2, 3, 1), gprio=0, qsleep=2, osleep=0, win=(7, 7, 7, 7), slow=(16, 16), ho=4, cut=0, dual=True, na=8, warm=True, rdelay=0, xperm=False, chain=False, hold=0, holdmode=0):
    o = []
    def e(s): o.append(s)
    pf = (" " + pol) if pol else ""
    dpp = "row_mask:0xf bank_mask:0xf"
    def ts(k):
        if dbg: e(f"s_memrealtime s[{TS0+2*k}:{TS0+2*k+1}]")
    def cnt(k):
        if dbg: e(f"s_sub_u32 s{TS0+2*k}, 0x4000, s{sCNT}")
    def srd(d, base, nbytes):
        e(f"s_mov_b32 s{d}, s{base}\ns_mov_b32 s{d+1}, s{base+1}\ns_mov_b32 s{d+2}, {nbytes}\ns_mov_b32 s{d+3}, 0x20000")
    def q(a): return f"v[{a}:{a+3}]"
    uid = [0]
    def lab(n):
        uid[0] += 1; return f"L_{n}_{uid[0]}"
    def flag_add(off, va, vone, wait=True):
        if wait: e("s_waitcnt lgkmcnt(0)")
        e("s_mov_b64 exec, 1")
        e(f"ds_add_u32 v{va}, v{vone} offset:{off}")
        e("s_mov_b64 exec, -1")
    def spin(off, n, va, vt, sleep=0):
        l = lab("spin"); d = lab("spun")
        e(f"s_mov_b32 s{sCNT}, 0x80000")
        e(f"{l}:")
        e(f"ds_read_b32 v{vt}, v{va} offset:{off}")
        e("s_waitcnt lgkmcnt(0)")
        e(f"v_readfirstlane_b32 s{sTMP}, v{vt}")
        e(f"s_cmp_ge_u32 s{sTMP}, {n}")
        e(f"s_cbranch_scc1 {d}")
        if sleep: e(f"s_sleep {sleep}")
        e(f"s_sub_u32 s{sCNT}, s{sCNT}, 1")
        e(f"s_cbranch_scc0 {l}")
        e("s_endpgm")
        e(f"{d}:")
    def tag_setup():
        e(f"s_add_u32 s{sT}, s{sT}, 0x9E3779B1")
        e(f"s_lshr_b32 s{sT+1}, s{sT}, 8\ns_lshr_b32 s{sT+2}, s{sT}, 16\ns_lshr_b32 s{sT+3}, s{sT}, 24")
    def epoch_load():
        e(f"s_lshl_b32 s9, s{sBR}, 8")
        e(f"s_load_dword s{sT}, s[{sWS}:{sWS+1}], s9")
    def tag_insert(v, vmask):
        for r in range(4): e(f"v_bfi_b32 v{v+r}, v{vmask}, s{sT+r}, v{v+r}")
    def tag_check(regs, vacc, retry, first=True):
        for v in regs:
            for r in range(4):
                if first: e(f"v_xor_b32 v{vacc}, s{sT+r}, v{v+r}"); first = False
                else: e(f"v_bitop3_b32 v{vacc}, v{vacc}, v{v+r}, s{sT+r} bitop3:0xf6")
        e(f"v_and_b32 v{vacc}, 0xff, v{vacc}")
        e(f"v_cmp_ne_u32 vcc, 0, v{vacc}")
        e(f"s_cbranch_vccnz {retry}")
    def perm(dst, src, j, ip):
        u, p = j >> 1, j & 1
        e(f"v_perm_b32 v{dst}, v{src + (2*ip+1)*4 + u}, v{src + (2*ip)*4 + u}, s{sSELHI if p else sSELLO}")
    def mfma(d, a, b, c):
        e(f"v_mfma_f32_16x16x32_bf16 {q(d)}, {q(a)}, {q(b)}, {q(c) if c is not None else 0}")
    def pingpong(src, bop, acc, T, first):
        for ip in range(4): perm(T + ip, src, 0, ip)
        for j in range(8):
            if j < 7:
                for ip in range(4): perm(T + 4*((j+1) & 1) + ip, src, j + 1, ip)
            else:
                e("s_nop 0")
            mfma(acc + 4*j, T + 4*(j & 1), bop, None if first else acc + 4*j)
    def part_write(acc, va, lo, hi):
        e(f"s_mov_b32 exec_lo, {lo}\ns_mov_b32 exec_hi, {hi}\ns_nop 0")
        for j in range(8): e(f"ds_write_b128 v{va}, {q(acc+4*j)} offset:{PART + j*528}")
        e("s_mov_b64 exec, -1")
    def stream(loads, w):
        for n, (pre, ld) in enumerate(loads):
            if pre: e(pre)
            if n >= w: e(f"s_waitcnt vmcnt({w-1})")
            e(ld)
    def stream2(loads, w, wslow):
        if w == wslow: return stream(loads, w)
        a, b = lab("wide"), lab("join")
        e(f"s_cbranch_scc1 {a}"); stream(loads, w); e(f"s_branch {b}\n{a}:"); stream(loads, wslow); e(f"{b}:")
    def dbg_out():
        if not dbg: return
        e("s_waitcnt lgkmcnt(0)\ns_mov_b64 exec, 1")
        e(f"s_lshl_b32 s{sTMP}, s{sROLE}, 2\ns_add_u32 s{sTMP}, s{sTMP}, s{sI}\ns_lshl_b32 s{sTMP2}, s2, 4\ns_add_u32 s{sTMP}, s{sTMP}, s{sTMP2}")
        e(f"s_lshl_b32 s{sTMP}, s{sTMP}, 6\ns_add_u32 s{sTMP}, s{sTMP}, {DBG_BASE}")
        for k in range(12): e(f"v_mov_b32 v{4+k}, s{TS0+2*k}")
        e(f"s_getreg_b32 s{sTMP2}, hwreg(HW_REG_XCC_ID)\nv_mov_b32 v16, s{sTMP2}\nv_mov_b32 v17, s{sCNT}\nv_mov_b32 v18, 0\nv_mov_b32 v19, 0\nv_mov_b32 v2, 0")
        for k in range(4): e(f"buffer_store_dwordx4 {q(4+4*k)}, v2, s[{SRD_WS}:{SRD_WS+3}], s{sTMP} offen offset:{16*k}")
        e("s_mov_b64 exec, -1")
    def publish(v, va):
        WS = f"s[{SRD_WS}:{SRD_WS+3}]"
        if dual:
            e(f"buffer_store_dwordx4 {q(v)}, v{va}, {WS}, s{sOFF} offen")
            e(f"s_add_u32 s{sOFF}, s{sOFF}, {ALT}")
        e(f"buffer_store_dwordx4 {q(v)}, v{va}, {WS}, s{sOFF} offen sc1")
    def retry(offs, sleep):
        e(f"s_sub_u32 s{sCNT}, s{sCNT}, 1\ns_cbranch_scc1 L_end")
        if dual:
            e(f"s_cmp_lt_u32 s{sCNT}, {0x4000 - na}\ns_cselect_b32 s{sTMP}, {ALT}, 0")
            for r in offs: e(f"s_xor_b32 s{r}, s{r}, s{sTMP}")
        if sleep: e(f"s_sleep {sleep}")
    A = f"s[{SRD_A}:{SRD_A+3}]"; WS = f"s[{SRD_WS}:{SRD_WS+3}]"; B = f"s[{SRD_B}:{SRD_B+3}]"

    hdr = [l for l in open(REF).read().split("\n") if l.startswith(";") and "@launch" not in l]
    o += hdr
    e(f"; @launch grid=(256,1,1) block=(1024,1,1) lds={LDS_BYTES}")
    e('.amdgcn_target "amdgcn-amd-amdhsa--gfx950"\n.text')
    e(f".globl {KN}\n.p2align 8\n.type {KN},@function\n{KN}:")
    if dbg:
        for k in range(1, 12): e(f"s_mov_b32 s{TS0+2*k}, 0")
    ts(0)
    if hold: e("s_memrealtime s[58:59]")
    e("s_cmp_ge_u32 s2, 256\ns_cbranch_scc1 L_end")
    if xperm: e("s_and_b32 s3, s2, 7\ns_bfe_u32 s4, s2, 0x30003\ns_andn2_b32 s2, s2, 63\ns_lshl_b32 s3, s3, 3\ns_or_b32 s2, s2, s3\ns_or_b32 s2, s2, s4")
    e(f"s_and_b32 s{sBR}, s2, 1\ns_mul_i32 s9, s{sBR}, 40\ns_add_u32 s10, s0, s9\ns_addc_u32 s11, s1, 0")
    e(f"s_load_dwordx8 s[12:19], s[10:11], 0\ns_load_dwordx2 s[20:21], s[10:11], 32")
    e(f"s_load_dwordx2 s[22:23], s[0:1], 80\ns_load_dwordx2 s[24:25], s[0:1], 96")
    e("v_lshrrev_b32 v2, 6, v0\nv_and_b32 v1, 63, v0")
    e(f"v_readfirstlane_b32 s{sROLE}, v2")
    e(f"s_and_b32 s{sGRP}, s2, 7\ns_lshr_b32 s{sIDX}, s2, 3\ns_lshr_b32 s{sHKV}, s{sGRP}, 1")
    e(f"s_mov_b32 s{sSELLO}, 0x05040100\ns_mov_b32 s{sSELHI}, 0x07060302")
    e(f"s_and_b32 s{sI}, s{sROLE}, 3\ns_lshr_b32 s{sROLE}, s{sROLE}, 2")
    e(f"s_cmp_eq_u32 s{sROLE}, 1\ns_cbranch_scc1 L_K\ns_cmp_eq_u32 s{sROLE}, 2\ns_cbranch_scc1 L_V\ns_cmp_eq_u32 s{sROLE}, 3\ns_cbranch_scc1 L_WO")

    XO, W, D, T = 4, 12, 76, 108
    vZ, vONE, vA, vM, vB = 116, 117, 118, 119, 120
    e(f"s_setprio {prio[0]}")
    e("v_lshrrev_b32 v2, 3, v1\nv_and_b32 v3, 7, v1")
    e(f"v_lshlrev_b32 v{vA}, 16, v2\nv_lshl_add_u32 v{vA}, v3, 4, v{vA}")
    e(f"v_lshlrev_b32 v{vB}, 11, v3\nv_lshl_add_u32 v{vB}, v2, 4, v{vB}")
    e(f"s_and_b32 s{sTMP}, s{sIDX}, 1\ns_lshl_b32 s{sTMP}, s{sTMP}, 2\ns_add_u32 s{sTMP}, s{sTMP}, s{sI}")
    e(f"s_lshl_b32 s{sTMP2}, s{sTMP}, 8")
    e(f"s_lshl_b32 s{sOFF}, s{sTMP}, 20\ns_lshl_b32 s{sTMP}, s{sHKV}, 11\ns_add_u32 s{sOFF}, s{sOFF}, s{sTMP}")
    e(f"s_lshr_b32 s{sTMP}, s{sIDX}, 1\ns_lshl_b32 s{sTMP}, s{sTMP}, 7\ns_add_u32 s{sOFF}, s{sOFF}, s{sTMP}")
    e("s_waitcnt lgkmcnt(0)")
    srd(SRD_B, sX, 16384); srd(SRD_A, sWQ, 8 << 20)
    e(f"buffer_load_dwordx4 {q(XO)}, v{vB}, {B}, s{sTMP2} offen")
    e(f"buffer_load_dwordx4 {q(XO+4)}, v{vB}, {B}, s{sTMP2} offen offset:128")
    e(f"s_add_u32 s{sTMP}, s{sOFF}, s{sWQ}\ns_bfe_u32 s{sTMP}, s{sTMP}, 0x30007\ns_cmp_eq_u32 s{sTMP}, 3")
    loads = []
    for blk in range(2):
        for jj in range(8):
            n = 8*blk + jj
            pre = "" if n == 0 else f"s_add_u32 s{sOFF}, s{sOFF}, {8192 if jj else 57*8192}"
            loads.append((pre, f"buffer_load_dwordx4 {q(W + 4*n)}, v{vA}, {A}, s{sOFF} offen{pf}"))
    stream2(loads, win[0], slow[0])
    epoch_load()
    e(f"s_waitcnt vmcnt({ho})")
    e("s_barrier")
    ts(1)
    srd(SRD_WS, sWS, WS_BYTES)
    e(f"v_mov_b32 v{vZ}, 0\nv_mov_b32 v{vONE}, 1\nv_mov_b32 v{vM}, 0xff")
    e(f"v_lshrrev_b32 v2, 4, v1\nv_lshlrev_b32 v2, 3, v2\nv_add_u32 v2, v2, v3\nv_lshlrev_b32 v2, 4, v2")
    e(f"s_mul_i32 s{sTMP}, s{sI}, 4224\nv_add_u32 v{vA}, s{sTMP}, v2")
    if cut == 1:
        e("s_waitcnt vmcnt(0)"); ts(2); dbg_out(); e("s_endpgm")
    if ho > 8: e("s_waitcnt vmcnt(8)")
    pingpong(W, XO, D, T, True)
    e("s_waitcnt vmcnt(0)")
    ts(2)
    pingpong(W + 32, XO + 4, D, T, False)
    part_write(D, vA, "0x00ff00ff", "0xff00ff00")
    e(f"v_mul_u32_u24 v{vA}, 528, v3\nv_bfe_u32 v2, v1, 3, 1\nv_lshl_add_u32 v{vA}, v2, 7, v{vA}")
    e(f"v_bfe_u32 v2, v1, 4, 1\nv_lshl_add_u32 v{vA}, v2, 4, v{vA}\ns_lshl_b32 s{sTMP}, s{sI}, 5\nv_add_u32 v{vA}, s{sTMP}, v{vA}")
    flag_add(F_Q1, vZ, vONE)
    tag_setup()
    spin(F_Q1, 4, vZ, 2)
    e("s_mov_b32 exec_hi, 0")
    for w in range(4):
        for sub in range(2):
            e(f"ds_read_b128 {q(W + 8*w + 4*sub)}, v{vA} offset:{PART + w*4224 + sub*256}")
    e(f"v_lshlrev_b32 v2, 4, v1")
    e(f"s_lshl_b32 s{sOFF}, s{sGRP}, 5\ns_add_u32 s{sOFF}, s{sOFF}, s{sIDX}\ns_lshl_b32 s{sOFF}, s{sOFF}, 11\ns_lshl_b32 s{sTMP}, s{sI}, 9\ns_add_u32 s{sOFF}, s{sOFF}, s{sTMP}\ns_add_u32 s{sOFF}, s{sOFF}, {Q_BASE}")
    e("s_waitcnt lgkmcnt(0)")
    for st in (16, 8, 4):
        for k in range(st): e(f"v_add_f32 v{W+k}, v{W+k}, v{W+st+k}")
    tag_insert(W, vM)
    publish(W, 2)
    e("s_mov_b64 exec, -1")
    ts(3)
    e(f"v_lshrrev_b32 v2, 4, v1\nv_lshlrev_b32 v2, 12, v2\nv_and_b32 v{vB}, 15, v1\nv_lshl_add_u32 v2, v{vB}, 4, v2")
    e(f"s_lshl_b32 s{sOFF}, s{sGRP}, 16\ns_lshl_b32 s{sTMP}, s{sI}, 14\ns_add_u32 s{sOFF}, s{sOFF}, s{sTMP}")
    e(f"s_lshr_b32 s{sTMP}, s{sIDX}, 2\ns_lshl_b32 s{sTMP}, s{sTMP}, 8\ns_add_u32 s{sOFF}, s{sOFF}, s{sTMP}\ns_add_u32 s{sOFF}, s{sOFF}, {Q_BASE}")
    e(f"v_lshrrev_b32 v{vA}, 5, v1\nv_mul_u32_u24 v{vA}, 272, v{vA}\nv_bfe_u32 v{vB}, v1, 3, 2\nv_lshl_add_u32 v{vA}, v{vB}, 6, v{vA}")
    e(f"v_lshl_add_u32 v{vA}, v3, 1, v{vA}\ns_mul_i32 s{sTMP}, s{sI}, 544\nv_add_u32 v{vA}, s{sTMP}, v{vA}")
    e(f"s_mov_b32 s{sCNT}, 0x4000")
    e("s_branch L_qpoll")
    e("L_qretry:")
    retry([sOFF], qsleep)
    e("L_qpoll:")
    e(f"buffer_load_dwordx4 {q(20)}, v2, {WS}, s{sOFF} offen sc1")
    e(f"buffer_load_dwordx4 {q(24)}, v2, {WS}, s{sOFF} offen offset:2048 sc1")
    e("s_waitcnt vmcnt(0)")
    tag_check([20, 24], 28, "L_qretry")
    for r in range(4): e(f"v_add_f32 v{20+r}, v{20+r}, v{24+r}")
    e("v_cvt_pk_bf16_f32 v20, v20, v21\nv_cvt_pk_bf16_f32 v22, v22, v23")
    e(f"ds_write_b16 v{vA}, v20 offset:{QLDS}\nds_write_b16_d16_hi v{vA}, v20 offset:{QLDS+16}")
    e(f"ds_write_b16 v{vA}, v22 offset:{QLDS+32}\nds_write_b16_d16_hi v{vA}, v22 offset:{QLDS+48}")
    flag_add(F_Q, vZ, vONE)
    ts(4); cnt(8)
    e(f"s_mov_b32 s{sB}, s{sI}")

    e("L_G:")
    e(f"s_setprio {gprio}")
    e(f"s_lshr_b32 s{sH}, s{sIDX}, 3")
    e(f"v_lshrrev_b32 v2, 5, v1\nv_lshlrev_b32 v2, 6, v2\nv_and_b32 v3, 3, v1\nv_lshl_add_u32 v3, v3, 7, v2")
    e(f"s_lshl_b32 s{sOFF}, s{sGRP}, 2\ns_add_u32 s{sOFF}, s{sOFF}, s{sH}\ns_lshl_b32 s{sOFF}, s{sOFF}, 3\ns_add_u32 s{sOFF}, s{sOFF}, s{sB}")
    e(f"s_lshl_b32 s{sOFF2}, s{sOFF}, 9\ns_add_u32 s{sOFF2}, s{sOFF2}, {S_BASE}")
    e(f"s_lshl_b32 s{sOFF}, s{sOFF}, 12\ns_add_u32 s{sOFF}, s{sOFF}, {O_BASE}")
    e(f"v_lshlrev_b32 v2, 4, v1\nv_lshlrev_b32 v30, 3, v1\ns_mul_i32 s{sTMP}, s{sB}, 528\nv_add_u32 v30, s{sTMP}, v30")
    spin(F_O2, 4, vZ, 31, sleep=1)
    ts(5)
    e(f"s_mov_b32 s{sCNT}, 0x4000")
    e("s_branch L_opoll")
    e("L_oretry:")
    retry([sOFF, sOFF2], osleep)
    e("L_opoll:")
    e(f"buffer_load_dwordx2 v[4:5], v3, {WS}, s{sOFF2} offen sc1")
    for k in range(4): e(f"buffer_load_dwordx4 {q(12+4*k)}, v2, {WS}, s{sOFF} offen offset:{1024*k} sc1")
    e("s_waitcnt vmcnt(4)")
    e(f"v_max_f32_dpp v6, v4, v4 quad_perm:[1,0,3,2] {dpp}\nv_xor_b32 v28, s{sT}, v5\nv_min_u32 v28, 1, v28")
    e(f"v_max_f32_dpp v6, v6, v6 quad_perm:[2,3,0,1] {dpp}")
    e("v_sub_f32 v6, v4, v6\nv_exp_f32 v6, v6\ns_nop 1")
    e(f"v_add_f32_dpp v7, v6, v6 quad_perm:[1,0,3,2] {dpp}\ns_nop 1")
    e(f"v_add_f32_dpp v7, v7, v7 quad_perm:[2,3,0,1] {dpp}")
    e("v_rcp_f32 v7, v7\ns_waitcnt vmcnt(0)\nv_mul_f32 v6, v6, v7")
    tag_check([12, 16, 20, 24], 28, "L_oretry", first=False)
    for r in range(4): e(f"v_mul_f32_dpp v{12+r}, v6, v{12+r} quad_perm:[0,0,0,0] {dpp}")
    for k in range(1, 4):
        for r in range(4): e(f"v_fmac_f32_dpp v{12+r}, v6, v{12+4*k+r} quad_perm:[{k},{k},{k},{k}] {dpp}")
    e("v_cvt_pk_bf16_f32 v12, v12, v13\nv_cvt_pk_bf16_f32 v13, v14, v15")
    e(f"ds_write_b64 v30, v[12:13] offset:{OLDS}")
    ts(6); cnt(10)
    e("s_waitcnt lgkmcnt(0)\ns_barrier")
    dbg_out()
    e("s_endpgm")

    KD, QO, S = 4, 68, 76
    e("L_K:")
    e(f"s_setprio {prio[1]}")
    e(f"v_bfe_u32 v2, v1, 1, 1\nv_lshlrev_b32 v{vA}, 10, v2\nv_bfe_u32 v2, v1, 2, 2\nv_lshl_add_u32 v{vA}, v2, 8, v{vA}")
    e(f"v_lshrrev_b32 v2, 4, v1\nv_lshl_add_u32 v{vA}, v2, 5, v{vA}\nv_and_b32 v2, 1, v1\nv_lshl_add_u32 v{vA}, v2, 4, v{vA}")
    def kv_base():
        e(f"s_lshr_b32 s{sOFF}, s{sIDX}, 2\ns_lshl_b32 s{sOFF}, s{sOFF}, 22\ns_lshl_b32 s{sTMP}, s{sHKV}, 20\ns_add_u32 s{sOFF}, s{sOFF}, s{sTMP}")
        e(f"s_and_b32 s{sTMP}, s{sIDX}, 3\ns_lshl_b32 s{sTMP}, s{sTMP}, 16\ns_add_u32 s{sOFF}, s{sOFF}, s{sTMP}")
        e(f"s_lshl_b32 s{sTMP}, s{sI}, 14\ns_add_u32 s{sOFF}, s{sOFF}, s{sTMP}\ns_add_u32 s{sOFF}, s{sOFF}, 0xC0000")
    kv_base()
    e(f"v_mov_b32 v{vZ}, 0\nv_mov_b32 v{vONE}, 1\ns_lshl_b32 s{sTMP}, s{sI}, 2\nv_mov_b32 v121, s{sTMP}")
    e("s_waitcnt lgkmcnt(0)")
    srd(SRD_A, sK, 32 << 20); srd(SRD_WS, sWS, WS_BYTES)
    epoch_load()
    e("s_barrier")
    loads = []
    for t in range(8):
        for hh in range(2):
            pre = f"s_add_u32 s{sOFF}, s{sOFF}, 4096" if (t and not t & 1 and not hh) else ""
            loads.append((pre, f"buffer_load_dwordx4 {q(KD + 8*t + 4*hh)}, v{vA}, {A}, s{sOFF} offen offset:{(t&1)*2048 + hh*128}{pf}"))
    stream(loads, win[1])
    e(f"s_waitcnt vmcnt({ho})")
    if chain: e(f"ds_write_b32 v121, v{vONE} offset:{GO_V}")
    else: flag_add(GO_V, vZ, vONE, wait=False)
    ts(1)
    e(f"v_and_b32 v2, 7, v1\nv_mul_u32_u24 v{vA}, 272, v2\nv_lshrrev_b32 v2, 3, v1\nv_lshl_add_u32 v{vA}, v2, 4, v{vA}")
    e(f"v_lshlrev_b32 v{vB}, 4, v1\ns_lshl_b32 s{sTMP}, s{sI}, 11\nv_add_u32 v{vB}, s{sTMP}, v{vB}")
    e(f"s_mov_b32 s{sSC}, 0x3e0293ee")
    e("s_waitcnt vmcnt(0) lgkmcnt(0)")
    ts(2)
    if cut:
        dbg_out(); e("s_endpgm")
    tag_setup()
    spin(F_Q, 4, vZ, 2, sleep=1)
    ts(3)
    e(f"ds_read_b128 {q(QO)}, v{vA} offset:{QLDS}\nds_read_b128 {q(QO+4)}, v{vA} offset:{QLDS+128}")
    e("s_waitcnt lgkmcnt(0)")
    for t in range(8): mfma(S + 4*t, KD + 8*t, QO, None)
    for t in range(8): mfma(S + 4*t, KD + 8*t + 4, QO + 4, S + 4*t)
    e("s_nop 1")
    for t in range(8):
        for u in range(2):
            e(f"v_add_f32_dpp v{KD + 2*t + u}, v{S + 4*t + 2*u + 1}, v{S + 4*t + 2*u} row_ror:8 {dpp}")
    e(f"v_max3_f32 v20, v{KD}, v{KD+1}, v{KD+2}")
    for k in range(3, 15, 2): e(f"v_max3_f32 v20, v20, v{KD+k}, v{KD+k+1}")
    e(f"v_max_f32 v20, v20, v{KD+15}")
    def allred(v, t, op):
        e(f"v_mov_b32 v{t}, v{v}\ns_nop 1\nv_permlane32_swap_b32 v{v}, v{t}\nv_{op}_f32 v{v}, v{v}, v{t}")
        e(f"v_mov_b32 v{t}, v{v}\ns_nop 1\nv_permlane16_swap_b32 v{v}, v{t}\nv_{op}_f32 v{v}, v{v}, v{t}")
    allred(20, 21, "max")
    e(f"v_mul_f32 v20, s{sSC}, v20")
    for k in range(16): e(f"v_fma_f32 v{KD+k}, v{KD+k}, s{sSC}, -v20")
    for k in range(16): e(f"v_exp_f32 v{KD+k}, v{KD+k}")
    e("s_nop 0")
    for k in range(8): e(f"v_cvt_pk_bf16_f32 v{24+k}, v{KD+2*k}, v{KD+2*k+1}")
    e(f"ds_write_b128 v{vB}, {q(24)} offset:{PLDS}\nds_write_b128 v{vB}, {q(28)} offset:{PLDS+1024}")
    for st in (8, 4, 2, 1):
        for k in range(st): e(f"v_add_f32 v{KD+k}, v{KD+k}, v{KD+st+k}")
    e(f"v_mov_b32 v21, v{KD}")
    allred(21, 22, "add")
    e(f"v_lshlrev_b32 v2, 3, v1\ns_lshl_b32 s{sTMP}, s{sI}, 6\nv_add_u32 v2, s{sTMP}, v2")
    e("s_mov_b64 exec, 0xff")
    e(f"ds_write_b64 v2, v[20:21] offset:{STLDS}")
    flag_add(F_P, vZ, vONE)
    ts(4)
    e(f"s_add_u32 s{sB}, s{sI}, 4")
    e("s_branch L_G")

    VD, ACC, TV, PO, G = 4, 68, 100, 108, 122
    e("L_V:")
    e(f"s_setprio {prio[2]}")
    e(f"v_lshlrev_b32 v{vA}, 4, v1")
    kv_base()
    e(f"v_mov_b32 v{vZ}, 0\nv_mov_b32 v{vONE}, 1\nv_mov_b32 v{vM}, 0xff\ns_lshl_b32 s{sTMP}, s{sI}, 2\nv_mov_b32 v2, s{sTMP}")
    e("s_waitcnt lgkmcnt(0)")
    srd(SRD_A, sV, 32 << 20); srd(SRD_WS, sWS, WS_BYTES)
    epoch_load()
    e("s_barrier")
    if chain: spin(GO_V, 1, 2, 121, sleep=1)
    else: spin(GO_V, 4, vZ, 121, sleep=1)
    loads = []
    for k in range(16):
        pre = f"s_add_u32 s{sOFF}, s{sOFF}, 4096" if (k and not k & 3) else ""
        loads.append((pre, f"buffer_load_dwordx4 {q(VD + 4*k)}, v{vA}, {A}, s{sOFF} offen offset:{(k&3)*1024}{pf}"))
    stream(loads, win[2])
    e(f"s_waitcnt vmcnt({ho})")
    if chain: e(f"ds_write_b32 v2, v{vONE} offset:{GO_WO}")
    else: flag_add(GO_WO, vZ, vONE, wait=False)
    ts(1)
    if cut:
        e("s_waitcnt vmcnt(0)"); ts(3); dbg_out(); e("s_endpgm")
    e(f"s_lshl_b32 s{sTMP}, s{sI}, 11\nv_add_u32 v{vB}, s{sTMP}, v{vA}")
    e(f"v_lshrrev_b32 v2, 5, v1\nv_lshlrev_b32 v3, 3, v2\ns_lshl_b32 s{sTMP}, s{sI}, 4\nv_add_u32 v3, s{sTMP}, v3")
    tag_setup()
    spin(F_P, 4, vZ, 121)
    ts(2)
    e(f"ds_read_b128 {q(PO)}, v{vB} offset:{PLDS}\nds_read_b128 {q(PO+4)}, v{vB} offset:{PLDS+1024}")
    for w in range(4): e(f"ds_read_b64 v[{TV+2*w}:{TV+2*w+1}], v3 offset:{STLDS + 64*w}")
    e(f"v_lshlrev_b32 v2, 6, v2\nv_and_b32 v126, 3, v1\nv_lshl_add_u32 v2, v126, 4, v2")
    e(f"s_lshl_b32 s{sOFF}, s{sGRP}, 14\ns_lshl_b32 s{sTMP}, s{sI}, 12\ns_add_u32 s{sOFF}, s{sOFF}, s{sTMP}")
    e(f"s_lshl_b32 s{sTMP}, s{sIDX}, 7\ns_add_u32 s{sOFF}, s{sOFF}, s{sTMP}\ns_add_u32 s{sOFF}, s{sOFF}, {S_BASE}")
    e("s_waitcnt lgkmcnt(0)")
    e(f"v_max3_f32 v126, v{TV}, v{TV+2}, v{TV+4}\nv_max_f32 v126, v126, v{TV+6}")
    for w in range(4): e(f"v_sub_f32 v{G+w}, v{TV+2*w}, v126")
    for w in range(4): e(f"v_exp_f32 v{G+w}, v{G+w}")
    e(f"s_nop 0\nv_mul_f32 v127, v{G}, v{TV+1}")
    for w in range(1, 4): e(f"v_fmac_f32 v127, v{G+w}, v{TV+2*w+1}")
    e(f"v_log_f32 v{TV}, v127\nv_rcp_f32 v127, v127\nv_mov_b32 v{TV+1}, s{sT}\nv_add_f32 v{TV}, v{TV}, v126")
    for w in range(4): e(f"v_mul_f32 v{G+w}, v{G+w}, v127")
    e(f"v_mov_b32 v{TV+2}, v{TV}\nv_mov_b32 v{TV+3}, s{sT}")
    e("s_mov_b32 exec_lo, 15\ns_mov_b32 exec_hi, 15")
    publish(TV, 2)
    e("s_mov_b64 exec, -1")
    def tail_addrs():
        e(f"v_lshrrev_b32 v2, 4, v1\nv_lshlrev_b32 v2, 3, v2\nv_and_b32 v3, 7, v1\nv_add_u32 v2, v2, v3\nv_lshlrev_b32 v2, 4, v2")
        e(f"s_mul_i32 s{sTMP}, s{sI}, 4224\nv_add_u32 v{vB}, s{sTMP}, v2")
        e(f"v_mul_u32_u24 v3, 528, v3\nv_bfe_u32 v2, v1, 3, 2\nv_lshl_add_u32 v3, v2, 7, v3\nv_lshrrev_b32 v2, 5, v1\nv_lshl_add_u32 v3, v2, 4, v3")
        e(f"s_lshl_b32 s{sTMP}, s{sI}, 5\nv_add_u32 v3, s{sTMP}, v3")
    tail_addrs()
    e(f"s_lshl_b32 s{sOFF}, s{sGRP}, 2\ns_add_u32 s{sOFF}, s{sOFF}, s{sI}\ns_lshl_b32 s{sOFF}, s{sOFF}, 5\ns_add_u32 s{sOFF}, s{sOFF}, s{sIDX}")
    e(f"s_lshl_b32 s{sOFF}, s{sOFF}, 10\ns_add_u32 s{sOFF}, s{sOFF}, {O_BASE}")
    nst = 2 if dual else 1
    if ho > 8: e(f"s_waitcnt vmcnt({8 + nst})")
    pingpong(VD, PO, ACC, TV, True)
    for ip in range(4):
        e(f"s_waitcnt vmcnt({6 + nst - 2*ip})")
        if ip < 3:
            for j in range(8): perm(VD + 4*j + ip, VD + 32, j, ip)
    ts(3)
    perm(VD + 3, VD + 32, 0, 3); perm(VD + 7, VD + 32, 1, 3)
    for j in range(8):
        if j < 6: perm(VD + 4*(j+2) + 3, VD + 32, j + 2, 3)
        elif j == 6: e("s_nop 0")
        mfma(ACC + 4*j, VD + 4*j, PO + 4, ACC + 4*j)
    part_write(ACC, vB, "0x00ff00ff", "0x00ff00ff")
    flag_add(F_O1, vZ, vONE)
    spin(F_O1, 4, vZ, 121)
    for w in range(4): e(f"ds_read_b128 {q(VD + 4*w)}, v3 offset:{PART + w*4224}")
    e("s_waitcnt lgkmcnt(0)")
    for r in range(4): e(f"v_mul_f32 v{VD+r}, v{G}, v{VD+r}")
    for w in range(1, 4):
        for r in range(4): e(f"v_fmac_f32 v{VD+r}, v{G+w}, v{VD+4*w+r}")
    tag_insert(VD, vM)
    publish(VD, vA)
    flag_add(F_O2, vZ, vONE, wait=False)
    ts(4)
    dbg_out()
    e("s_endpgm")

    WD, T0, OO, Z = 4, 68, 100, 108
    e("L_WO:")
    e(f"s_setprio {prio[3]}")
    e(f"v_mov_b32 v{vZ}, 0\nv_lshlrev_b32 v2, 2, v1")
    e("s_mov_b64 exec, 0xffff")
    e(f"ds_write_b32 v2, v{vZ}")
    e("s_mov_b64 exec, -1")
    if warm:
        e(f"s_getpc_b64 s[54:55]\nL_pc:\ns_sub_u32 s54, s54, L_pc-{KN}\ns_subb_u32 s55, s55, 0")
        e(f"s_lshl_b32 s{sTMP}, s{sI}, 5\ns_add_u32 s{sTMP}, s{sTMP}, s{sIDX}\ns_lshl_b32 s56, s{sTMP}, 7\ns_min_u32 s56, s56, L_end-{KN}")
        e("s_load_dword s57, s[54:55], s56")
    e(f"v_lshrrev_b32 v2, 4, v1\nv_lshlrev_b32 v{vA}, 12, v2\nv_and_b32 v3, 15, v1\nv_lshl_add_u32 v{vA}, v3, 4, v{vA}")
    e(f"s_lshr_b32 s{sTMP2}, s{sIDX}, 3\ns_lshl_b32 s{sB}, s{sHKV}, 2\ns_add_u32 s{sB}, s{sB}, s{sTMP2}")
    e(f"s_lshl_b32 s{sOFF}, s{sB}, 2\ns_add_u32 s{sOFF}, s{sOFF}, s{sI}\ns_lshl_b32 s{sOFF}, s{sOFF}, 17")
    e(f"s_and_b32 s{sSC}, s{sIDX}, 7\ns_lshl_b32 s{sTMP}, s{sSC}, 8\ns_add_u32 s{sOFF}, s{sOFF}, s{sTMP}")
    e(f"v_and_b32 v3, 7, v1\nv_mul_u32_u24 v{vONE}, 528, v3\nv_lshl_add_u32 v{vONE}, v2, 4, v{vONE}\ns_lshl_b32 s{sTMP}, s{sI}, 7\nv_add_u32 v{vONE}, s{sTMP}, v{vONE}")
    tail_addrs()
    e(f"s_lshl_b32 s{sTMP}, s{sI}, 2\nv_mov_b32 v2, s{sTMP}\nv_mov_b32 v{vM}, 0xff")
    e("s_waitcnt lgkmcnt(0)")
    srd(SRD_A, sWO, 8 << 20); srd(SRD_WS, sWS, WS_BYTES); srd(SRD_B, sOUT, 32768)
    if holdmode:
        e("s_load_dwordx2 s[84:85], s[0:1], 88\ns_waitcnt lgkmcnt(0)\ns_mov_b32 s88, s84\ns_mov_b32 s89, s85\ns_mov_b32 s90, 256\ns_mov_b32 s91, 0x20000")
        e("s_not_b32 s86, s58\nv_mov_b32 v4, s86\nv_mov_b32 v5, s58\nv_mov_b32 v6, 0\ns_mov_b64 exec, 1")
        e("buffer_atomic_umax v4, v6, s[88:91], 0 offen sc1\nbuffer_atomic_umax v5, v6, s[88:91], 0 offen offset:128 sc1\ns_mov_b64 exec, -1\ns_waitcnt vmcnt(0)")
    epoch_load()
    e("s_barrier")
    if chain: spin(GO_WO, 1, 2, 121, sleep=1)
    else: spin(GO_WO, 4, vZ, 121, sleep=1)
    e(f"s_add_u32 s{sTMP}, s{sOFF}, s{sWO}\ns_bfe_u32 s{sTMP}, s{sTMP}, 0x20008\ns_cmp_eq_u32 s{sTMP}, 1")
    loads = []; cur = 0
    for blk in range(2):
        for jj in range(8):
            row = 32*blk + 8*(jj & 3) + (jj >> 2)
            d = (row - cur) * 2048; cur = row
            pre = "" if d == 0 else (f"s_add_u32 s{sOFF}, s{sOFF}, {d}" if d > 0 else f"s_sub_u32 s{sOFF}, s{sOFF}, {-d}")
            loads.append((pre, f"buffer_load_dwordx4 {q(WD + 32*blk + 4*jj)}, v{vA}, {A}, s{sOFF} offen{pf}"))
    stream2(loads, win[3], slow[1])
    ts(1)
    tag_setup()
    e(f"s_lshl_b32 s{sOFF}, s{sBR}, 3\ns_add_u32 s{sOFF}, s{sOFF}, s{sSC}\ns_lshl_b32 s{sOFF}, s{sOFF}, 16\ns_add_u32 s{sOFF}, s{sOFF}, {R_BASE}")
    e(f"s_lshl_b32 s{sTMP}, s{sB}, 12\ns_add_u32 s{sTMP2}, s{sOFF}, s{sTMP}")
    e(f"s_lshl_b32 s{sTMP}, s{sI}, 14\ns_add_u32 s{sOFF}, s{sOFF}, s{sTMP}\ns_lshl_b32 s{sTMP}, s{sB}, 8\ns_add_u32 s{sOFF}, s{sOFF}, s{sTMP}")
    e(f"v_bfe_u32 v122, v1, 3, 1\nv_lshlrev_b32 v122, 6, v122\nv_lshrrev_b32 v2, 4, v1\nv_lshl_add_u32 v122, v2, 4, v122\nv_and_b32 v2, 7, v1\nv_lshl_add_u32 v122, v2, 1, v122")
    e(f"s_lshr_b32 s{sOFF2}, s{sB}, 1\ns_lshl_b32 s{sOFF2}, s{sOFF2}, 12\ns_lshl_b32 s{sTMP}, s{sBR}, 11\ns_add_u32 s{sOFF2}, s{sOFF2}, s{sTMP}")
    e(f"s_lshl_b32 s{sTMP}, s{sSC}, 8\ns_add_u32 s{sOFF2}, s{sOFF2}, s{sTMP}\ns_and_b32 s{sTMP}, s{sB}, 1\ns_lshl_b32 s{sTMP}, s{sTMP}, 7\ns_add_u32 s{sOFF2}, s{sOFF2}, s{sTMP}")
    e(f"v_lshlrev_b32 v2, 4, v1\ns_mov_b32 s{sCNT}, 0x4000")
    for blk in range(2):
        for ip in range(4):
            e(f"s_waitcnt vmcnt({14 - 8*blk - 2*ip})")
            for j in range(8): perm((T0 if blk == 0 else WD) + 4*j + ip, WD + 32*blk, j, ip)
    ts(2)
    if cut:
        dbg_out(); e("s_endpgm")
    e("s_barrier")
    ts(3)
    e(f"ds_read_b128 {q(OO)}, v{vONE} offset:{OLDS}\nds_read_b128 {q(OO+4)}, v{vONE} offset:{OLDS+64}")
    AC = WD + 32
    e("s_waitcnt lgkmcnt(0)")
    for j in range(8): mfma(AC + 4*j, T0 + 4*j, OO, None)
    for j in range(8): mfma(AC + 4*j, WD + 4*j, OO + 4, AC + 4*j)
    part_write(AC, vB, "0x00ff00ff", "0x00ff00ff")
    e("s_waitcnt lgkmcnt(0)\ns_barrier")
    for w in range(4): e(f"ds_read_b128 {q(T0 + 4*w)}, v3 offset:{PART + w*4224}")
    e("s_waitcnt lgkmcnt(0)")
    for st in (8, 4):
        for k in range(st): e(f"v_add_f32 v{T0+k}, v{T0+k}, v{T0+st+k}")
    tag_insert(T0, vM)
    e(f"buffer_store_dwordx4 {q(T0)}, v{vA}, {WS}, s{sOFF} offen sc1")
    ts(4)
    e(f"s_cmp_lg_u32 s{sI}, 0\ns_cbranch_scc1 L_fin")
    if rdelay: e(f"s_sleep {rdelay}")
    e("s_branch L_rpoll")
    e("L_rretry:")
    e(f"s_sub_u32 s{sCNT}, s{sCNT}, 1\ns_cbranch_scc1 L_end")
    e("L_rpoll:")
    for k in range(4): e(f"buffer_load_dwordx4 {q(12+4*k)}, v2, {WS}, s{sTMP2} offen offset:{1024*k} sc1")
    e("s_waitcnt vmcnt(0)")
    tag_check([12, 16, 20, 24], 28, "L_rretry")
    for st in (8, 4):
        for k in range(st): e(f"v_add_f32 v{12+k}, v{12+k}, v{12+st+k}")
    e("s_nop 1\nv_permlane32_swap_b32 v12, v14\nv_permlane32_swap_b32 v13, v15")
    e("v_add_f32 v12, v12, v14\nv_add_f32 v13, v13, v15\ns_nop 1\nv_permlane16_swap_b32 v12, v13\nv_add_f32 v12, v12, v13")
    e("v_cvt_pk_bf16_f32 v12, v12, v12")
    e(f"buffer_store_short v12, v122, {B}, s{sOFF2} offen")
    if holdmode:
        e("v_mov_b32 v6, 0\nbuffer_load_dword v4, v6, s[88:91], 0 offen sc1\ns_waitcnt vmcnt(0)\nv_readfirstlane_b32 s58, v4\ns_not_b32 s58, s58")
    if hold:
        e(f"L_hold:\ns_memrealtime s[56:57]\ns_waitcnt lgkmcnt(0)\ns_sub_u32 s56, s56, s58\ns_cmp_lt_u32 s56, {hold}\ns_cbranch_scc1 L_hold")
    ts(5); cnt(8)
    e(f"s_or_b32 s{sTMP}, s{sHKV}, s{sIDX}\ns_cmp_lg_u32 s{sTMP}, 0\ns_cbranch_scc1 L_fin")
    e(f"s_lshl_b32 s{sTMP}, s{sBR}, 8\nv_mov_b32 v4, s{sT}\nv_mov_b32 v5, 0\ns_mov_b64 exec, 1")
    e(f"buffer_store_dword v4, v5, {WS}, s{sTMP} offen sc1")
    e("L_fin:")
    if dbg: e("s_nop 1")
    dbg_out()
    e("L_end:\ns_endpgm")
    e(f""".section .rodata,"a"
.p2align 6
.amdhsa_kernel {KN}
  .amdhsa_next_free_vgpr 128
  .amdhsa_next_free_sgpr 96
  .amdhsa_accum_offset 128
  .amdhsa_group_segment_fixed_size 0
  .amdhsa_kernarg_size 104
  .amdhsa_user_sgpr_count 2
  .amdhsa_user_sgpr_kernarg_segment_ptr 1
  .amdhsa_system_sgpr_workgroup_id_x 1
.end_amdhsa_kernel""")
    return "\n".join(o) + "\n"

if __name__ == "__main__":
    kw = eval("dict(" + (sys.argv[2] if len(sys.argv) > 2 else "") + ")")
    open(sys.argv[1], "w").write(gen(**kw))
```

```python
import sys
KN = "concat_heads__sliding_block_cached__sliding_block_cached__decode_kernel"
REF = "concat_heads__sliding_block_cached__sliding_block_cached__decode.s.ref"

S_BASE = 0x10000
Q_BASE = 0x100000
O_BASE = 0x200000
R_BASE = 0x300000
ALT = 0x400000
DBG_BASE = 0x800000
WS_BYTES = 0x1000000
F_Q, F_P, F_M, F_O2, F_GQ, GO_V, GO_WO = 0, 4, 8, 12, 16, 20, 24
F_XQ, F_XV = 32, 48
QLDS = 64
PLDS = 2304
MLDS = 10496
LLDS = 10624
OLDS = 10752
XCH = 15360
LDS_BYTES = XCH + 12 * 1024
sGRP, sIDX, sBR, sHKV, sI, sROLE = 3, 4, 5, 6, 7, 8
sX, sK, sV, sWQ, sWO, sOUT, sWS = 12, 14, 16, 18, 20, 22, 24
sFULL = 26
SRD_A, SRD_WS, SRD_B = 28, 32, 36
sT = 40
sSELLO, sSELHI = 44, 45
sOFF, sTMP, sTMP2, sCNT, sB, sSC, sOFF2, sH, sSTEP, sKH = 46, 47, 48, 49, 50, 51, 52, 53, 58, 59
TS0 = 60

def gen(pol="nt", dbg=False, prio=(3, 2, 2, 1), gprio=2, qsleep=2, osleep=0, win=(7, 7, 7, 7), ho=(4, 4, 4),
        nq=16, no=16, cut=0, dual=True, na=8, warm=True, rdelay=0, xperm=False, rot=True, noalt=False, dry=(1, 1, 1)):
    o = []
    def e(s): o.append(s)
    pf = (" " + pol) if pol else ""
    dpp = "row_mask:0xf bank_mask:0xf"
    A = f"s[{SRD_A}:{SRD_A+3}]"; WS = f"s[{SRD_WS}:{SRD_WS+3}]"; B = f"s[{SRD_B}:{SRD_B+3}]"
    FULL = f"s[{sFULL}:{sFULL+1}]"
    vZ, vONE, vA, vM, vB, vXW, vXF = 116, 117, 118, 119, 120, 121, 122
    uid = [0]
    def lab(n):
        uid[0] += 1; return f"L_{n}_{uid[0]}"
    def full_exec(): e(f"s_mov_b64 exec, {FULL}")
    class skip:
        def __enter__(self): self.l = lab("skip"); e(f"s_cbranch_execz {self.l}")
        def __exit__(self, *a): e(f"{self.l}:")
    def dry_run(entry, back):
        e(f"s_mov_b64 {FULL}, 0\ns_mov_b64 exec, 0\ns_branch {entry}\n{back}:\ns_mov_b64 {FULL}, -1\ns_mov_b64 exec, -1")
    def ts(k):
        if dbg: e(f"s_memrealtime s[{TS0+2*k}:{TS0+2*k+1}]")
    def tc(k):
        if dbg == 5: e(f"s_memtime s[{TS0+2*k}:{TS0+2*k+1}]")
    def cnt(k):
        if dbg: e(f"s_sub_u32 s{TS0+2*k}, 0x4000, s{sCNT}")
    def srd(d, base, nbytes):
        e(f"s_mov_b32 s{d}, s{base}\ns_mov_b32 s{d+1}, s{base+1}\ns_mov_b32 s{d+2}, {nbytes}\ns_mov_b32 s{d+3}, 0x20000")
    def q(a): return f"v[{a}:{a+3}]"
    def flag_add(off, wait=True):
        if wait: e("s_waitcnt lgkmcnt(0)")
        e(f"s_and_b64 exec, {FULL}, 1")
        e(f"ds_add_u32 v{vZ}, v{vONE} offset:{off}")
        full_exec()
    def spin(off, n, vt, sleep=0, va=vZ, also=None):
        l = lab("spin"); d = lab("spun")
        e(f"s_mov_b32 s{sCNT}, 0x80000")
        e(f"{l}:")
        e(f"ds_read_b32 v{vt}, v{va} offset:{off}")
        if also: e(also)
        e("s_waitcnt lgkmcnt(0)")
        e(f"v_readfirstlane_b32 s{sTMP}, v{vt}")
        e(f"s_cmp_ge_u32 s{sTMP}, {n}")
        e(f"s_cbranch_scc1 {d}")
        if sleep: e(f"s_sleep {sleep}")
        e(f"s_sub_u32 s{sCNT}, s{sCNT}, 1")
        e(f"s_cbranch_scc0 {l}")
        e("s_endpgm")
        e(f"{d}:")
    def tag_setup():
        e(f"s_add_u32 s{sT}, s{sT}, 0x9E3779B1")
        e(f"s_lshr_b32 s{sT+1}, s{sT}, 8\ns_lshr_b32 s{sT+2}, s{sT}, 16\ns_lshr_b32 s{sT+3}, s{sT}, 24")
    def epoch_load():
        e(f"s_lshl_b32 s9, s{sBR}, 8")
        e(f"s_load_dword s{sT}, s[{sWS}:{sWS+1}], s9")
    def tag_insert(v):
        for r in range(4): e(f"v_bfi_b32 v{v+r}, v{vM}, s{sT+r}, v{v+r}")
    def tag_check(regs, vacc, retry, first=True):
        for v in regs:
            for r in range(4):
                if first: e(f"v_xor_b32 v{vacc}, s{sT+r}, v{v+r}"); first = False
                else: e(f"v_bitop3_b32 v{vacc}, v{vacc}, v{v+r}, s{sT+r} bitop3:0xf6")
        e(f"v_and_b32 v{vacc}, 0xff, v{vacc}")
        e(f"v_cmp_ne_u32 vcc, 0, v{vacc}")
        e(f"s_cbranch_vccnz {retry}")
    def perm_s(dst, src, j, ip):
        u, p = j >> 1, j & 1
        return f"v_perm_b32 v{dst}, v{src + (2*ip+1)*4 + u}, v{src + (2*ip)*4 + u}, s{sSELHI if p else sSELLO}"
    def perm(*a): e(perm_s(*a))
    def mfma_s(d, a, b, c):
        return f"v_mfma_f32_16x16x32_bf16 {q(d)}, {q(a)}, {q(b)}, {q(c) if c is not None else 0}"
    def mfma(*a): e(mfma_s(*a))
    def pingpong(src, xop, acc, T):
        for ip in range(4): perm(T + ip, src, 0, ip)
        for j in range(8):
            if j < 7:
                for ip in range(4): perm(T + 4*((j+1) & 1) + ip, src, j + 1, ip)
            else:
                e("s_nop 0")
            mfma(acc + 4*j, xop, T + 4*(j & 1), None)
    def finish(main, acc, Z):
        slot = 0; ready = {}; todo = []
        def emit(t):
            nonlocal slot; e(t); slot += 1
        def side(n):
            k = 0
            while k < n and todo and todo[0][0] <= slot:
                _, t, nxt = todo.pop(0); emit(t); k += 1
                if nxt: todo.extend((slot + 2, x, None) for x in nxt); todo.sort(key=lambda z: z[0])
        for t, j in main:
            emit(t)
            if j is not None:
                adds = []
                for u in range(2):
                    x, y = acc + 4*j + 2*u, acc + 4*j + 2*u + 1
                    adds.append(f"v_add_f32_dpp v{Z + 4*u + j}, v{y}, v{x} row_ror:8 row_mask:0xf bank_mask:0x3" if j < 4 else
                                f"v_add_f32_dpp v{Z + 4*u + j - 4}, v{x}, v{y} row_ror:8 row_mask:0xf bank_mask:0xc")
                todo.append((slot + 8, f"v_permlane32_swap_b32 v{acc + 4*j}, v{acc + 4*j + 1}", None))
                todo.append((slot + 8, f"v_permlane32_swap_b32 v{acc + 4*j + 2}, v{acc + 4*j + 3}", adds))
                todo.sort(key=lambda z: z[0])
            if t.startswith("v_mfma"): side(2)
        while todo:
            if todo[0][0] > slot:
                g = todo[0][0] - slot; e(f"s_nop {g-1}"); slot += g
            side(1)
    def xch_setup(region, flags):
        e(f"s_lshl_b32 s{sTMP}, s{sI}, 10\nv_lshl_add_u32 v{vXW}, v1, 4, s{sTMP}")
        if flags is not None: e(f"s_lshl_b32 s{sTMP}, s{sI}, 2\nv_mov_b32 v{vXF}, s{sTMP}")
    def exchange(Z, region, flags, vt):
        base = XCH + region * 4096
        e(f"ds_write_b128 v{vXW}, {q(Z+4)} offset:{base}")
        if flags is not None:
            e(f"ds_write_b32 v{vXF}, v{vONE} offset:{flags}")
        e(f"v_xor_b32 v{vXW}, 2048, v{vXW}")
        if flags is not None:
            e(f"v_xor_b32 v{vXF}, 8, v{vXF}")
            with skip(): spin(flags, 1, vt, va=vXF, also=f"ds_read_b128 {q(Z+4)}, v{vXW} offset:{base}")
        else:
            e("s_waitcnt lgkmcnt(0)")
            with skip(): e("s_barrier")
            e(f"ds_read_b128 {q(Z+4)}, v{vXW} offset:{base}\ns_waitcnt lgkmcnt(0)")
        for r in range(4): e(f"v_add_f32 v{Z+r}, v{Z+r}, v{Z+4+r}")
    def stream(loads, w, sig=None):
        for n, (pre, ld) in enumerate(loads):
            if pre: e(pre)
            if n >= w: e(f"s_waitcnt vmcnt({w-1})")
            e(ld)
            if sig and sig[0] == n + 1: flag_add(sig[1], wait=False)
    def publish(v, va):
        if dual:
            e(f"buffer_store_dwordx4 {q(v)}, v{va}, {WS}, s{sOFF} offen")
            e(f"s_add_u32 s{sOFF}, s{sOFF}, {ALT}")
        if noalt: e(f"buffer_store_dwordx4 {q(v)}, v{va}, {WS}, s{sOFF} offen")
        else: e(f"buffer_store_dwordx4 {q(v)}, v{va}, {WS}, s{sOFF} offen sc1")
    def retry(offs, sleep):
        e(f"s_sub_u32 s{sCNT}, s{sCNT}, 1\ns_cbranch_scc1 L_end")
        if dual:
            e(f"s_cmp_lt_u32 s{sCNT}, {0x4000 - na}\ns_cselect_b32 s{sTMP}, {ALT}, 0")
            for r in offs: e(f"s_xor_b32 s{r}, s{r}, s{sTMP}")
        if sleep: e(f"s_sleep {sleep}")
    def halves(sreg):
        e(f"s_lshr_b32 s{sKH}, s{sI}, 1")
        if rot:
            e(f"s_xor_b32 s{sKH}, s{sKH}, s{sreg}\ns_and_b32 s{sKH}, s{sKH}, 1\ns_bfe_u32 s{sTMP2}, s{sreg}, 0x10001")
        else:
            e(f"s_mov_b32 s{sTMP2}, 0")
        e(f"s_lshl_b32 s{sH}, s{sKH}, 1\ns_add_u32 s{sH}, s{sH}, s{sTMP2}")
    def dbg_out():
        if not dbg: return
        e("s_waitcnt lgkmcnt(0)\ns_mov_b64 exec, 1")
        e(f"s_lshl_b32 s{sTMP}, s{sROLE}, 2\ns_add_u32 s{sTMP}, s{sTMP}, s{sI}\ns_lshl_b32 s{sTMP2}, s2, 4\ns_add_u32 s{sTMP}, s{sTMP}, s{sTMP2}")
        e(f"s_lshl_b32 s{sTMP}, s{sTMP}, 6\ns_add_u32 s{sTMP}, s{sTMP}, {DBG_BASE}")
        for k in range(12): e(f"v_mov_b32 v{4+k}, s{TS0+2*k}")
        e(f"s_getreg_b32 s{sTMP2}, hwreg(HW_REG_XCC_ID)\nv_mov_b32 v16, s{sTMP2}\nv_mov_b32 v17, s{sCNT}\ns_getreg_b32 s{sTMP2}, hwreg(HW_REG_HW_ID)\nv_mov_b32 v18, s{sTMP2}\nv_mov_b32 v19, 0\nv_mov_b32 v2, 0")
        for k in range(4): e(f"buffer_store_dwordx4 {q(4+4*k)}, v2, {WS}, s{sTMP} offen offset:{16*k}")
        e("s_mov_b64 exec, -1")

    hdr = [l for l in open(REF).read().split("\n") if l.startswith(";") and "@launch" not in l]
    o += hdr
    e(f"; @launch grid=(256,1,1) block=(1024,1,1) lds={LDS_BYTES}")
    e('.amdgcn_target "amdgcn-amd-amdhsa--gfx950"\n.text')
    e(f".globl {KN}\n.p2align 8\n.type {KN},@function\n{KN}:")
    if dbg:
        for k in range(1, 12): e(f"s_mov_b32 s{TS0+2*k}, 0")
    ts(0)
    e("s_cmp_ge_u32 s2, 256\ns_cbranch_scc1 L_end")
    if xperm: e("s_and_b32 s3, s2, 7\ns_bfe_u32 s4, s2, 0x30003\ns_andn2_b32 s2, s2, 63\ns_lshl_b32 s3, s3, 3\ns_or_b32 s2, s2, s3\ns_or_b32 s2, s2, s4")
    e(f"s_and_b32 s{sBR}, s2, 1\ns_mul_i32 s9, s{sBR}, 40\ns_add_u32 s10, s0, s9\ns_addc_u32 s11, s1, 0")
    e(f"s_load_dwordx8 s[12:19], s[10:11], 0\ns_load_dwordx2 s[20:21], s[10:11], 32")
    e(f"s_load_dwordx2 s[22:23], s[0:1], 80\ns_load_dwordx2 s[24:25], s[0:1], 96")
    e("v_lshrrev_b32 v2, 6, v0\nv_and_b32 v1, 63, v0")
    e(f"v_readfirstlane_b32 s{sROLE}, v2")
    e(f"s_and_b32 s{sGRP}, s2, 7\ns_lshr_b32 s{sIDX}, s2, 3\ns_lshr_b32 s{sHKV}, s{sGRP}, 1")
    e(f"s_mov_b32 s{sSELLO}, 0x05040100\ns_mov_b32 s{sSELHI}, 0x07060302\ns_mov_b64 {FULL}, -1")
    e(f"s_and_b32 s{sI}, s{sROLE}, 3\ns_lshr_b32 s{sROLE}, s{sROLE}, 2")
    e(f"s_cmp_eq_u32 s{sROLE}, 1\ns_cbranch_scc1 L_K\ns_cmp_eq_u32 s{sROLE}, 2\ns_cbranch_scc1 L_V\ns_cmp_eq_u32 s{sROLE}, 3\ns_cbranch_scc1 L_WO")

    XO, W, D, T = 4, 12, 76, 108
    e(f"s_setprio {prio[0]}")
    e("v_lshrrev_b32 v2, 3, v1\nv_and_b32 v3, 7, v1")
    e(f"v_lshlrev_b32 v{vA}, 16, v2\nv_lshl_add_u32 v{vA}, v3, 4, v{vA}")
    e(f"s_lshr_b32 s{sB}, s{sIDX}, 2\ns_and_b32 s{sSC}, s{sIDX}, 3")
    halves(sB)
    e(f"s_lshl_b32 s{sTMP}, s{sKH}, 1\nv_xor_b32 v{vB}, s{sTMP}, v3\nv_lshlrev_b32 v{vB}, 11, v{vB}\nv_lshl_add_u32 v{vB}, v2, 4, v{vB}")
    e(f"s_lshl_b32 s{sTMP}, s{sSC}, 2\ns_add_u32 s{sTMP}, s{sTMP}, s{sH}")
    e(f"s_lshl_b32 s{sOFF}, s{sTMP}, 19\ns_lshl_b32 s{sOFF2}, s{sTMP}, 7\ns_xor_b32 s9, s{sOFF2}, 128")
    e(f"s_lshl_b32 s{sSTEP}, s{sTMP2}, 20\ns_sub_u32 s{sSTEP}, {57*8192}, s{sSTEP}")
    e(f"s_lshl_b32 s{sTMP}, s{sHKV}, 11\ns_add_u32 s{sOFF}, s{sOFF}, s{sTMP}\ns_lshl_b32 s{sTMP}, s{sB}, 8\ns_add_u32 s{sOFF}, s{sOFF}, s{sTMP}")
    e(f"s_and_b32 s{sH}, s{sI}, 1\ns_lshl_b32 s{sTMP}, s{sH}, 7\ns_add_u32 s{sOFF}, s{sOFF}, s{sTMP}")
    e("s_waitcnt lgkmcnt(0)")
    srd(SRD_B, sX, 16384); srd(SRD_A, sWQ, 8 << 20)
    e(f"buffer_load_dwordx4 {q(XO)}, v{vB}, {B}, s{sOFF2} offen")
    e(f"buffer_load_dwordx4 {q(XO+4)}, v{vB}, {B}, s9 offen")
    loads = []
    for n in range(16):
        pre = "" if n == 0 else (f"s_add_u32 s{sOFF}, s{sOFF}, s{sSTEP}" if n == 8 else f"s_add_u32 s{sOFF}, s{sOFF}, 8192")
        loads.append((pre, f"buffer_load_dwordx4 {q(W + 4*n)}, v{vA}, {A}, s{sOFF} offen{pf}"))
    stream(loads, win[0])
    epoch_load()
    e(f"s_waitcnt vmcnt({ho[0]})")
    e("s_barrier")
    ts(1)
    srd(SRD_WS, sWS, WS_BYTES)
    e(f"v_mov_b32 v{vZ}, 0\nv_mov_b32 v{vONE}, 1\nv_mov_b32 v{vM}, 0xff")
    xch_setup(0, F_XQ)
    if cut == 1:
        e("s_waitcnt vmcnt(0)"); ts(2); dbg_out(); e("s_endpgm")
    e(f"v_and_b32 v{vB}, 15, v1\nv_lshlrev_b32 v{vB}, 4, v{vB}\nv_bfe_u32 v2, v1, 4, 1\nv_lshl_add_u32 v{vB}, v2, 13, v{vB}\nv_lshrrev_b32 v2, 5, v1\nv_lshl_add_u32 v{vB}, v2, 11, v{vB}")
    e(f"s_lshl_b32 s{sOFF2}, s{sGRP}, 17\ns_add_u32 s{sOFF2}, s{sOFF2}, {Q_BASE}")
    e(f"s_lshl_b32 s{sOFF}, s{sB}, 2\ns_add_u32 s{sOFF}, s{sOFF}, s{sKH}\ns_lshl_b32 s{sOFF}, s{sOFF}, 3\ns_add_u32 s{sOFF}, s{sOFF}, s{sSC}")
    e(f"s_lshl_b32 s{sOFF}, s{sOFF}, 1\ns_add_u32 s{sOFF}, s{sOFF}, s{sH}\ns_lshl_b32 s{sOFF}, s{sOFF}, 8\ns_add_u32 s{sOFF}, s{sOFF}, s{sOFF2}")
    e(f"v_and_b32 v{vA}, 31, v1\nv_lshlrev_b32 v{vA}, 4, v{vA}\nv_lshl_add_u32 v{vA}, v2, 14, v{vA}")
    e(f"v_mul_u32_u24 v2, 272, v2\nv_bfe_u32 v123, v1, 4, 1\nv_lshl_add_u32 v2, v123, 7, v2\nv_lshl_add_u32 v2, v3, 4, v2\nv_bfe_u32 v123, v1, 3, 1\nv_lshl_add_u32 v2, v123, 3, v2")
    e(f"s_mul_i32 s{sTMP}, s{sI}, 544\nv_add_u32 v2, s{sTMP}, v2")
    if ho[0] > 8: e("s_waitcnt vmcnt(8)")
    pingpong(W, XO, D, T)
    for ip in range(4):
        e(f"s_waitcnt vmcnt({6 - 2*ip})")
        if ip < 3:
            for j in range(8): perm(W + 4*j + ip, W + 32, j, ip)
    ts(2)
    def last_block(src, dst, xop, acc):
        m = [(perm_s(dst + 3, src, 0, 3), None), (perm_s(dst + 7, src, 1, 3), None)]
        for j in range(8):
            if j < 6: m.append((perm_s(dst + 4*(j+2) + 3, src, j + 2, 3), None))
            m.append((mfma_s(acc + 4*j, xop, dst + 4*j, acc + 4*j), j))
        return m
    finish(last_block(W + 32, W, XO + 4, D), D, T)
    e("s_waitcnt lgkmcnt(0)")
    tag_setup()
    exchange(T, 0, F_XQ, 123)
    tag_insert(T)
    publish(T, vB)
    ts(3)
    if cut == 2:
        dbg_out(); e("s_endpgm")
    e(f"s_lshl_b32 s{sOFF}, s{sI}, 4\ns_add_u32 s{sOFF}, s{sOFF}, s{sB}\ns_lshl_b32 s{sOFF}, s{sOFF}, 11\ns_add_u32 s{sOFF}, s{sOFF}, s{sOFF2}")
    if nq: spin(F_GQ, 4, 123, sleep=1)
    ts(7)
    e(f"s_mov_b32 s{sCNT}, 0x4000")
    e("s_branch L_qpoll")
    e("L_qretry:")
    retry([sOFF], qsleep)
    e("L_qpoll:")
    for k in range(4): e(f"buffer_load_dwordx4 {q(20+4*k)}, v{vA}, {WS}, s{sOFF} offen offset:{512*k} sc1")
    e("s_waitcnt vmcnt(0)")
    tag_check([20, 24, 28, 32], 36, "L_qretry")
    for st in (8, 4):
        for k in range(st): e(f"v_add_f32 v{20+k}, v{20+k}, v{20+st+k}")
    e("v_cvt_pk_bf16_f32 v20, v20, v21\nv_cvt_pk_bf16_f32 v21, v22, v23")
    e(f"ds_write_b64 v2, v[20:21] offset:{QLDS}")
    flag_add(F_Q, wait=False)
    ts(4); cnt(8)
    e(f"s_mov_b32 s{sB}, s{sI}")
    if cut == 3:
        dbg_out(); e("s_endpgm")

    e("L_G:")
    e(f"s_setprio {gprio}")
    e(f"s_lshr_b32 s{sH}, s{sIDX}, 3")
    e(f"v_lshrrev_b32 v2, 5, v1\nv_lshlrev_b32 v2, 6, v2\nv_and_b32 v3, 3, v1\nv_lshl_add_u32 v3, v3, 7, v2")
    e(f"s_lshl_b32 s{sOFF}, s{sGRP}, 2\ns_add_u32 s{sOFF}, s{sOFF}, s{sH}\ns_lshl_b32 s{sOFF}, s{sOFF}, 3\ns_add_u32 s{sOFF}, s{sOFF}, s{sB}")
    e(f"s_lshl_b32 s{sOFF2}, s{sOFF}, 9\ns_add_u32 s{sOFF2}, s{sOFF2}, {S_BASE}")
    e(f"s_lshl_b32 s{sOFF}, s{sOFF}, 12\ns_add_u32 s{sOFF}, s{sOFF}, {O_BASE}")
    e(f"v_lshrrev_b32 v30, 4, v1\nv_lshlrev_b32 v30, 7, v30\nv_and_b32 v2, 7, v1\nv_lshl_add_u32 v30, v2, 4, v30\nv_bfe_u32 v2, v1, 3, 1\nv_lshl_add_u32 v30, v2, 3, v30")
    e(f"s_mul_i32 s{sTMP}, s{sB}, 528\nv_add_u32 v30, s{sTMP}, v30\nv_lshlrev_b32 v2, 4, v1")
    e("s_cbranch_execz L_ogot")
    spin(F_O2, 8 if no else 4, 31, sleep=1)
    ts(5)
    e(f"s_mov_b32 s{sCNT}, 0x4000")
    e("s_branch L_opoll")
    e("L_oretry:")
    retry([sOFF, sOFF2], osleep)
    e("L_opoll:")
    e(f"buffer_load_dwordx2 v[4:5], v3, {WS}, s{sOFF2} offen sc1")
    for k in range(4): e(f"buffer_load_dwordx4 {q(12+4*k)}, v2, {WS}, s{sOFF} offen offset:{1024*k} sc1")
    e("L_ogot:\ns_waitcnt vmcnt(4)")
    e(f"v_max_f32_dpp v6, v4, v4 quad_perm:[1,0,3,2] {dpp}\nv_xor_b32 v28, s{sT}, v5\nv_min_u32 v28, 1, v28")
    e(f"v_max_f32_dpp v6, v6, v6 quad_perm:[2,3,0,1] {dpp}")
    e("v_sub_f32 v6, v4, v6\nv_exp_f32 v6, v6\ns_nop 1")
    e(f"v_add_f32_dpp v7, v6, v6 quad_perm:[1,0,3,2] {dpp}\ns_nop 1")
    e(f"v_add_f32_dpp v7, v7, v7 quad_perm:[2,3,0,1] {dpp}")
    e("v_rcp_f32 v7, v7\ns_waitcnt vmcnt(0)\nv_mul_f32 v6, v6, v7")
    tag_check([12, 16, 20, 24], 28, "L_oretry", first=False)
    for r in range(4): e(f"v_mul_f32_dpp v{12+r}, v6, v{12+r} quad_perm:[0,0,0,0] {dpp}")
    for k in range(1, 4):
        for r in range(4): e(f"v_fmac_f32_dpp v{12+r}, v6, v{12+4*k+r} quad_perm:[{k},{k},{k},{k}] {dpp}")
    e("v_cvt_pk_bf16_f32 v12, v12, v13\nv_cvt_pk_bf16_f32 v13, v14, v15")
    e(f"ds_write_b64 v30, v[12:13] offset:{OLDS}")
    if dry[0]: e("s_cbranch_execz L_Kback")
    ts(6); cnt(10)
    e("s_waitcnt lgkmcnt(0)\ns_barrier")
    dbg_out()
    e("s_endpgm")

    KD, QO, S = 4, 68, 76
    e("L_K:")
    e(f"s_setprio {prio[1]}")
    e(f"v_bfe_u32 v2, v1, 1, 1\nv_lshlrev_b32 v{vA}, 10, v2\nv_bfe_u32 v2, v1, 2, 2\nv_lshl_add_u32 v{vA}, v2, 8, v{vA}")
    e(f"v_lshrrev_b32 v2, 4, v1\nv_lshl_add_u32 v{vA}, v2, 5, v{vA}\nv_and_b32 v2, 1, v1\nv_lshl_add_u32 v{vA}, v2, 4, v{vA}")
    def kv_base():
        e(f"s_lshr_b32 s{sOFF}, s{sIDX}, 2\ns_lshl_b32 s{sOFF}, s{sOFF}, 22\ns_lshl_b32 s{sTMP}, s{sHKV}, 20\ns_add_u32 s{sOFF}, s{sOFF}, s{sTMP}")
        e(f"s_and_b32 s{sTMP}, s{sIDX}, 3\ns_lshl_b32 s{sTMP}, s{sTMP}, 16\ns_add_u32 s{sOFF}, s{sOFF}, s{sTMP}\ns_add_u32 s{sOFF}, s{sOFF}, 0xC0000")
    kv_base()
    e(f"s_lshl_b32 s{sTMP}, s{sI}, 14\ns_add_u32 s{sOFF}, s{sOFF}, s{sTMP}")
    e(f"v_mov_b32 v{vZ}, 0\nv_mov_b32 v{vONE}, 1")
    e("s_waitcnt lgkmcnt(0)")
    srd(SRD_A, sK, 32 << 20); srd(SRD_WS, sWS, WS_BYTES)
    epoch_load()
    e("s_barrier")
    loads = []
    for t in range(8):
        for hh in range(2):
            pre = f"s_add_u32 s{sOFF}, s{sOFF}, 4096" if (t and not t & 1 and not hh) else ""
            loads.append((pre, f"buffer_load_dwordx4 {q(KD + 8*t + 4*hh)}, v{vA}, {A}, s{sOFF} offen offset:{(t&1)*2048 + hh*128}{pf}"))
    stream(loads, win[1], (nq, F_GQ) if nq else None)
    e(f"s_waitcnt vmcnt({ho[1]})")
    flag_add(GO_V, wait=False)
    ts(1)
    e(f"v_and_b32 v3, 7, v1\nv_mul_u32_u24 v{vA}, 272, v3\nv_lshrrev_b32 v2, 3, v1\nv_lshl_add_u32 v{vA}, v2, 4, v{vA}")
    e(f"v_lshlrev_b32 v{vB}, 4, v1\ns_lshl_b32 s{sTMP}, s{sI}, 11\nv_add_u32 v{vB}, s{sTMP}, v{vB}")
    e(f"v_lshlrev_b32 v3, 4, v3\ns_lshl_b32 s{sTMP}, s{sI}, 2\nv_add_u32 v2, s{sTMP}, v3")
    e(f"s_mov_b32 s{sSC}, 0x3e0293ee")
    if dry[0]: dry_run("L_Kdry", "L_Kback"); e(f"s_setprio {prio[1]}")
    e("s_waitcnt vmcnt(0) lgkmcnt(0)")
    ts(2)
    if cut:
        dbg_out(); e("s_endpgm")
    tag_setup()
    spin(F_Q, 4, 108, sleep=1)
    ts(3)
    e("L_Kdry:")
    e(f"ds_read_b128 {q(QO)}, v{vA} offset:{QLDS}\nds_read_b128 {q(QO+4)}, v{vA} offset:{QLDS+128}")
    e("s_waitcnt lgkmcnt(0)")
    for t in range(8): mfma(S + 4*t, KD + 8*t, QO, None)
    for t in range(8): mfma(S + 4*t, KD + 8*t + 4, QO + 4, S + 4*t)
    e("s_nop 1")
    for t in range(8):
        for u in range(2):
            e(f"v_add_f32_dpp v{KD + 2*t + u}, v{S + 4*t + 2*u + 1}, v{S + 4*t + 2*u} row_ror:8 {dpp}")
    e(f"v_max3_f32 v20, v{KD}, v{KD+1}, v{KD+2}")
    for k in range(3, 15, 2): e(f"v_max3_f32 v20, v20, v{KD+k}, v{KD+k+1}")
    e(f"v_max_f32 v20, v20, v{KD+15}")
    def allred(v, t, op):
        e(f"v_mov_b32 v{t}, v{v}\ns_nop 1\nv_permlane32_swap_b32 v{v}, v{t}\nv_{op}_f32 v{v}, v{v}, v{t}")
        e(f"v_mov_b32 v{t}, v{v}\ns_nop 1\nv_permlane16_swap_b32 v{v}, v{t}\nv_{op}_f32 v{v}, v{v}, v{t}")
    allred(20, 21, "max")
    e(f"s_and_b64 exec, {FULL}, 0xff\nds_write_b32 v2, v20 offset:{MLDS}")
    flag_add(F_M, wait=False)
    with skip(): spin(F_M, 4, 108, also=f"ds_read_b128 {q(24)}, v3 offset:{MLDS}")
    e("v_max3_f32 v20, v24, v25, v26\nv_max_f32 v20, v20, v27")
    e(f"v_mul_f32 v20, s{sSC}, v20")
    for k in range(16): e(f"v_fma_f32 v{KD+k}, v{KD+k}, s{sSC}, -v20")
    for k in range(16): e(f"v_exp_f32 v{KD+k}, v{KD+k}")
    e("s_nop 0")
    for k in range(8): e(f"v_cvt_pk_bf16_f32 v{24+k}, v{KD+2*k}, v{KD+2*k+1}")
    e(f"ds_write_b128 v{vB}, {q(24)} offset:{PLDS}\nds_write_b128 v{vB}, {q(28)} offset:{PLDS+1024}")
    for st in (8, 4, 2, 1):
        for k in range(st): e(f"v_add_f32 v{KD+k}, v{KD+k}, v{KD+st+k}")
    allred(KD, 22, "add")
    e(f"s_and_b64 exec, {FULL}, 0xff\nds_write_b32 v2, v{KD} offset:{LLDS}")
    flag_add(F_P, wait=False)
    ts(4)
    e(f"s_add_u32 s{sB}, s{sI}, 4")
    e("s_branch L_G")

    VD, ACC, TV, PO = 4, 68, 100, 108
    e("L_V:")
    e(f"s_setprio {prio[2]}")
    e(f"v_bfe_u32 v2, v1, 3, 1\nv_lshlrev_b32 v{vA}, 13, v2\nv_lshrrev_b32 v2, 4, v1\nv_lshl_add_u32 v{vA}, v2, 8, v{vA}\nv_and_b32 v3, 7, v1\nv_lshl_add_u32 v{vA}, v3, 4, v{vA}")
    kv_base()
    e(f"s_lshr_b32 s{sKH}, s{sI}, 1\ns_and_b32 s{sH}, s{sI}, 1\ns_lshl_b32 s{sTMP}, s{sKH}, 15\ns_add_u32 s{sOFF}, s{sOFF}, s{sTMP}\ns_lshl_b32 s{sTMP}, s{sH}, 7\ns_add_u32 s{sOFF}, s{sOFF}, s{sTMP}")
    e(f"v_mov_b32 v{vZ}, 0\nv_mov_b32 v{vONE}, 1\nv_mov_b32 v{vM}, 0xff")
    e(f"v_lshlrev_b32 v{vB}, 8, v2\nv_lshl_add_u32 v{vB}, v3, 4, v{vB}\nv_bfe_u32 v2, v1, 3, 1\nv_lshl_add_u32 v{vB}, v2, 10, v{vB}\ns_mul_i32 s{sTMP}, s{sKH}, 0x1020\nv_xor_b32 v{vB}, s{sTMP}, v{vB}")
    e(f"v_bfe_u32 v123, v1, 4, 1\nv_lshrrev_b32 v124, 5, v1\nv_lshl_add_u32 v3, v123, 2, v124\nv_lshlrev_b32 v3, 4, v3\ns_lshl_b32 s{sTMP}, s{sKH}, 5\nv_add_u32 v3, s{sTMP}, v3")
    e(f"v_and_b32 v125, 3, v1\nv_lshlrev_b32 v125, 4, v125\nv_lshl_add_u32 v125, v124, 6, v125")
    e(f"v_and_b32 v126, 15, v1\nv_lshlrev_b32 v126, 4, v126\nv_lshl_add_u32 v126, v124, 9, v126\nv_lshl_add_u32 v126, v123, 16, v126")
    xch_setup(1, F_XV)
    e("s_waitcnt lgkmcnt(0)")
    srd(SRD_A, sV, 32 << 20); srd(SRD_WS, sWS, WS_BYTES)
    epoch_load()
    e("s_barrier")
    if dry[1]:
        e(f"s_mov_b32 s{sSTEP}, s{sOFF}")
        dry_run("L_Vdry", "L_Vback")
        e(f"s_mov_b32 s{sOFF}, s{sSTEP}")
    spin(GO_V, 4, 123, sleep=1)
    loads = []
    for k in range(16):
        pre = {4: 4096, 8: 12288, 12: 4096}.get(k)
        loads.append((f"s_add_u32 s{sOFF}, s{sOFF}, {pre}" if pre else "", f"buffer_load_dwordx4 {q(VD + 4*k)}, v{vA}, {A}, s{sOFF} offen offset:{(k&3)*1024}{pf}"))
    stream(loads, win[2])
    e(f"s_waitcnt vmcnt({ho[2]})")
    flag_add(GO_WO, wait=False)
    ts(1)
    if cut:
        e("s_waitcnt vmcnt(0)"); ts(3); dbg_out(); e("s_endpgm")
    tag_setup()
    spin(F_P, 4, 123)
    ts(2)
    e("L_Vdry:")
    e(f"ds_read_b128 {q(PO)}, v{vB} offset:{PLDS}\nds_read_b128 {q(PO+4)}, v{vB} offset:{PLDS+2048}")
    e(f"ds_read_b128 {q(TV)}, v3 offset:{MLDS}\nds_read_b128 {q(TV+4)}, v3 offset:{LLDS}")
    e(f"s_lshl_b32 s{sOFF2}, s{sGRP}, 2\ns_add_u32 s{sOFF2}, s{sOFF2}, s{sKH}\ns_lshl_b32 s{sOFF2}, s{sOFF2}, 5\ns_add_u32 s{sOFF2}, s{sOFF2}, s{sIDX}")
    e(f"s_lshl_b32 s{sTMP}, s{sH}, 6\ns_add_u32 s{sOFF}, s{sOFF2}, s{sTMP}\ns_lshl_b32 s{sOFF}, s{sOFF}, 7\ns_add_u32 s{sOFF}, s{sOFF}, {S_BASE}")
    e(f"s_lshl_b32 s{sTMP}, s{sH}, 4\ns_lshl_b32 s{sTMP2}, 15, s{sTMP}\ns_mov_b32 s{sSC}, 0x3e0293ee")
    e("s_waitcnt lgkmcnt(0)")
    e(f"v_max3_f32 v{TV}, v{TV}, v{TV+1}, v{TV+2}\nv_add_f32 v{TV+4}, v{TV+4}, v{TV+5}\nv_add_f32 v{TV+6}, v{TV+6}, v{TV+7}")
    e(f"v_max_f32 v{TV}, v{TV}, v{TV+3}\nv_add_f32 v{TV+4}, v{TV+4}, v{TV+6}")
    e(f"v_log_f32 v{TV+5}, v{TV+4}\nv_rcp_f32 v127, v{TV+4}\nv_mov_b32 v{TV+1}, s{sT}\nv_mov_b32 v{TV+3}, s{sT}")
    e(f"v_fma_f32 v{TV}, v{TV}, s{sSC}, v{TV+5}\nv_mov_b32 v{TV+2}, v{TV}")
    with skip():
        e(f"s_mov_b32 exec_lo, s{sTMP2}\ns_mov_b32 exec_hi, s{sTMP2}")
        publish(TV, 125)
        e("s_mov_b64 exec, -1")
    e(f"s_lshl_b32 s{sOFF}, s{sOFF2}, 2\ns_add_u32 s{sOFF}, s{sOFF}, s{sH}\ns_lshl_b32 s{sOFF}, s{sOFF}, 8\ns_add_u32 s{sOFF}, s{sOFF}, {O_BASE}")
    nst = 2 if dual else 1
    if ho[2] > 8: e(f"s_waitcnt vmcnt({8 + nst})")
    pingpong(VD, PO, ACC, TV)
    for ip in range(4):
        e(f"s_waitcnt vmcnt({6 + nst - 2*ip})")
        if ip < 3:
            for j in range(8): perm(VD + 4*j + ip, VD + 32, j, ip)
    ts(3); tc(6)
    finish(last_block(VD + 32, VD, PO + 4, ACC), ACC, TV)
    tc(7)
    exchange(TV, 1, F_XV, 123)
    for r in range(4): e(f"v_mul_f32 v{TV+r}, v127, v{TV+r}")
    tag_insert(TV)
    tc(9)
    if dry[1]: e("s_cbranch_execz L_Vback")
    publish(TV, 126)
    flag_add(F_O2, wait=False)
    ts(4)
    dbg_out()
    e("s_endpgm")

    WD, T0, OO, Z = 4, 68, 100, 108
    e("L_WO:")
    e(f"s_setprio {prio[3]}")
    e(f"v_mov_b32 v{vZ}, 0\nv_lshlrev_b32 v2, 2, v1")
    e("s_mov_b64 exec, 0xffff")
    e(f"ds_write_b32 v2, v{vZ}")
    e("s_mov_b64 exec, -1")
    if warm:
        e(f"s_getpc_b64 s[54:55]\nL_pc:\ns_sub_u32 s54, s54, L_pc-{KN}\ns_subb_u32 s55, s55, 0")
        e(f"s_lshl_b32 s{sTMP}, s{sI}, 5\ns_add_u32 s{sTMP}, s{sTMP}, s{sIDX}\ns_lshl_b32 s56, s{sTMP}, 7\ns_min_u32 s56, s56, L_end-{KN}")
        e("s_load_dword s57, s[54:55], s56")
    e(f"v_lshrrev_b32 v2, 3, v1\nv_lshlrev_b32 v{vA}, 14, v2\nv_and_b32 v3, 7, v1\nv_lshl_add_u32 v{vA}, v3, 4, v{vA}")
    e(f"s_lshr_b32 s{sTMP}, s{sIDX}, 3\ns_lshl_b32 s{sB}, s{sHKV}, 2\ns_add_u32 s{sB}, s{sB}, s{sTMP}\ns_and_b32 s{sSC}, s{sIDX}, 7")
    halves(sSC)
    e(f"s_lshl_b32 s{sOFF}, s{sB}, 2\ns_add_u32 s{sOFF}, s{sOFF}, s{sH}\ns_lshl_b32 s{sOFF}, s{sOFF}, 17\ns_lshl_b32 s{sTMP}, s{sSC}, 8\ns_add_u32 s{sOFF}, s{sOFF}, s{sTMP}")
    e(f"s_lshl_b32 s{sSTEP}, s{sTMP2}, 18\ns_sub_u32 s{sSTEP}, {58*2048}, s{sSTEP}")
    e(f"s_lshl_b32 s{sTMP}, s{sKH}, 1\nv_xor_b32 v123, s{sTMP}, v3\nv_mul_u32_u24 v123, 528, v123\nv_lshl_add_u32 v123, v2, 4, v123\ns_lshl_b32 s{sTMP}, s{sH}, 7\ns_xor_b32 s{sTMP2}, s{sTMP}, 128")
    e(f"v_add_u32 v124, s{sTMP2}, v123\nv_add_u32 v123, s{sTMP}, v123")
    e(f"s_and_b32 s{sH}, s{sI}, 1\ns_lshl_b32 s{sTMP}, s{sH}, 7\ns_add_u32 s{sOFF}, s{sOFF}, s{sTMP}")
    xch_setup(2, None)
    e(f"v_mov_b32 v{vM}, 0xff\nv_mov_b32 v{vONE}, 1")
    e(f"v_and_b32 v{vB}, 15, v1\nv_lshlrev_b32 v{vB}, 4, v{vB}\nv_bfe_u32 v2, v1, 4, 1\nv_lshl_add_u32 v{vB}, v2, 15, v{vB}\nv_lshrrev_b32 v2, 5, v1\nv_lshl_add_u32 v{vB}, v2, 13, v{vB}")
    e(f"v_lshlrev_b32 v125, 4, v3\nv_bfe_u32 v2, v1, 3, 1\nv_lshl_add_u32 v125, v2, 3, v125\nv_lshrrev_b32 v2, 4, v1\nv_lshl_add_u32 v125, v2, 1, v125\nv_lshlrev_b32 v2, 4, v1")
    e("s_waitcnt lgkmcnt(0)")
    srd(SRD_A, sWO, 8 << 20); srd(SRD_WS, sWS, WS_BYTES); srd(SRD_B, sOUT, 32768)
    epoch_load()
    e("s_barrier")
    if dry[2]: dry_run("L_WOdry", "L_WOback")
    spin(GO_WO, 4, 126, sleep=1)
    loads = []
    for n in range(16):
        pre = f"s_add_u32 s{sOFF}, s{sOFF}, s{sSTEP}" if n == 8 else (f"s_add_u32 s{sOFF}, s{sOFF}, 4096" if (n and not n & 1) else "")
        loads.append((pre, f"buffer_load_dwordx4 {q(WD + 4*n)}, v{vA}, {A}, s{sOFF} offen offset:{(n&1)*2048}{pf}"))
    stream(loads, win[3], (no, F_O2) if no else None)
    ts(1)
    tag_setup()
    e(f"s_lshl_b32 s{sOFF}, s{sBR}, 3\ns_add_u32 s{sOFF}, s{sOFF}, s{sSC}\ns_lshl_b32 s{sOFF}, s{sOFF}, 16\ns_add_u32 s{sOFF}, s{sOFF}, {R_BASE}")
    e(f"s_lshl_b32 s{sTMP}, s{sB}, 12\ns_add_u32 s{sTMP2}, s{sOFF}, s{sTMP}")
    e(f"s_lshl_b32 s{sTMP}, s{sKH}, 2\ns_add_u32 s{sTMP}, s{sTMP}, s{sH}\ns_lshl_b32 s{sTMP}, s{sTMP}, 12\ns_add_u32 s{sOFF}, s{sOFF}, s{sTMP}\ns_lshl_b32 s{sTMP}, s{sB}, 8\ns_add_u32 s{sOFF}, s{sOFF}, s{sTMP}")
    e(f"s_lshr_b32 s{sOFF2}, s{sB}, 1\ns_lshl_b32 s{sOFF2}, s{sOFF2}, 12\ns_lshl_b32 s{sTMP}, s{sBR}, 11\ns_add_u32 s{sOFF2}, s{sOFF2}, s{sTMP}")
    e(f"s_lshl_b32 s{sTMP}, s{sSC}, 8\ns_add_u32 s{sOFF2}, s{sOFF2}, s{sTMP}\ns_and_b32 s{sTMP}, s{sB}, 1\ns_lshl_b32 s{sTMP}, s{sTMP}, 7\ns_add_u32 s{sOFF2}, s{sOFF2}, s{sTMP}")
    e(f"s_mov_b32 s{sCNT}, 0x4000")
    for blk in range(2):
        for ip in range(4):
            e(f"s_waitcnt vmcnt({14 - 8*blk - 2*ip})")
            for j in range(8): perm((T0 if blk == 0 else WD) + 4*j + ip, WD + 32*blk, j, ip)
    ts(2)
    if cut:
        dbg_out(); e("s_endpgm")
    e("s_barrier")
    ts(3)
    e("L_WOdry:")
    tc(6)
    e(f"ds_read_b128 {q(OO)}, v123 offset:{OLDS}\nds_read_b128 {q(OO+4)}, v124 offset:{OLDS}")
    AC = WD + 32
    e("s_waitcnt lgkmcnt(0)")
    tc(7)
    m = []
    for j in range(8): m += [(mfma_s(AC + 4*j, OO, T0 + 4*j, None), None), (mfma_s(AC + 4*j, OO + 4, WD + 4*j, AC + 4*j), j)]
    finish(m, AC, Z)
    tc(9)
    exchange(Z, 2, None, 126)
    tag_insert(Z)
    tc(11)
    e("s_cbranch_execz L_rgot")
    e(f"buffer_store_dwordx4 {q(Z)}, v{vB}, {WS}, s{sOFF} offen sc1")
    ts(4)
    e(f"s_cmp_lg_u32 s{sI}, 0\ns_cbranch_scc1 L_fin")
    if rdelay: e(f"s_sleep {rdelay}")
    e("s_branch L_rpoll")
    e("L_rretry:")
    e(f"s_sub_u32 s{sCNT}, s{sCNT}, 1\ns_cbranch_scc1 L_end")
    e("L_rpoll:")
    for k in range(4): e(f"buffer_load_dwordx4 {q(12+4*k)}, v2, {WS}, s{sTMP2} offen offset:{1024*k} sc1")
    e("L_rgot:\ns_waitcnt vmcnt(0)")
    tag_check([12, 16, 20, 24], 28, "L_rretry")
    for st in (8, 4):
        for k in range(st): e(f"v_add_f32 v{12+k}, v{12+k}, v{12+st+k}")
    e("s_nop 1\nv_permlane32_swap_b32 v12, v14\nv_permlane32_swap_b32 v13, v15")
    e("v_add_f32 v12, v12, v14\nv_add_f32 v13, v13, v15\ns_nop 1\nv_permlane16_swap_b32 v12, v13\nv_add_f32 v12, v12, v13")
    e("v_cvt_pk_bf16_f32 v12, v12, v12")
    if dry[2]: e("s_cbranch_execz L_WOback")
    e(f"buffer_store_short v12, v125, {B}, s{sOFF2} offen")
    ts(5); cnt(8)
    e(f"s_or_b32 s{sTMP}, s{sHKV}, s{sIDX}\ns_cmp_lg_u32 s{sTMP}, 0\ns_cbranch_scc1 L_fin")
    e(f"s_lshl_b32 s{sTMP}, s{sBR}, 8\nv_mov_b32 v4, s{sT}\nv_mov_b32 v5, 0\ns_mov_b64 exec, 1")
    e(f"buffer_store_dword v4, v5, {WS}, s{sTMP} offen sc1")
    e("L_fin:")
    if dbg: e("s_nop 1")
    dbg_out()
    e("L_end:\ns_endpgm")
    e(f""".section .rodata,"a"
.p2align 6
.amdhsa_kernel {KN}
  .amdhsa_next_free_vgpr 128
  .amdhsa_next_free_sgpr 96
  .amdhsa_accum_offset 128
  .amdhsa_group_segment_fixed_size 0
  .amdhsa_kernarg_size 104
  .amdhsa_user_sgpr_count 2
  .amdhsa_user_sgpr_kernarg_segment_ptr 1
  .amdhsa_system_sgpr_workgroup_id_x 1
.end_amdhsa_kernel""")
    return "\n".join(o) + "\n"

if __name__ == "__main__":
    kw = eval("dict(" + (sys.argv[2] if len(sys.argv) > 2 else "") + ")")
    open(sys.argv[1], "w").write(gen(**kw))
```

```python
import sys
KN = "concat_heads__sliding_block_cached__sliding_block_cached__decode_kernel"
REF = "concat_heads__sliding_block_cached__sliding_block_cached__decode.s.ref"

H_BASE = 0x1000
S_BASE = 0x20000
Q_BASE = 0x80000
O_BASE = 0x100000
R_BASE = 0x200000
DBG_BASE = 0x800000
WS_BYTES = 0x1000000
F_Q1, F_Q, F_P, F_O1, F_O2, F_GQ, GO_V, GO_WO, F_MODE, F_GH = 0, 4, 8, 12, 16, 20, 24, 28, 32, 36
QLDS = 64
PLDS = 2304
STLDS = 10496
OLDS = 10752
PART = 15360
LDS_BYTES = PART + 4 * 4480
sGRP, sIDX, sBR, sHKV, sI, sROLE = 3, 4, 5, 6, 7, 8
sX, sK, sV, sWQ, sWO, sOUT, sWS = 12, 14, 16, 18, 20, 22, 24
sFULL = 26
SRD_A, SRD_WS, SRD_B = 28, 32, 36
sT = 40
sSELLO, sSELHI = 44, 45
sOFF, sTMP, sTMP2, sCNT, sB, sSC, sOFF2, sH, sSTEP, sMODE = 46, 47, 48, 49, 50, 51, 52, 53, 58, 59
TS0 = 60
HS = 64

def gen(pol="nt", dbg=False, prio=(3, 2, 2, 1), gprio=2, qsleep=2, osleep=0, win=(7, 7, 7, 7), ho=(4, 4, 4),
        nq=16, no=8, cut=0, warm=True, rdelay=0, rack=True, xperm=False, dry=(0, 0, 0), wb=False, opol="", hello="vec", nh=8):
    o = []
    def e(s): o.append(s)
    pf = (" " + pol) if pol else ""
    dpp = "row_mask:0xf bank_mask:0xf"
    A = f"s[{SRD_A}:{SRD_A+3}]"; WS = f"s[{SRD_WS}:{SRD_WS+3}]"; B = f"s[{SRD_B}:{SRD_B+3}]"
    FULL = f"s[{sFULL}:{sFULL+1}]"
    vZ, vONE, vA, vM, vB = 116, 117, 118, 119, 120
    uid = [0]
    def lab(n):
        uid[0] += 1; return f"L_{n}_{uid[0]}"
    def full_exec(): e(f"s_mov_b64 exec, {FULL}")
    class skip:
        def __enter__(self): self.l = lab("skip"); e(f"s_cbranch_execz {self.l}")
        def __exit__(self, *a): e(f"{self.l}:")
    def dry_run(entry, back):
        e(f"s_mov_b64 {FULL}, 0\ns_mov_b64 exec, 0\ns_branch {entry}\n{back}:\ns_mov_b64 {FULL}, -1\ns_mov_b64 exec, -1")
    def ts(k):
        if dbg: e(f"s_memrealtime s[{TS0+2*k}:{TS0+2*k+1}]")
    def tc(k):
        if dbg == 5: e(f"s_memtime s[{TS0+2*k}:{TS0+2*k+1}]")
    def cnt(k):
        if dbg: e(f"s_sub_u32 s{TS0+2*k}, 0x4000, s{sCNT}")
    def srd(d, base, nbytes):
        e(f"s_mov_b32 s{d}, s{base}\ns_mov_b32 s{d+1}, s{base+1}\ns_mov_b32 s{d+2}, {nbytes}\ns_mov_b32 s{d+3}, 0x20000")
    def q(a): return f"v[{a}:{a+3}]"
    def d2(a): return f"v[{a}:{a+1}]"
    def flag_add(off, wait=True):
        if wait: e("s_waitcnt lgkmcnt(0)")
        e(f"s_and_b64 exec, {FULL}, 1")
        e(f"ds_add_u32 v{vZ}, v{vONE} offset:{off}")
        full_exec()
    def spin(off, n, vt, sleep=0):
        l = lab("spin"); d = lab("spun")
        e(f"s_mov_b32 s{sCNT}, 0x80000")
        e(f"{l}:")
        e(f"ds_read_b32 v{vt}, v{vZ} offset:{off}")
        e("s_waitcnt lgkmcnt(0)")
        e(f"v_readfirstlane_b32 s{sTMP}, v{vt}")
        e(f"s_cmp_ge_u32 s{sTMP}, {n}")
        e(f"s_cbranch_scc1 {d}")
        if sleep: e(f"s_sleep {sleep}")
        e(f"s_sub_u32 s{sCNT}, s{sCNT}, 1")
        e(f"s_cbranch_scc0 {l}")
        e("s_endpgm")
        e(f"{d}:")
    def tag_setup():
        e(f"s_add_u32 s{sT}, s{sT}, 0x9E3779B1")
        e(f"s_lshr_b32 s{sT+1}, s{sT}, 8\ns_lshr_b32 s{sT+2}, s{sT}, 16\ns_lshr_b32 s{sT+3}, s{sT}, 24")
    def epoch_load():
        e(f"s_lshl_b32 s9, s{sBR}, 8")
        e(f"s_load_dword s{sT}, s[{sWS}:{sWS+1}], s9")
    def tag_insert(v):
        for r in range(4): e(f"v_bfi_b32 v{v+r}, v{vM}, s{sT+r}, v{v+r}")
    def tag_check(regs, vacc, retry):
        first = True
        for v in regs:
            for r in range(4):
                if first: e(f"v_xor_b32 v{vacc}, s{sT+r}, v{v+r}"); first = False
                else: e(f"v_bitop3_b32 v{vacc}, v{vacc}, v{v+r}, s{sT+r} bitop3:0xf6")
        e(f"v_and_b32 v{vacc}, 0xff, v{vacc}")
        e(f"v_cmp_ne_u32 vcc, 0, v{vacc}")
        e(f"s_cbranch_vccnz {retry}")
    def pack(dst, src):
        e(f"v_cvt_pk_bf16_f32 v{dst}, v{src}, v{src+1}\nv_cvt_pk_bf16_f32 v{dst+1}, v{src+2}, v{src+3}")
        e(f"v_min_u32 v{dst}, -2, v{dst}\nv_min_u32 v{dst+1}, -2, v{dst+1}")
    def ones_check(regs, vacc, retry):
        regs = list(regs)
        e(f"v_max3_u32 v{vacc}, v{regs[0]}, v{regs[1]}, v{regs[2]}")
        k = 3
        while k + 1 < len(regs): e(f"v_max3_u32 v{vacc}, v{vacc}, v{regs[k]}, v{regs[k+1]}"); k += 2
        if k < len(regs): e(f"v_max_u32 v{vacc}, v{vacc}, v{regs[k]}")
        e(f"v_cmp_eq_u32 vcc, -1, v{vacc}\ns_cbranch_vccnz {retry}")
    def unpack(dst, src):
        e(f"v_lshlrev_b32 v{dst}, 16, v{src}\nv_and_b32 v{dst+1}, 0xffff0000, v{src}")
    def store_by_mode(op, data, va):
        g, d = lab("wt"), lab("st")
        e(f"s_cmp_eq_u32 s{sMODE}, 2\ns_cbranch_scc1 {g}")
        e(f"{op} {data}, v{va}, {WS}, s{sOFF} offen {opol}\ns_branch {d}")
        e(f"{g}:\n{op} {data}, v{va}, {WS}, s{sOFF} offen sc1\n{d}:")
    def retry(sleep):
        e(f"s_sub_u32 s{sCNT}, s{sCNT}, 1\ns_cbranch_scc1 L_end")
        if sleep: e(f"s_sleep {sleep}")
    def perm_s(dst, src, j, ip):
        u, p = j >> 1, j & 1
        return f"v_perm_b32 v{dst}, v{src + (2*ip+1)*4 + u}, v{src + (2*ip)*4 + u}, s{sSELHI if p else sSELLO}"
    def perm(*a): e(perm_s(*a))
    def mfma_s(d, a, b, c):
        return f"v_mfma_f32_16x16x32_bf16 {q(d)}, {q(a)}, {q(b)}, {q(c) if c is not None else 0}"
    def mfma(*a): e(mfma_s(*a))
    def pingpong(src, bop, acc, T):
        for ip in range(4): perm(T + ip, src, 0, ip)
        for j in range(8):
            if j < 7:
                for ip in range(4): perm(T + 4*((j+1) & 1) + ip, src, j + 1, ip)
            else:
                e("s_nop 0")
            mfma(acc + 4*j, T + 4*(j & 1), bop, None)
    JORD = (0, 4, 1, 5, 2, 6, 3, 7)
    def finish(main, acc):
        slot = 0; done = {}; todo = []
        def emit(t):
            nonlocal slot; e(t); slot += 1
        def side(n):
            k = 0
            while k < n and todo and todo[0][0] <= slot:
                emit(todo.pop(0)[1]); k += 1
        for t, j in main:
            emit(t)
            if j is not None and j >= 4:
                for r in range(4):
                    todo.append((slot + 8, f"v_mov_b32_dpp v{acc + 4*(j-4) + r}, v{acc + 4*j + r} row_ror:8 row_mask:0xf bank_mask:0xc"))
                todo.append((slot + 8, f"ds_write_b128 v{vB}, {q(acc + 4*(j-4))} offset:{PART + (j-4)*1120}"))
            if t.startswith("v_mfma"): side(2)
        while todo:
            if todo[0][0] > slot:
                g = todo[0][0] - slot; e(f"s_nop {g-1}"); slot += g
            side(1)
    def last_block(src, dst, bop, acc):
        m = [(perm_s(dst + 4*JORD[0] + 3, src, JORD[0], 3), None), (perm_s(dst + 4*JORD[1] + 3, src, JORD[1], 3), None)]
        for k, j in enumerate(JORD):
            if k < 6: m.append((perm_s(dst + 4*JORD[k+2] + 3, src, JORD[k+2], 3), None))
            m.append((mfma_s(acc + 4*j, dst + 4*j, bop, acc + 4*j), j))
        return m
    def part_addrs(vr):
        e(f"v_lshrrev_b32 v2, 4, v1\nv_mul_u32_u24 v2, 272, v2\nv_and_b32 v{vr}, 15, v1\nv_lshl_add_u32 v2, v{vr}, 4, v2")
        e(f"s_mul_i32 s{sTMP}, s{sI}, 4480\nv_add_u32 v{vB}, s{sTMP}, v2")
        e(f"v_and_b32 v{vr}, 3, v1\nv_mul_u32_u24 v{vr}, 1120, v{vr}\nv_bfe_u32 v2, v1, 3, 2\nv_mul_u32_u24 v2, 272, v2\nv_add_u32 v{vr}, v{vr}, v2")
        e(f"v_bfe_u32 v2, v1, 2, 1\nv_lshl_add_u32 v{vr}, v2, 7, v{vr}\nv_lshrrev_b32 v2, 5, v1\nv_lshl_add_u32 v{vr}, v2, 4, v{vr}")
        e(f"s_lshl_b32 s{sTMP}, s{sI}, 5\nv_add_u32 v{vr}, s{sTMP}, v{vr}")
    def stream(loads, w, sig=None):
        for n, (pre, ld) in enumerate(loads):
            if pre: e(pre)
            if n >= w: e(f"s_waitcnt vmcnt({w-1})")
            e(ld)
            for sg in (sig or ()):
                if sg[0] == n + 1: flag_add(sg[1], wait=False)
    def dbg_out():
        if not dbg: return
        e("s_waitcnt lgkmcnt(0)\ns_mov_b64 exec, 1")
        e(f"s_lshl_b32 s{sTMP}, s{sROLE}, 2\ns_add_u32 s{sTMP}, s{sTMP}, s{sI}\ns_lshl_b32 s{sTMP2}, s2, 4\ns_add_u32 s{sTMP}, s{sTMP}, s{sTMP2}")
        e(f"s_lshl_b32 s{sTMP}, s{sTMP}, 6\ns_add_u32 s{sTMP}, s{sTMP}, {DBG_BASE}")
        for k in range(12): e(f"v_mov_b32 v{4+k}, s{TS0+2*k}")
        e(f"s_getreg_b32 s{sTMP2}, hwreg(HW_REG_XCC_ID)\nv_mov_b32 v16, s{sTMP2}\nv_mov_b32 v17, s{sCNT}\ns_getreg_b32 s{sTMP2}, hwreg(HW_REG_HW_ID)\nv_mov_b32 v18, s{sTMP2}\nv_mov_b32 v19, 0\nv_mov_b32 v2, 0")
        for k in range(4): e(f"buffer_store_dwordx4 {q(4+4*k)}, v2, {WS}, s{sTMP} offen offset:{16*k}")
        e("s_mov_b64 exec, -1")

    hdr = [l for l in open(REF).read().split("\n") if l.startswith(";") and "@launch" not in l]
    o += hdr
    e(f"; @launch grid=(256,1,1) block=(1024,1,1) lds={LDS_BYTES}")
    e('.amdgcn_target "amdgcn-amd-amdhsa--gfx950"\n.text')
    e(f".globl {KN}\n.p2align 8\n.type {KN},@function\n{KN}:")
    if dbg:
        for k in range(1, 12): e(f"s_mov_b32 s{TS0+2*k}, 0")
    ts(0)
    e("s_cmp_ge_u32 s2, 256\ns_cbranch_scc1 L_end")
    if xperm: e("s_and_b32 s3, s2, 7\ns_bfe_u32 s4, s2, 0x30003\ns_andn2_b32 s2, s2, 63\ns_lshl_b32 s3, s3, 3\ns_or_b32 s2, s2, s3\ns_or_b32 s2, s2, s4")
    e(f"s_and_b32 s{sBR}, s2, 1\ns_mul_i32 s9, s{sBR}, 40\ns_add_u32 s10, s0, s9\ns_addc_u32 s11, s1, 0")
    e(f"s_load_dwordx8 s[12:19], s[10:11], 0\ns_load_dwordx2 s[20:21], s[10:11], 32")
    e(f"s_load_dwordx2 s[22:23], s[0:1], 80\ns_load_dwordx2 s[24:25], s[0:1], 96")
    e("v_lshrrev_b32 v2, 6, v0\nv_and_b32 v1, 63, v0")
    e(f"v_readfirstlane_b32 s{sROLE}, v2")
    e(f"s_and_b32 s{sGRP}, s2, 7\ns_lshr_b32 s{sIDX}, s2, 3\ns_lshr_b32 s{sHKV}, s{sGRP}, 1")
    e(f"s_mov_b32 s{sSELLO}, 0x05040100\ns_mov_b32 s{sSELHI}, 0x07060302\ns_mov_b64 {FULL}, -1")
    e(f"s_and_b32 s{sI}, s{sROLE}, 3\ns_lshr_b32 s{sROLE}, s{sROLE}, 2")
    e(f"s_cmp_eq_u32 s{sROLE}, 1\ns_cbranch_scc1 L_K\ns_cmp_eq_u32 s{sROLE}, 2\ns_cbranch_scc1 L_V\ns_cmp_eq_u32 s{sROLE}, 3\ns_cbranch_scc1 L_WO")

    XO, W, D, T = 4, 12, 76, 108
    e(f"s_setprio {prio[0]}")
    e("v_lshrrev_b32 v2, 4, v1\nv_and_b32 v3, 15, v1")
    e(f"v_lshlrev_b32 v{vA}, 16, v2\nv_lshl_add_u32 v{vA}, v3, 4, v{vA}")
    e(f"v_and_b32 v3, 7, v1\nv_lshlrev_b32 v{vB}, 11, v3\nv_lshl_add_u32 v{vB}, v2, 4, v{vB}")
    e(f"s_lshr_b32 s{sB}, s{sIDX}, 2\ns_and_b32 s{sSC}, s{sIDX}, 3")
    e(f"s_add_u32 s{sH}, s{sI}, s{sB}\ns_and_b32 s{sH}, s{sH}, 3\ns_lshr_b32 s{sTMP2}, s{sB}, 2")
    e(f"s_lshl_b32 s{sTMP}, s{sSC}, 2\ns_add_u32 s{sTMP}, s{sTMP}, s{sH}\ns_lshl_b32 s{sTMP}, s{sTMP}, 1\ns_add_u32 s{sTMP}, s{sTMP}, s{sTMP2}")
    e(f"s_lshl_b32 s{sOFF}, s{sTMP}, 18\ns_lshl_b32 s{sOFF2}, s{sTMP}, 6\ns_xor_b32 s9, s{sOFF2}, 64")
    e(f"s_lshl_b32 s{sSTEP}, s{sTMP2}, 19\ns_sub_u32 s{sSTEP}, {25*8192}, s{sSTEP}")
    e(f"s_lshl_b32 s{sTMP}, s{sHKV}, 11\ns_add_u32 s{sOFF}, s{sOFF}, s{sTMP}\ns_lshl_b32 s{sTMP}, s{sB}, 8\ns_add_u32 s{sOFF}, s{sOFF}, s{sTMP}")
    e("s_waitcnt lgkmcnt(0)")
    srd(SRD_B, sX, 16384); srd(SRD_A, sWQ, 8 << 20)
    e(f"buffer_load_dwordx4 {q(XO)}, v{vB}, {B}, s{sOFF2} offen")
    e(f"buffer_load_dwordx4 {q(XO+4)}, v{vB}, {B}, s9 offen")
    loads = []
    for n in range(16):
        pre = "" if n == 0 else (f"s_add_u32 s{sOFF}, s{sOFF}, s{sSTEP}" if n == 8 else f"s_add_u32 s{sOFF}, s{sOFF}, 8192")
        loads.append((pre, f"buffer_load_dwordx4 {q(W + 4*n)}, v{vA}, {A}, s{sOFF} offen{pf}"))
    stream(loads, win[0])
    e(f"s_waitcnt vmcnt({ho[0]})")
    e("s_barrier")
    ts(1)
    srd(SRD_WS, sWS, WS_BYTES)
    e(f"v_mov_b32 v{vZ}, 0\nv_mov_b32 v{vONE}, 1")
    part_addrs(121)
    if cut == 1:
        e("s_waitcnt vmcnt(0)"); ts(2); dbg_out(); e("s_endpgm")
    e(f"v_lshrrev_b32 v2, 5, v1\nv_and_b32 v{vA}, 31, v1\nv_lshlrev_b32 v{vA}, 3, v{vA}\nv_lshl_add_u32 v122, v2, 10, v{vA}\nv_lshl_add_u32 v{vA}, v2, 13, v{vA}")
    e(f"s_lshl_b32 s{sOFF2}, s{sGRP}, 16\ns_add_u32 s{sOFF2}, s{sOFF2}, {Q_BASE}")
    e(f"s_lshl_b32 s{sOFF}, s{sB}, 2\ns_add_u32 s{sOFF}, s{sOFF}, s{sI}\ns_lshl_b32 s{sOFF}, s{sOFF}, 3\ns_add_u32 s{sOFF}, s{sOFF}, s{sSC}\ns_lshl_b32 s{sOFF}, s{sOFF}, 8\ns_add_u32 s{sOFF}, s{sOFF}, s{sOFF2}")
    e(f"v_mul_u32_u24 v2, 272, v2\nv_bfe_u32 v123, v1, 3, 2\nv_lshl_add_u32 v2, v123, 6, v2\nv_lshl_add_u32 v2, v3, 1, v2\ns_mul_i32 s{sTMP}, s{sI}, 544\nv_add_u32 v2, s{sTMP}, v2")
    if ho[0] > 8: e("s_waitcnt vmcnt(8)")
    pingpong(W, XO, D, T)
    for ip in range(4):
        e(f"s_waitcnt vmcnt({6 - 2*ip})")
        if ip < 3:
            for j in range(8): perm(W + 4*j + ip, W + 32, j, ip)
    ts(2)
    finish(last_block(W + 32, W, XO + 4, D), D)
    flag_add(F_Q1, wait=False)
    spin(F_Q1, 4, 123)
    for w in range(4): e(f"ds_read_b128 {q(W + 4*w)}, v121 offset:{PART + w*4480}")
    e("s_waitcnt lgkmcnt(0)")
    for st in (8, 4):
        for k in range(st): e(f"v_add_f32 v{W+k}, v{W+k}, v{W+st+k}")
    pack(W, W)
    e(f"buffer_store_dwordx2 {d2(W)}, v122, {WS}, s{sOFF} offen {opol}")
    ts(3)
    spin(F_MODE, 1, 123, sleep=1)
    e(f"s_cmp_eq_u32 s{sTMP}, 1\ns_cbranch_scc1 L_qloc")
    e(f"buffer_store_dwordx2 {d2(W)}, v122, {WS}, s{sOFF} offen sc1\nL_qloc:")
    ts(9)
    e(f"s_lshl_b32 s{sOFF}, s{sI}, 4\ns_add_u32 s{sOFF}, s{sOFF}, s{sB}\ns_lshl_b32 s{sOFF}, s{sOFF}, 10\ns_add_u32 s{sOFF}, s{sOFF}, s{sOFF2}")
    if nq: spin(F_GQ, 4, 123, sleep=1)
    ts(7)
    e(f"s_mov_b32 s{sCNT}, 0x4000")
    e("s_branch L_qpoll")
    e("L_qretry:")
    retry(qsleep)
    e("L_qpoll:")
    for k in range(4): e(f"buffer_load_dwordx2 {d2(20+2*k)}, v{vA}, {WS}, s{sOFF} offen offset:{256*k} sc1")
    e("s_waitcnt vmcnt(0)")
    ones_check(range(20, 28), 28, "L_qretry")
    for k in range(8): unpack(32 + 2*k, 20 + k)
    for st in (8, 4):
        for k in range(st): e(f"v_add_f32 v{32+k}, v{32+k}, v{32+st+k}")
    e("v_cvt_pk_bf16_f32 v20, v32, v33\nv_cvt_pk_bf16_f32 v22, v34, v35")
    e(f"ds_write_b16 v2, v20 offset:{QLDS}\nds_write_b16_d16_hi v2, v20 offset:{QLDS+16}")
    e(f"ds_write_b16 v2, v22 offset:{QLDS+32}\nds_write_b16_d16_hi v2, v22 offset:{QLDS+48}")
    flag_add(F_Q, wait=False)
    ts(4); cnt(8)
    e(f"s_mov_b32 s{sB}, s{sI}")

    e("L_G:")
    e(f"s_setprio {gprio}")
    e(f"s_lshr_b32 s{sH}, s{sIDX}, 3")
    e(f"v_lshrrev_b32 v2, 5, v1\nv_lshlrev_b32 v4, 6, v2\nv_and_b32 v5, 3, v1\nv_lshl_add_u32 v3, v5, 7, v4")
    e(f"s_lshl_b32 s{sOFF}, s{sGRP}, 2\ns_add_u32 s{sOFF}, s{sOFF}, s{sH}\ns_lshl_b32 s{sOFF}, s{sOFF}, 3\ns_add_u32 s{sOFF}, s{sOFF}, s{sB}")
    e(f"s_lshl_b32 s{sOFF2}, s{sOFF}, 9\ns_add_u32 s{sOFF2}, s{sOFF2}, {S_BASE}")
    e(f"s_lshl_b32 s{sOFF}, s{sOFF}, 11\ns_add_u32 s{sOFF}, s{sOFF}, {O_BASE}")
    e(f"v_bfe_u32 v30, v1, 2, 1\nv_lshlrev_b32 v30, 7, v30\nv_lshl_add_u32 v30, v2, 6, v30\nv_lshl_add_u32 v30, v5, 4, v30\nv_bfe_u32 v4, v1, 3, 2\nv_lshl_add_u32 v30, v4, 2, v30")
    e(f"s_mul_i32 s{sTMP}, s{sB}, 528\nv_add_u32 v30, s{sTMP}, v30\nv_lshlrev_b32 v2, 3, v1")
    e("s_cbranch_execz L_ogot")
    spin(F_O2, 8 if no else 4, 31, sleep=1)
    ts(5)
    e(f"s_mov_b32 s{sCNT}, 0x4000")
    e("s_branch L_opoll")
    e("L_oretry:")
    retry(osleep)
    e("L_opoll:")
    e(f"buffer_load_dword v4, v3, {WS}, s{sOFF2} offen sc1")
    for k in range(4): e(f"buffer_load_dwordx2 {d2(12+2*k)}, v2, {WS}, s{sOFF} offen offset:{512*k} sc1")
    e("L_ogot:\ns_waitcnt vmcnt(4)")
    e(f"v_max_f32_dpp v6, v4, v4 quad_perm:[1,0,3,2] {dpp}\ns_nop 1")
    e(f"v_max_f32_dpp v6, v6, v6 quad_perm:[2,3,0,1] {dpp}")
    e("v_sub_f32 v6, v4, v6\nv_exp_f32 v6, v6\ns_nop 1")
    e(f"v_add_f32_dpp v7, v6, v6 quad_perm:[1,0,3,2] {dpp}\ns_nop 1")
    e(f"v_add_f32_dpp v7, v7, v7 quad_perm:[2,3,0,1] {dpp}")
    e("v_rcp_f32 v7, v7\ns_waitcnt vmcnt(0)\nv_mul_f32 v6, v6, v7")
    ones_check([4] + list(range(12, 20)), 28, "L_oretry")
    for k in range(8): unpack(32 + 2*k, 12 + k)
    for r in range(4): e(f"v_mul_f32_dpp v{32+r}, v6, v{32+r} quad_perm:[0,0,0,0] {dpp}")
    for k in range(1, 4):
        for r in range(4): e(f"v_fmac_f32_dpp v{32+r}, v6, v{32+4*k+r} quad_perm:[{k},{k},{k},{k}] {dpp}")
    e("v_cvt_pk_bf16_f32 v12, v32, v34\nv_cvt_pk_bf16_f32 v13, v33, v35")
    e(f"ds_write2_b32 v30, v12, v13 offset0:0 offset1:64" if False else f"ds_write_b32 v30, v12 offset:{OLDS}\nds_write_b32 v30, v13 offset:{OLDS+256}")
    if dry[0]: e("s_cbranch_execz L_Kback")
    ts(6); cnt(10)
    e("s_waitcnt lgkmcnt(0)\ns_barrier")
    if wb:
        e(f"s_or_b32 s{sTMP}, s{sIDX}, s{sB}\ns_cmp_lg_u32 s{sTMP}, 0\ns_cbranch_scc1 L_nowb\nbuffer_wbl2 sc1\nL_nowb:")
    dbg_out()
    e("s_endpgm")

    KD, QO, S = 4, 68, 76
    e("L_K:")
    e(f"s_setprio {prio[1]}")
    e(f"v_bfe_u32 v2, v1, 1, 1\nv_lshlrev_b32 v{vA}, 10, v2\nv_bfe_u32 v2, v1, 2, 2\nv_lshl_add_u32 v{vA}, v2, 8, v{vA}")
    e(f"v_lshrrev_b32 v2, 4, v1\nv_lshl_add_u32 v{vA}, v2, 5, v{vA}\nv_and_b32 v2, 1, v1\nv_lshl_add_u32 v{vA}, v2, 4, v{vA}")
    def kv_base():
        e(f"s_lshr_b32 s{sTMP2}, s{sIDX}, 2\ns_lshl_b32 s{sOFF2}, s{sTMP2}, 22\ns_lshl_b32 s{sTMP}, s{sHKV}, 20\ns_add_u32 s{sOFF2}, s{sOFF2}, s{sTMP}")
        e(f"s_and_b32 s{sTMP}, s{sIDX}, 3\ns_lshl_b32 s{sTMP}, s{sTMP}, 16\ns_add_u32 s{sOFF2}, s{sOFF2}, s{sTMP}\ns_add_u32 s{sOFF2}, s{sOFF2}, 0xC0000")
        e(f"s_lshl_b32 s{sTMP2}, s{sTMP2}, 2\ns_add_u32 s{sSTEP}, s{sTMP2}, s{sI}\ns_lshl_b32 s{sSTEP}, s{sSTEP}, 11\ns_add_u32 s{sOFF}, s{sOFF2}, s{sSTEP}")
    kv_step = f"s_add_u32 s{sSTEP}, s{sSTEP}, 8192\ns_and_b32 s{sSTEP}, s{sSTEP}, 0xffff\ns_add_u32 s{sOFF}, s{sOFF2}, s{sSTEP}"
    kv_base()
    e(f"v_mov_b32 v{vZ}, 0\nv_mov_b32 v{vONE}, 1")
    e("s_waitcnt lgkmcnt(0)")
    srd(SRD_A, sK, 32 << 20); srd(SRD_WS, sWS, WS_BYTES)
    e("s_barrier")
    loads = []
    for t in range(8):
        for hh in range(2):
            loads.append((kv_step if (t and not hh) else "", f"buffer_load_dwordx4 {q(KD + 8*t + 4*hh)}, v{vA}, {A}, s{sOFF} offen offset:{hh*128}{pf}"))
    stream(loads, win[1], [(nq, F_GQ), (nh if hello == 'vec' else None, F_GH)])
    e(f"s_waitcnt vmcnt({ho[1]})")
    flag_add(GO_V, wait=False)
    ts(1)
    e(f"v_and_b32 v2, 7, v1\nv_mul_u32_u24 v{vA}, 272, v2\nv_lshrrev_b32 v2, 3, v1\nv_lshl_add_u32 v{vA}, v2, 4, v{vA}")
    e(f"v_lshlrev_b32 v{vB}, 4, v1\ns_lshl_b32 s{sTMP}, s{sI}, 11\nv_add_u32 v{vB}, s{sTMP}, v{vB}")
    e(f"s_mov_b32 s{sSC}, 0x3e0293ee")
    if dry[0]: dry_run("L_Kdry", "L_Kback"); e(f"s_setprio {prio[1]}")
    e("s_waitcnt vmcnt(0)")
    ts(2)
    if cut:
        dbg_out(); e("s_endpgm")
    spin(F_Q, 4, 2, sleep=1)
    ts(3)
    e("L_Kdry:")
    e(f"ds_read_b128 {q(QO)}, v{vA} offset:{QLDS}\nds_read_b128 {q(QO+4)}, v{vA} offset:{QLDS+128}")
    e("s_waitcnt lgkmcnt(0)")
    for t in range(8): mfma(S + 4*t, KD + 8*t, QO, None)
    for t in range(8): mfma(S + 4*t, KD + 8*t + 4, QO + 4, S + 4*t)
    e("s_nop 1")
    for t in range(8):
        for u in range(2):
            e(f"v_add_f32_dpp v{KD + 2*t + u}, v{S + 4*t + 2*u + 1}, v{S + 4*t + 2*u} row_ror:8 {dpp}")
    e(f"v_max3_f32 v20, v{KD}, v{KD+1}, v{KD+2}")
    for k in range(3, 15, 2): e(f"v_max3_f32 v20, v20, v{KD+k}, v{KD+k+1}")
    e(f"v_max_f32 v20, v20, v{KD+15}")
    def allred(v, t, op):
        e(f"v_mov_b32 v{t}, v{v}\ns_nop 1\nv_permlane32_swap_b32 v{v}, v{t}\nv_{op}_f32 v{v}, v{v}, v{t}")
        e(f"v_mov_b32 v{t}, v{v}\ns_nop 1\nv_permlane16_swap_b32 v{v}, v{t}\nv_{op}_f32 v{v}, v{v}, v{t}")
    allred(20, 21, "max")
    e(f"v_mul_f32 v20, s{sSC}, v20")
    for k in range(16): e(f"v_fma_f32 v{KD+k}, v{KD+k}, s{sSC}, -v20")
    for k in range(16): e(f"v_exp_f32 v{KD+k}, v{KD+k}")
    e("s_nop 0")
    for k in range(8): e(f"v_cvt_pk_bf16_f32 v{24+k}, v{KD+2*k}, v{KD+2*k+1}")
    e(f"ds_write_b128 v{vB}, {q(24)} offset:{PLDS}\nds_write_b128 v{vB}, {q(28)} offset:{PLDS+1024}")
    for st in (8, 4, 2, 1):
        for k in range(st): e(f"v_add_f32 v{KD+k}, v{KD+k}, v{KD+st+k}")
    e(f"v_mov_b32 v21, v{KD}")
    allred(21, 22, "add")
    e(f"v_lshlrev_b32 v2, 3, v1\ns_lshl_b32 s{sTMP}, s{sI}, 6\nv_add_u32 v2, s{sTMP}, v2")
    e(f"s_and_b64 exec, {FULL}, 0xff")
    e(f"ds_write_b64 v2, v[20:21] offset:{STLDS}")
    flag_add(F_P, wait=False)
    ts(4)
    e(f"s_add_u32 s{sB}, s{sI}, 4")
    e("s_branch L_G")

    VD, ACC, TV, PO, G = 4, 68, 100, 108, 122
    e("L_V:")
    e(f"s_setprio {prio[2]}")
    e(f"v_lshlrev_b32 v{vA}, 4, v1")
    kv_base()
    e(f"v_mov_b32 v{vZ}, 0\nv_mov_b32 v{vONE}, 1")
    e("s_waitcnt lgkmcnt(0)")
    srd(SRD_A, sV, 32 << 20); srd(SRD_WS, sWS, WS_BYTES)
    e("s_barrier")
    if dry[1]:
        e(f"s_mov_b32 s54, s{sOFF}\ns_mov_b32 s55, s{sOFF2}\ns_mov_b32 s{sMODE}, 1")
        dry_run("L_Vdry", "L_Vback")
        e(f"s_mov_b32 s{sOFF}, s54\ns_mov_b32 s{sOFF2}, s55")
    spin(GO_V, 4, 121, sleep=1)
    loads = []
    for k in range(16):
        loads.append((kv_step if (k and not k & 1) else "", f"buffer_load_dwordx4 {q(VD + 4*k)}, v{vA}, {A}, s{sOFF} offen offset:{(k&1)*1024}{pf}"))
    stream(loads, win[2])
    e(f"s_waitcnt vmcnt({ho[2]})")
    flag_add(GO_WO, wait=False)
    ts(1)
    if cut:
        e("s_waitcnt vmcnt(0)"); ts(3); dbg_out(); e("s_endpgm")
    e(f"s_lshl_b32 s{sTMP}, s{sI}, 11\nv_add_u32 v{vB}, s{sTMP}, v{vA}")
    e(f"v_lshrrev_b32 v2, 5, v1\nv_lshlrev_b32 v3, 3, v2\ns_lshl_b32 s{sTMP}, s{sI}, 4\nv_add_u32 v3, s{sTMP}, v3")
    spin(F_P, 4, 121)
    ts(2)
    e("L_Vdry:")
    e(f"ds_read_b32 v121, v{vZ} offset:{F_MODE}")
    e(f"ds_read_b128 {q(PO)}, v{vB} offset:{PLDS}\nds_read_b128 {q(PO+4)}, v{vB} offset:{PLDS+1024}")
    for w in range(4): e(f"ds_read_b64 v[{TV+2*w}:{TV+2*w+1}], v3 offset:{STLDS + 64*w}")
    e(f"v_lshlrev_b32 v2, 6, v2\nv_and_b32 v126, 3, v1\nv_lshl_add_u32 v2, v126, 4, v2\nv_lshlrev_b32 v{vA}, 3, v1")
    e(f"s_lshl_b32 s{sOFF2}, s{sGRP}, 2\ns_add_u32 s{sOFF2}, s{sOFF2}, s{sI}\ns_lshl_b32 s{sOFF2}, s{sOFF2}, 5\ns_add_u32 s{sOFF2}, s{sOFF2}, s{sIDX}")
    e(f"s_lshl_b32 s{sOFF}, s{sOFF2}, 7\ns_add_u32 s{sOFF}, s{sOFF}, {S_BASE}")
    e("s_waitcnt lgkmcnt(0)")
    e(f"v_readfirstlane_b32 s{sMODE}, v121")
    e(f"v_max3_f32 v126, v{TV}, v{TV+2}, v{TV+4}\nv_max_f32 v126, v126, v{TV+6}")
    for w in range(4): e(f"v_sub_f32 v{G+w}, v{TV+2*w}, v126")
    for w in range(4): e(f"v_exp_f32 v{G+w}, v{G+w}")
    e(f"s_nop 0\nv_mul_f32 v127, v{G}, v{TV+1}")
    for w in range(1, 4): e(f"v_fmac_f32 v127, v{G+w}, v{TV+2*w+1}")
    e(f"v_log_f32 v{TV}, v127\nv_rcp_f32 v127, v127\ns_nop 0\nv_add_f32 v{TV}, v{TV}, v126")
    for w in range(4): e(f"v_mul_f32 v{G+w}, v{G+w}, v127")
    e(f"v_min_u32 v{TV}, -2, v{TV}")
    for r in range(1, 4): e(f"v_mov_b32 v{TV+r}, v{TV}")
    with skip():
        e("s_mov_b32 exec_lo, 15\ns_mov_b32 exec_hi, 15")
        store_by_mode("buffer_store_dwordx4", q(TV), 2)
        e("s_mov_b64 exec, -1")
    part_addrs(3)
    e(f"s_lshl_b32 s{sOFF}, s{sOFF2}, 9\ns_add_u32 s{sOFF}, s{sOFF}, {O_BASE}")
    if ho[2] > 8: e(f"s_waitcnt vmcnt(9)")
    pingpong(VD, PO, ACC, TV)
    for ip in range(4):
        e(f"s_waitcnt vmcnt({7 - 2*ip})")
        if ip < 3:
            for j in range(8): perm(VD + 4*j + ip, VD + 32, j, ip)
    ts(3); tc(6)
    finish(last_block(VD + 32, VD, PO + 4, ACC), ACC)
    tc(7)
    flag_add(F_O1, wait=False)
    with skip(): spin(F_O1, 4, 121)
    for w in range(4): e(f"ds_read_b128 {q(VD + 4*w)}, v3 offset:{PART + w*4480}")
    e("s_waitcnt lgkmcnt(0)")
    for r in range(4): e(f"v_mul_f32 v{VD+r}, v{G}, v{VD+r}")
    for w in range(1, 4):
        for r in range(4): e(f"v_fmac_f32 v{VD+r}, v{G+w}, v{VD+4*w+r}")
    pack(VD, VD)
    tc(9)
    if dry[1]: e("s_cbranch_execz L_Vback")
    store_by_mode("buffer_store_dwordx2", d2(VD), vA)
    flag_add(F_O2, wait=False)
    ts(4)
    dbg_out()
    e("s_endpgm")

    WD, T0, OO = 4, 68, 100
    e("L_WO:")
    e(f"s_setprio {prio[3]}")
    e(f"v_mov_b32 v{vZ}, 0\nv_lshlrev_b32 v2, 2, v1")
    e("s_mov_b64 exec, 0xffff")
    e(f"ds_write_b32 v2, v{vZ}")
    e("s_mov_b64 exec, -1")
    e("s_waitcnt lgkmcnt(0)")
    epoch_load()
    srd(SRD_WS, sWS, WS_BYTES)
    e(f"s_cmp_lg_u32 s{sI}, {3 if hello else 7}\ns_cbranch_scc1 L_nohello")
    e(f"s_mov_b32 s{sMODE}, 1")
    for r in range(4): e(f"v_mov_b32 v{4+r}, -1")
    e(f"v_lshrrev_b32 v2, 4, v1\nv_and_b32 v3, 15, v1\nv_lshlrev_b32 v3, 4, v3\nv_lshl_add_u32 v8, v2, 10, v3")
    e(f"v_lshrrev_b32 v2, 5, v1\nv_and_b32 v3, 31, v1\nv_lshlrev_b32 v3, 4, v3\nv_lshl_add_u32 v9, v2, 14, v3")
    e(f"v_bfe_u32 v2, v1, 3, 2\nv_and_b32 v11, 7, v1\nv_lshlrev_b32 v11, 4, v11\nv_lshl_add_u32 v10, v2, 12, v11")
    e(f"s_lshl_b32 s54, s{sGRP}, 3\ns_lshr_b32 s{sTMP}, s{sIDX}, 2\ns_add_u32 s54, s54, s{sTMP}\ns_lshl_b32 s54, s54, 5\ns_and_b32 s{sTMP}, s{sIDX}, 3\ns_add_u32 s54, s54, s{sTMP}")
    e(f"s_lshl_b32 s54, s54, 8\ns_add_u32 s54, s54, {Q_BASE}\ns_add_u32 s55, s54, 4096")
    e(f"s_lshl_b32 s{sTMP}, s{sGRP}, 7\ns_add_u32 s{sTMP}, s{sTMP}, s{sIDX}\ns_lshl_b32 s56, s{sTMP}, 9\ns_add_u32 s56, s56, {O_BASE}\ns_add_u32 s57, s56, 32768")
    e(f"s_lshl_b32 s{sTMP2}, s{sTMP}, 7\ns_add_u32 s{sTMP2}, s{sTMP2}, {S_BASE}")
    e(f"s_lshl_b32 s{sOFF2}, s{sGRP}, 12\ns_add_u32 s{sOFF2}, s{sOFF2}, {H_BASE}")
    def clears(p):
        e(f"buffer_store_dwordx4 {q(4)}, v8, {WS}, s54 offen {p}\nbuffer_store_dwordx4 {q(4)}, v8, {WS}, s55 offen {p}")
        e(f"buffer_store_dwordx4 {q(4)}, v9, {WS}, s56 offen {p}\nbuffer_store_dwordx4 {q(4)}, v9, {WS}, s57 offen {p}")
        e(f"s_mov_b32 exec_hi, 0\nbuffer_store_dwordx4 {q(4)}, v10, {WS}, s{sTMP2} offen {p}\ns_mov_b32 exec_hi, -1")
    clears(opol)
    e(f"s_getreg_b32 s{sSC}, hwreg(HW_REG_XCC_ID, 0, 4)")
    e("s_waitcnt lgkmcnt(0)")
    tag_setup()
    e(f"s_add_u32 s{sSC}, s{sSC}, s{sT}")
    e("L_hello:")
    for r in range(4): e(f"v_mov_b32 v{12+r}, s{sSC}")
    e(f"s_lshl_b32 s{sOFF}, s{sIDX}, 7\ns_add_u32 s{sOFF}, s{sOFF}, s{sOFF2}")
    e("s_waitcnt vmcnt(0)\ns_mov_b64 exec, 0xff")
    e(f"buffer_store_dwordx4 {q(12)}, v11, {WS}, s{sOFF} offen sc1\ns_mov_b64 exec, -1")
    e(f"s_cmp_eq_u32 s{sMODE}, 2\ns_cbranch_scc1 L_hpoll0")
    e("s_barrier")
    if hello == "vec":
        if nh: spin(F_GH, 4, 16, sleep=1)
        e("L_hpoll0:")
        e(f"v_and_b32 v16, 31, v1\nv_lshlrev_b32 v16, 7, v16\ns_mov_b32 s{sCNT}, 0x4000")
        e("L_hpoll:")
        e(f"buffer_load_dword v17, v16, {WS}, s{sOFF2} offen sc1\ns_waitcnt vmcnt(0)")
        e(f"v_cmp_ne_u32 s[10:11], s{sSC}, v17\nv_subrev_u32 v17, s{sT}, v17\nv_cmp_lt_u32 vcc, 15, v17")
        e(f"s_or_b32 s{sH}, s10, s11\ns_cbranch_vccz L_hall")
        e(f"s_sleep 8\ns_sub_u32 s{sCNT}, s{sCNT}, 1\ns_cbranch_scc0 L_hpoll\ns_endpgm")
    else:
        e("L_hpoll0:")
        e(f"s_add_u32 s10, s{sWS}, s{sOFF2}\ns_addc_u32 s11, s{sWS+1}, 0\ns_mov_b32 s{sCNT}, 0x4000")
        e("L_hpoll:")
        e(f"s_mov_b32 s{sB}, 0\ns_mov_b32 s{sH}, 0")
        for half in range(1):
            for k in range(32): e(f"s_load_dword s{HS+k}, s[10:11], {k*128} glc")
            e("s_waitcnt lgkmcnt(0)")
            for k in range(32):
                e(f"s_xor_b32 s{sTMP}, s{HS+k}, s{sSC}\ns_or_b32 s{sH}, s{sH}, s{sTMP}\ns_sub_u32 s{sTMP}, s{HS+k}, s{sT}\ns_or_b32 s{sB}, s{sB}, s{sTMP}")
        e(f"s_cmp_lt_u32 s{sB}, 16\ns_cbranch_scc1 L_hall")
        e(f"s_sub_u32 s{sCNT}, s{sCNT}, 1\ns_cbranch_scc0 L_hpoll\ns_endpgm")
    e("L_hall:")
    e(f"s_cmp_eq_u32 s{sMODE}, 2\ns_cbranch_scc1 L_hdone\ns_cmp_eq_u32 s{sH}, 0\ns_cbranch_scc1 L_hdone")
    e(f"s_mov_b32 s{sMODE}, 2\ns_add_u32 s{sOFF2}, s{sOFF2}, 0x8000")
    clears("sc1")
    e("s_branch L_hello")
    e("L_hdone:")
    e(f"v_mov_b32 v4, s{sMODE}\nds_write_b32 v{vZ}, v4 offset:{F_MODE}")
    if dbg:
        for k in range(2, 12): e(f"s_mov_b32 s{TS0+2*k}, 0")
    ts(7); cnt(9)
    e("s_branch L_wosetup")
    e("L_nohello:")
    if warm:
        e(f"s_getpc_b64 s[54:55]\nL_pc:\ns_sub_u32 s54, s54, L_pc-{KN}\ns_subb_u32 s55, s55, 0")
        e(f"s_lshl_b32 s{sTMP}, s{sI}, 5\ns_add_u32 s{sTMP}, s{sTMP}, s{sIDX}\ns_lshl_b32 s56, s{sTMP}, 7\ns_min_u32 s56, s56, L_end-{KN}")
        e("s_load_dword s57, s[54:55], s56")
    e("s_waitcnt lgkmcnt(0)")
    tag_setup()
    e("s_barrier")
    e("L_wosetup:")
    e(f"v_lshrrev_b32 v2, 4, v1\nv_and_b32 v3, 15, v1\nv_lshlrev_b32 v3, 4, v3\nv_lshl_add_u32 v{vA}, v2, 11, v3\nv_lshl_add_u32 v125, v2, 12, v3")
    e(f"s_lshr_b32 s{sTMP}, s{sIDX}, 3\ns_lshl_b32 s{sB}, s{sHKV}, 2\ns_add_u32 s{sB}, s{sB}, s{sTMP}\ns_and_b32 s{sSC}, s{sIDX}, 7")
    e(f"s_lshl_b32 s{sOFF}, s{sB}, 19\ns_lshl_b32 s{sTMP}, s{sI}, 13\ns_add_u32 s{sOFF}, s{sOFF}, s{sTMP}\ns_lshl_b32 s{sTMP}, s{sSC}, 8\ns_add_u32 s{sOFF}, s{sOFF}, s{sTMP}")
    e(f"v_and_b32 v3, 7, v1\nv_mul_u32_u24 v123, 528, v3\nv_lshl_add_u32 v123, v2, 4, v123\ns_lshl_b32 s{sTMP}, s{sI}, 7\nv_add_u32 v123, s{sTMP}, v123")
    e(f"v_bfe_u32 v122, v1, 3, 1\nv_lshlrev_b32 v122, 6, v122\nv_lshl_add_u32 v122, v2, 4, v122\nv_lshl_add_u32 v122, v3, 1, v122")
    part_addrs(3)
    e(f"v_mov_b32 v{vM}, 0xff\nv_mov_b32 v{vONE}, 1\nv_lshlrev_b32 v2, 4, v1")
    srd(SRD_A, sWO, 8 << 20); srd(SRD_B, sOUT, 32768)
    if dry[2]: dry_run("L_WOdry", "L_WOback")
    spin(GO_WO, 4, 121, sleep=1)
    loads = [(f"s_add_u32 s{sOFF}, s{sOFF}, 32768" if n else "", f"buffer_load_dwordx4 {q(WD + 4*n)}, v{vA}, {A}, s{sOFF} offen{pf}") for n in range(16)]
    stream(loads, win[3], [(no, F_O2)])
    ts(1)
    e(f"s_lshl_b32 s{sOFF}, s{sBR}, 3\ns_add_u32 s{sOFF}, s{sOFF}, s{sSC}\ns_lshl_b32 s{sOFF}, s{sOFF}, 16\ns_add_u32 s{sOFF}, s{sOFF}, {R_BASE}")
    e(f"s_lshl_b32 s{sTMP}, s{sB}, 12\ns_add_u32 s{sTMP2}, s{sOFF}, s{sTMP}")
    e(f"s_lshl_b32 s{sTMP}, s{sI}, 14\ns_add_u32 s{sOFF}, s{sOFF}, s{sTMP}\ns_lshl_b32 s{sTMP}, s{sB}, 8\ns_add_u32 s{sOFF}, s{sOFF}, s{sTMP}")
    e(f"s_lshr_b32 s{sOFF2}, s{sB}, 1\ns_lshl_b32 s{sOFF2}, s{sOFF2}, 12\ns_lshl_b32 s{sTMP}, s{sBR}, 11\ns_add_u32 s{sOFF2}, s{sOFF2}, s{sTMP}")
    e(f"s_lshl_b32 s{sTMP}, s{sSC}, 8\ns_add_u32 s{sOFF2}, s{sOFF2}, s{sTMP}\ns_and_b32 s{sTMP}, s{sB}, 1\ns_lshl_b32 s{sTMP}, s{sTMP}, 7\ns_add_u32 s{sOFF2}, s{sOFF2}, s{sTMP}")
    e(f"s_mov_b32 s{sCNT}, 0x4000")
    for blk in range(2):
        for ip in range(4):
            e(f"s_waitcnt vmcnt({14 - 8*blk - 2*ip})")
            for j in range(8): perm((T0 if blk == 0 else WD) + 4*j + ip, WD + 32*blk, j, ip)
    ts(2)
    if cut:
        dbg_out(); e("s_endpgm")
    e("s_setprio 3\ns_barrier")
    ts(3)
    e("L_WOdry:")
    tc(6)
    e(f"ds_read_b128 {q(OO)}, v123 offset:{OLDS}\nds_read_b128 {q(OO+4)}, v123 offset:{OLDS+64}")
    AC = WD + 32
    e("s_waitcnt lgkmcnt(0)")
    tc(7)
    m = []
    for j in JORD: m += [(mfma_s(AC + 4*j, T0 + 4*j, OO, None), None), (mfma_s(AC + 4*j, WD + 4*j, OO + 4, AC + 4*j), j)]
    finish(m, AC)
    e("s_waitcnt lgkmcnt(0)")
    tc(9)
    with skip(): e("s_barrier")
    for w in range(4): e(f"ds_read_b128 {q(T0 + 4*w)}, v3 offset:{PART + w*4480}")
    e("s_waitcnt lgkmcnt(0)")
    for st in (8, 4):
        for k in range(st): e(f"v_add_f32 v{T0+k}, v{T0+k}, v{T0+st+k}")
    tag_insert(T0)
    tc(11)
    e("s_cbranch_execz L_rgot")
    e(f"buffer_store_dwordx4 {q(T0)}, v125, {WS}, s{sOFF} offen sc1")
    ts(4)
    e(f"s_cmp_lg_u32 s{sI}, 0\ns_cbranch_scc1 L_fin")
    if rdelay: e(f"s_sleep {rdelay}")
    if rack: e("s_waitcnt vmcnt(0)")
    e("s_branch L_rpoll")
    e("L_rretry:")
    retry(0)
    e("L_rpoll:")
    for k in range(4): e(f"buffer_load_dwordx4 {q(12+4*k)}, v2, {WS}, s{sTMP2} offen offset:{1024*k} sc1")
    e("L_rgot:\ns_waitcnt vmcnt(0)")
    tag_check([12, 16, 20, 24], 28, "L_rretry")
    for st in (8, 4):
        for k in range(st): e(f"v_add_f32 v{12+k}, v{12+k}, v{12+st+k}")
    e("s_nop 1\nv_permlane32_swap_b32 v12, v14\nv_permlane32_swap_b32 v13, v15")
    e("v_add_f32 v12, v12, v14\nv_add_f32 v13, v13, v15\ns_nop 1\nv_permlane16_swap_b32 v12, v13\nv_add_f32 v12, v12, v13")
    e("v_cvt_pk_bf16_f32 v12, v12, v12")
    if dry[2]: e("s_cbranch_execz L_WOback")
    e(f"buffer_store_short v12, v122, {B}, s{sOFF2} offen")
    ts(5); cnt(8)
    e(f"s_or_b32 s{sTMP}, s{sHKV}, s{sIDX}\ns_cmp_lg_u32 s{sTMP}, 0\ns_cbranch_scc1 L_fin")
    e(f"s_lshl_b32 s{sTMP}, s{sBR}, 8\nv_mov_b32 v4, s{sT}\nv_mov_b32 v5, 0\ns_mov_b64 exec, 1")
    e(f"buffer_store_dword v4, v5, {WS}, s{sTMP} offen sc1")
    e("L_fin:")
    if dbg: e("s_nop 1")
    dbg_out()
    e("L_end:\ns_endpgm")
    e(f""".section .rodata,"a"
.p2align 6
.amdhsa_kernel {KN}
  .amdhsa_next_free_vgpr 128
  .amdhsa_next_free_sgpr 96
  .amdhsa_accum_offset 128
  .amdhsa_group_segment_fixed_size 0
  .amdhsa_kernarg_size 104
  .amdhsa_user_sgpr_count 2
  .amdhsa_user_sgpr_kernarg_segment_ptr 1
  .amdhsa_system_sgpr_workgroup_id_x 1
.end_amdhsa_kernel""")
    return "\n".join(o) + "\n"

if __name__ == "__main__":
    kw = eval("dict(" + (sys.argv[2] if len(sys.argv) > 2 else "") + ")")
    open(sys.argv[1], "w").write(gen(**kw))
```

```python
import sys
KN = "concat_heads__sliding_block_cached__sliding_block_cached__decode_kernel"
REF = "concat_heads__sliding_block_cached__sliding_block_cached__decode.s.ref"

H_BASE = 0x1000
S_BASE = 0x20000
Q_BASE = 0x80000
O_BASE = 0x100000
R_BASE = 0x200000
DBG_BASE = 0x800000
WS_BYTES = 0x1000000
F_Q1, F_Q, F_P, F_O1, F_O2, F_GQ, GO_V, GO_WO, F_MODE, F_GH, F_CLR = 0, 4, 8, 12, 16, 20, 24, 28, 32, 36, 40
QLDS = 64
PLDS = 2304
STLDS = 10496
OLDS = 10752
PART = 15360
LDS_BYTES = PART + 4 * 4480
sGRP, sIDX, sBR, sHKV, sI, sROLE = 3, 4, 5, 6, 7, 8
sX, sK, sV, sWQ, sWO, sOUT, sWS = 12, 14, 16, 18, 20, 22, 24
sFULL = 26
SRD_A, SRD_WS, SRD_B = 28, 32, 36
sT = 40
sSELLO, sSELHI = 44, 45
sOFF, sTMP, sTMP2, sCNT, sB, sSC, sOFF2, sH, sSTEP, sMODE = 46, 47, 48, 49, 50, 51, 52, 53, 58, 59
TS0 = 60
HS = 64

def gen(pol="nt", dbg=False, prio=(3, 2, 2, 1), gprio=2, qsleep=2, osleep=0, win=(6, 6, 6, 6), ho=(5, 5, 5),
        nq=16, no=8, cut=0, warm=True, rdelay=0, rack=True, xperm=False, dry=(0, 0, 0), wb=False, opol="", hello="vec", nh=8, kvl=(16, 13, 11), kvr="b", early=True, clrflag=False, diag="", outpol="", wqj=None, woj=None, kvlin=0, xpos=6, xmask=True):
    o = []
    def e(s): o.append(s)
    pf = (" " + pol) if pol else ""
    dpp = "row_mask:0xf bank_mask:0xf"
    A = f"s[{SRD_A}:{SRD_A+3}]"; WS = f"s[{SRD_WS}:{SRD_WS+3}]"; B = f"s[{SRD_B}:{SRD_B+3}]"
    FULL = f"s[{sFULL}:{sFULL+1}]"
    vZ, vONE, vA, vM, vB = 116, 117, 118, 119, 120
    uid = [0]
    def lab(n):
        uid[0] += 1; return f"L_{n}_{uid[0]}"
    def full_exec(): e(f"s_mov_b64 exec, {FULL}")
    class skip:
        def __enter__(self): self.l = lab("skip"); e(f"s_cbranch_execz {self.l}")
        def __exit__(self, *a): e(f"{self.l}:")
    def dry_run(entry, back):
        e(f"s_mov_b64 {FULL}, 0\ns_mov_b64 exec, 0\ns_branch {entry}\n{back}:\ns_mov_b64 {FULL}, -1\ns_mov_b64 exec, -1")
    lite = [dbg == 6]
    def ts(k):
        if dbg and not (lite[0] and k): e(f"s_memrealtime s[{TS0+2*k}:{TS0+2*k+1}]")
    def tc(k):
        if dbg == 5: e(f"s_memtime s[{TS0+2*k}:{TS0+2*k+1}]")
    def cnt(k):
        if dbg and not lite[0]: e(f"s_sub_u32 s{TS0+2*k}, 0x4000, s{sCNT}")
    def srd(d, base, nbytes):
        e(f"s_mov_b32 s{d}, s{base}\ns_mov_b32 s{d+1}, s{base+1}\ns_mov_b32 s{d+2}, {nbytes}\ns_mov_b32 s{d+3}, 0x20000")
    def q(a): return f"v[{a}:{a+3}]"
    def d2(a): return f"v[{a}:{a+1}]"
    def flag_add(off, wait=True):
        if wait: e("s_waitcnt lgkmcnt(0)")
        e(f"s_and_b64 exec, {FULL}, 1")
        e(f"ds_add_u32 v{vZ}, v{vONE} offset:{off}")
        full_exec()
    def spin(off, n, vt, sleep=0):
        l = lab("spin"); d = lab("spun")
        e(f"s_mov_b32 s{sCNT}, 0x80000")
        e(f"{l}:")
        e(f"ds_read_b32 v{vt}, v{vZ} offset:{off}")
        e("s_waitcnt lgkmcnt(0)")
        e(f"v_readfirstlane_b32 s{sTMP}, v{vt}")
        e(f"s_cmp_ge_u32 s{sTMP}, {n}")
        e(f"s_cbranch_scc1 {d}")
        if sleep: e(f"s_sleep {sleep}")
        e(f"s_sub_u32 s{sCNT}, s{sCNT}, 1")
        e(f"s_cbranch_scc0 {l}")
        e("s_endpgm")
        e(f"{d}:")
    def tag_setup():
        e(f"s_add_u32 s{sT}, s{sT}, 0x9E3779B1")
        e(f"s_lshr_b32 s{sT+1}, s{sT}, 7\ns_lshr_b32 s{sT+2}, s{sT}, 14\ns_lshr_b32 s{sT+3}, s{sT}, 21")
    def epoch_load():
        e(f"s_lshl_b32 s9, s{sBR}, 8")
        e(f"s_load_dword s{sT}, s[{sWS}:{sWS+1}], s9")
    def tag_insert(v):
        for r in range(4): e(f"v_bfi_b32 v{v+r}, v{vM}, s{sT+r}, v{v+r}")
    def tag_check(regs, vacc, retry):
        first = True
        for v in regs:
            for r in range(4):
                if first: e(f"v_xor_b32 v{vacc}, s{sT+r}, v{v+r}"); first = False
                else: e(f"v_bitop3_b32 v{vacc}, v{vacc}, v{v+r}, s{sT+r} bitop3:0xf6")
        e(f"v_and_b32 v{vacc}, 0x7ff, v{vacc}")
        e(f"v_cmp_ne_u32 vcc, 0, v{vacc}")
        e(f"s_cbranch_vccnz {retry}")
    def pack(dst, src):
        e(f"v_cvt_pk_bf16_f32 v{dst}, v{src}, v{src+1}\nv_cvt_pk_bf16_f32 v{dst+1}, v{src+2}, v{src+3}")
        e(f"v_min_u32 v{dst}, -2, v{dst}\nv_min_u32 v{dst+1}, -2, v{dst+1}")
    def ones_check(regs, vacc, retry):
        regs = list(regs)
        e(f"v_max3_u32 v{vacc}, v{regs[0]}, v{regs[1]}, v{regs[2]}")
        k = 3
        while k + 1 < len(regs): e(f"v_max3_u32 v{vacc}, v{vacc}, v{regs[k]}, v{regs[k+1]}"); k += 2
        if k < len(regs): e(f"v_max_u32 v{vacc}, v{vacc}, v{regs[k]}")
        e(f"v_cmp_eq_u32 vcc, -1, v{vacc}\ns_cbranch_vccnz {retry}")
    def unpack(dst, src):
        e(f"v_lshlrev_b32 v{dst}, 16, v{src}\nv_and_b32 v{dst+1}, 0xffff0000, v{src}")
    def store_by_mode(op, data, va):
        g, d = lab("wt"), lab("st")
        e(f"s_cmp_eq_u32 s{sMODE}, 2\ns_cbranch_scc1 {g}")
        e(f"{op} {data}, v{va}, {WS}, s{sOFF} offen {opol}\ns_branch {d}")
        e(f"{g}:\n{op} {data}, v{va}, {WS}, s{sOFF} offen sc1\n{d}:")
    def retry(sleep):
        e(f"s_sub_u32 s{sCNT}, s{sCNT}, 1\ns_cbranch_scc1 L_end")
        if sleep: e(f"s_sleep {sleep}")
    def perm_s(dst, src, j, ip):
        u, p = j >> 1, j & 1
        return f"v_perm_b32 v{dst}, v{src + (2*ip+1)*4 + u}, v{src + (2*ip)*4 + u}, s{sSELHI if p else sSELLO}"
    def perm(*a): e(perm_s(*a))
    def mfma_s(d, a, b, c):
        return f"v_mfma_f32_16x16x32_bf16 {q(d)}, {q(a)}, {q(b)}, {q(c) if c is not None else 0}"
    def mfma(*a): e(mfma_s(*a))
    def pingpong(src, bop, acc, T):
        for ip in range(4): perm(T + ip, src, 0, ip)
        for j in range(8):
            if j < 7:
                for ip in range(4): perm(T + 4*((j+1) & 1) + ip, src, j + 1, ip)
            else:
                e("s_nop 0")
            mfma(acc + 4*j, T + 4*(j & 1), bop, None)
    JORD = (0, 4, 1, 5, 2, 6, 3, 7)
    def finish(main, acc, accs=None):
        slot = 0; done = {}; todo = []
        accs = accs or [acc + 4*j for j in range(8)]
        def emit(t):
            nonlocal slot; e(t); slot += 1
        def side(n):
            k = 0
            while k < n and todo and todo[0][0] <= slot:
                emit(todo.pop(0)[1]); k += 1
        for t, j in main:
            emit(t)
            if j is not None and j >= 4:
                for r in range(4):
                    todo.append((slot + 8, f"v_mov_b32_dpp v{accs[j-4] + r}, v{accs[j] + r} row_ror:8 row_mask:0xf bank_mask:0xc"))
                todo.append((slot + 8, f"ds_write_b128 v{vB}, {q(accs[j-4])} offset:{PART + (j-4)*1120}"))
            if t.startswith("v_mfma"): side(2)
        while todo:
            if todo[0][0] > slot:
                g = todo[0][0] - slot; e(f"s_nop {g-1}"); slot += g
            side(1)
    def last_block(src, dst, bop, acc, accs=None):
        accs = accs or [acc + 4*j for j in range(8)]
        m = [(perm_s(dst + 4*JORD[0] + 3, src, JORD[0], 3), None), (perm_s(dst + 4*JORD[1] + 3, src, JORD[1], 3), None)]
        for k, j in enumerate(JORD):
            if k < 6: m.append((perm_s(dst + 4*JORD[k+2] + 3, src, JORD[k+2], 3), None))
            m.append((mfma_s(accs[j], dst + 4*j, bop, accs[j]), j))
        return m
    def part_addrs(vr):
        e(f"v_lshrrev_b32 v2, 4, v1\nv_mul_u32_u24 v2, 272, v2\nv_and_b32 v{vr}, 15, v1\nv_lshl_add_u32 v2, v{vr}, 4, v2")
        e(f"s_mul_i32 s{sTMP}, s{sI}, 4480\nv_add_u32 v{vB}, s{sTMP}, v2")
        e(f"v_and_b32 v{vr}, 3, v1\nv_mul_u32_u24 v{vr}, 1120, v{vr}\nv_bfe_u32 v2, v1, 3, 2\nv_mul_u32_u24 v2, 272, v2\nv_add_u32 v{vr}, v{vr}, v2")
        e(f"v_bfe_u32 v2, v1, 2, 1\nv_lshl_add_u32 v{vr}, v2, 7, v{vr}\nv_lshrrev_b32 v2, 5, v1\nv_lshl_add_u32 v{vr}, v2, 4, v{vr}")
        e(f"s_lshl_b32 s{sTMP}, s{sI}, 5\nv_add_u32 v{vr}, s{sTMP}, v{vr}")
    def stream(loads, w, sig=None):
        for n, (pre, ld) in enumerate(loads):
            if pre: e(pre)
            if n >= w: e(f"s_waitcnt vmcnt({w-1})")
            e(ld)
            for sg in (sig or ()):
                if sg[0] == n + 1: flag_add(sg[1], wait=False)
    def dbg_out():
        if not dbg or lite[0]: return
        e("s_waitcnt lgkmcnt(0)\ns_mov_b64 exec, 1")
        e(f"s_lshl_b32 s{sTMP}, s{sROLE}, 2\ns_add_u32 s{sTMP}, s{sTMP}, s{sI}\ns_lshl_b32 s{sTMP2}, s2, 4\ns_add_u32 s{sTMP}, s{sTMP}, s{sTMP2}")
        e(f"s_lshl_b32 s{sTMP}, s{sTMP}, 6\ns_add_u32 s{sTMP}, s{sTMP}, {DBG_BASE}")
        for k in range(12): e(f"v_mov_b32 v{4+k}, s{TS0+2*k}")
        e(f"s_getreg_b32 s{sTMP2}, hwreg(HW_REG_XCC_ID)\nv_mov_b32 v16, s{sTMP2}\nv_mov_b32 v17, s{sCNT}\ns_getreg_b32 s{sTMP2}, hwreg(HW_REG_HW_ID)\nv_mov_b32 v18, s{sTMP2}\nv_mov_b32 v19, 0\nv_mov_b32 v2, 0")
        for k in range(4): e(f"buffer_store_dwordx4 {q(4+4*k)}, v2, {WS}, s{sTMP} offen offset:{16*k}")
        e("s_mov_b64 exec, -1")

    hdr = [l for l in open(REF).read().split("\n") if l.startswith(";") and "@launch" not in l]
    o += hdr
    e(f"; @launch grid=(256,1,1) block=(1024,1,1) lds={LDS_BYTES}")
    e('.amdgcn_target "amdgcn-amd-amdhsa--gfx950"\n.text')
    e(f".globl {KN}\n.p2align 8\n.type {KN},@function\n{KN}:")
    if dbg:
        for k in range(1, 12): e(f"s_mov_b32 s{TS0+2*k}, 0")
    ts(0)
    e("s_cmp_ge_u32 s2, 256\ns_cbranch_scc1 L_end")
    if xperm: e("s_and_b32 s3, s2, 7\ns_bfe_u32 s4, s2, 0x30003\ns_andn2_b32 s2, s2, 63\ns_lshl_b32 s3, s3, 3\ns_or_b32 s2, s2, s3\ns_or_b32 s2, s2, s4")
    e(f"s_and_b32 s{sBR}, s2, 1\ns_mul_i32 s9, s{sBR}, 40\ns_add_u32 s10, s0, s9\ns_addc_u32 s11, s1, 0")
    e(f"s_load_dwordx8 s[12:19], s[10:11], 0\ns_load_dwordx2 s[20:21], s[10:11], 32")
    e(f"s_load_dwordx2 s[22:23], s[0:1], 80\ns_load_dwordx2 s[24:25], s[0:1], 96")
    e("v_lshrrev_b32 v2, 6, v0\nv_and_b32 v1, 63, v0")
    e(f"v_readfirstlane_b32 s{sROLE}, v2")
    e(f"s_and_b32 s{sGRP}, s2, 7\ns_lshr_b32 s{sIDX}, s2, 3\ns_lshr_b32 s{sHKV}, s{sGRP}, 1")
    e(f"s_mov_b32 s{sSELLO}, 0x05040100\ns_mov_b32 s{sSELHI}, 0x07060302\ns_mov_b64 {FULL}, -1")
    e(f"s_and_b32 s{sI}, s{sROLE}, 3\ns_lshr_b32 s{sROLE}, s{sROLE}, 2")
    e(f"s_cmp_eq_u32 s{sROLE}, 1\ns_cbranch_scc1 L_K\ns_cmp_eq_u32 s{sROLE}, 2\ns_cbranch_scc1 L_V\ns_cmp_eq_u32 s{sROLE}, 3\ns_cbranch_scc1 L_WO")

    XO, W, D, T = 4, 12, 76, 108
    e(f"s_setprio {prio[0]}")
    e("v_lshrrev_b32 v2, 4, v1\nv_and_b32 v3, 15, v1")
    e(f"v_lshlrev_b32 v{vA}, 16, v2\nv_lshl_add_u32 v{vA}, v3, 4, v{vA}")
    e(f"v_and_b32 v3, 7, v1\nv_lshlrev_b32 v{vB}, 11, v3\nv_lshl_add_u32 v{vB}, v2, 4, v{vB}")
    e(f"s_lshr_b32 s{sB}, s{sIDX}, 2\ns_and_b32 s{sSC}, s{sIDX}, 3")
    e(f"s_add_u32 s{sH}, s{sI}, s{sB}\ns_and_b32 s{sH}, s{sH}, 3\ns_lshr_b32 s{sTMP2}, s{sB}, 2")
    e(f"s_lshl_b32 s{sTMP}, s{sSC}, 2\ns_add_u32 s{sTMP}, s{sTMP}, s{sH}\ns_lshl_b32 s{sTMP}, s{sTMP}, 1\ns_add_u32 s{sTMP}, s{sTMP}, s{sTMP2}")
    e(f"s_lshl_b32 s{sOFF}, s{sTMP}, 18\ns_lshl_b32 s{sOFF2}, s{sTMP}, 6\ns_xor_b32 s9, s{sOFF2}, 64")
    e(f"s_lshl_b32 s{sSTEP}, s{sTMP2}, 19\ns_sub_u32 s{sSTEP}, {25*8192}, s{sSTEP}")
    e(f"s_lshl_b32 s{sTMP}, s{sHKV}, 11\ns_add_u32 s{sOFF}, s{sOFF}, s{sTMP}\ns_lshl_b32 s{sTMP}, s{sB}, 8\ns_add_u32 s{sOFF}, s{sOFF}, s{sTMP}")
    e("s_waitcnt lgkmcnt(0)")
    srd(SRD_B, sX, 16384); srd(SRD_A, sWQ, 8 << 20)
    rots = {"h": f"s_lshr_b32 s54, s{sIDX}, 2", "idx": f"s_mov_b32 s54, s{sIDX}", "g": f"s_mov_b32 s54, s{sGRP}", "hg": f"s_lshr_b32 s54, s{sIDX}, 2\ns_add_u32 s54, s54, s{sGRP}",
            "i": f"s_lshl_b32 s54, s{sI}, 1", "ih": f"s_lshl_b32 s54, s{sI}, 1\ns_lshr_b32 s55, s{sIDX}, 2\ns_add_u32 s54, s54, s55", "2h": f"s_lshr_b32 s54, s{sIDX}, 2\ns_lshl_b32 s54, s54, 1",
            "2cg": f"s_lshl_b32 s54, s{sIDX}, 1", "2cgg": f"s_add_u32 s54, s{sIDX}, s{sGRP}\ns_lshl_b32 s54, s54, 1"}
    if wqj:
        e(rots[wqj] + f"\ns_and_b32 s54, s54, 7\ns_lshl_b32 s54, s54, 13\ns_mov_b32 s55, s{sOFF}\ns_add_u32 s{sOFF}, s55, s54\ns_add_u32 s{sSTEP}, s{sSTEP}, {7*8192}")
    loads = []
    for n in range(16):
        pre = "" if n == 0 else (f"s_add_u32 s{sOFF}, s{sOFF}, s{sSTEP}" if n == 8 else f"s_add_u32 s{sOFF}, s{sOFF}, 8192")
        if wqj and n: pre = (f"s_add_u32 s55, s55, s{sSTEP}\n" if n == 8 else "") + f"s_add_u32 s54, s54, 8192\ns_and_b32 s54, s54, 0xffff\ns_add_u32 s{sOFF}, s55, s54"
        loads.append((pre, f"buffer_load_dwordx4 {q(W + 4*n)}, v{vA}, {A}, s{sOFF} offen{pf}"))
    xm = ("s_mov_b32 exec_lo, 0x00ff00ff\ns_mov_b32 exec_hi, 0x00ff00ff", "\ns_mov_b64 exec, -1") if xmask else ("", "")
    loads[xpos:xpos] = [(xm[0], f"buffer_load_dwordx4 {q(XO)}, v{vB}, {B}, s{sOFF2} offen"), ("", f"buffer_load_dwordx4 {q(XO+4)}, v{vB}, {B}, s9 offen" + xm[1])]
    stream(loads, win[0])
    e(f"s_waitcnt vmcnt({ho[0]})")
    e("s_barrier")
    ts(1)
    srd(SRD_WS, sWS, WS_BYTES)
    e(f"v_mov_b32 v{vZ}, 0\nv_mov_b32 v{vONE}, 1")
    part_addrs(121)
    if cut == 1:
        e("s_waitcnt vmcnt(0)"); ts(2); dbg_out(); e("s_endpgm")
    e(f"v_lshrrev_b32 v2, 5, v1\nv_and_b32 v{vA}, 31, v1\nv_lshlrev_b32 v{vA}, 3, v{vA}\nv_lshl_add_u32 v122, v2, 10, v{vA}\nv_lshl_add_u32 v{vA}, v2, 13, v{vA}")
    e(f"s_lshl_b32 s{sOFF2}, s{sGRP}, 16\ns_add_u32 s{sOFF2}, s{sOFF2}, {Q_BASE}")
    e(f"s_lshl_b32 s{sOFF}, s{sB}, 2\ns_add_u32 s{sOFF}, s{sOFF}, s{sI}\ns_lshl_b32 s{sOFF}, s{sOFF}, 3\ns_add_u32 s{sOFF}, s{sOFF}, s{sSC}\ns_lshl_b32 s{sOFF}, s{sOFF}, 8\ns_add_u32 s{sOFF}, s{sOFF}, s{sOFF2}")
    e(f"v_mul_u32_u24 v2, 272, v2\nv_bfe_u32 v123, v1, 3, 2\nv_lshl_add_u32 v2, v123, 6, v2\nv_lshl_add_u32 v2, v3, 1, v2\ns_mul_i32 s{sTMP}, s{sI}, 544\nv_add_u32 v2, s{sTMP}, v2")
    if ho[0] > 8: e("s_waitcnt vmcnt(8)")
    pingpong(W, XO, D, T)
    for ip in range(4):
        e(f"s_waitcnt vmcnt({6 - 2*ip})")
        if ip < 3:
            for j in range(8): perm(W + 4*j + ip, W + 32, j, ip)
    ts(2)
    finish(last_block(W + 32, W, XO + 4, D), D)
    flag_add(F_Q1, wait=False)
    if clrflag: spin(F_CLR, 1, 123)
    spin(F_Q1, 4, 123)
    for w in range(4): e(f"ds_read_b128 {q(W + 4*w)}, v121 offset:{PART + w*4480}")
    e("s_waitcnt lgkmcnt(0)")
    for st in (8, 4):
        for k in range(st): e(f"v_add_f32 v{W+k}, v{W+k}, v{W+st+k}")
    pack(W, W)
    e(f"buffer_store_dwordx2 {d2(W)}, v122, {WS}, s{sOFF} offen {opol}")
    ts(3)
    spin(F_MODE, 1, 123, sleep=1)
    e(f"s_cmp_eq_u32 s{sTMP}, 1\ns_cbranch_scc1 L_qloc")
    e(f"buffer_store_dwordx2 {d2(W)}, v122, {WS}, s{sOFF} offen sc1\nL_qloc:")
    ts(9)
    e(f"s_lshl_b32 s{sOFF}, s{sI}, 4\ns_add_u32 s{sOFF}, s{sOFF}, s{sB}\ns_lshl_b32 s{sOFF}, s{sOFF}, 10\ns_add_u32 s{sOFF}, s{sOFF}, s{sOFF2}")
    if nq: spin(F_GQ, 4, 123, sleep=1)
    ts(7)
    e(f"s_mov_b32 s{sCNT}, 0x4000")
    e("s_branch L_qpoll")
    e("L_qretry:")
    retry(qsleep)
    e("L_qpoll:")
    for k in range(4): e(f"buffer_load_dwordx2 {d2(20+2*k)}, v{vA}, {WS}, s{sOFF} offen offset:{256*k} sc1")
    e("s_waitcnt vmcnt(0)")
    ones_check(range(20, 28), 28, "L_qretry")
    for k in range(8): unpack(32 + 2*k, 20 + k)
    for st in (8, 4):
        for k in range(st): e(f"v_add_f32 v{32+k}, v{32+k}, v{32+st+k}")
    e("v_cvt_pk_bf16_f32 v20, v32, v33\nv_cvt_pk_bf16_f32 v22, v34, v35")
    e(f"ds_write_b16 v2, v20 offset:{QLDS}\nds_write_b16_d16_hi v2, v20 offset:{QLDS+16}")
    e(f"ds_write_b16 v2, v22 offset:{QLDS+32}\nds_write_b16_d16_hi v2, v22 offset:{QLDS+48}")
    flag_add(F_Q, wait=False)
    ts(4); cnt(8)
    e(f"s_mov_b32 s{sB}, s{sI}")

    e("L_G:")
    e(f"s_setprio {gprio}")
    e(f"s_lshr_b32 s{sH}, s{sIDX}, 3")
    e(f"v_lshrrev_b32 v2, 5, v1\nv_lshlrev_b32 v4, 6, v2\nv_and_b32 v5, 3, v1\nv_lshl_add_u32 v3, v5, 7, v4")
    e(f"s_lshl_b32 s{sOFF}, s{sGRP}, 2\ns_add_u32 s{sOFF}, s{sOFF}, s{sH}\ns_lshl_b32 s{sOFF}, s{sOFF}, 3\ns_add_u32 s{sOFF}, s{sOFF}, s{sB}")
    e(f"s_lshl_b32 s{sOFF2}, s{sOFF}, 9\ns_add_u32 s{sOFF2}, s{sOFF2}, {S_BASE}")
    e(f"s_lshl_b32 s{sOFF}, s{sOFF}, 11\ns_add_u32 s{sOFF}, s{sOFF}, {O_BASE}")
    e(f"v_bfe_u32 v30, v1, 2, 1\nv_lshlrev_b32 v30, 7, v30\nv_lshl_add_u32 v30, v2, 6, v30\nv_lshl_add_u32 v30, v5, 4, v30\nv_bfe_u32 v4, v1, 3, 2\nv_lshl_add_u32 v30, v4, 2, v30")
    e(f"s_mul_i32 s{sTMP}, s{sB}, 528\nv_add_u32 v30, s{sTMP}, v30\nv_lshlrev_b32 v2, 3, v1")
    e("s_cbranch_execz L_ogot")
    spin(F_O2, 8 if no else 4, 31, sleep=1)
    ts(5)
    e(f"s_mov_b32 s{sCNT}, 0x4000")
    e("s_branch L_opoll")
    e("L_oretry:")
    retry(osleep)
    e("L_opoll:")
    e(f"buffer_load_dword v4, v3, {WS}, s{sOFF2} offen sc1")
    for k in range(4): e(f"buffer_load_dwordx2 {d2(12+2*k)}, v2, {WS}, s{sOFF} offen offset:{512*k} sc1")
    e("L_ogot:\ns_waitcnt vmcnt(4)")
    e(f"v_max_f32_dpp v6, v4, v4 quad_perm:[1,0,3,2] {dpp}\ns_nop 1")
    e(f"v_max_f32_dpp v6, v6, v6 quad_perm:[2,3,0,1] {dpp}")
    e("v_sub_f32 v6, v4, v6\nv_exp_f32 v6, v6\ns_nop 1")
    e(f"v_add_f32_dpp v7, v6, v6 quad_perm:[1,0,3,2] {dpp}\ns_nop 1")
    e(f"v_add_f32_dpp v7, v7, v7 quad_perm:[2,3,0,1] {dpp}")
    e("v_rcp_f32 v7, v7\ns_waitcnt vmcnt(0)\nv_mul_f32 v6, v6, v7")
    ones_check([4] + list(range(12, 20)), 28, "L_oretry")
    for k in range(8): unpack(32 + 2*k, 12 + k)
    for r in range(4): e(f"v_mul_f32_dpp v{32+r}, v6, v{32+r} quad_perm:[0,0,0,0] {dpp}")
    for k in range(1, 4):
        for r in range(4): e(f"v_fmac_f32_dpp v{32+r}, v6, v{32+4*k+r} quad_perm:[{k},{k},{k},{k}] {dpp}")
    e("v_cvt_pk_bf16_f32 v12, v32, v34\nv_cvt_pk_bf16_f32 v13, v33, v35")
    e(f"ds_write2_b32 v30, v12, v13 offset0:0 offset1:64" if False else f"ds_write_b32 v30, v12 offset:{OLDS}\nds_write_b32 v30, v13 offset:{OLDS+256}")
    if dry[0]: e("s_cbranch_execz L_Kback")
    ts(6); cnt(10)
    e("s_waitcnt lgkmcnt(0)\ns_barrier")
    if wb:
        e(f"s_or_b32 s{sTMP}, s{sIDX}, s{sB}\ns_cmp_lg_u32 s{sTMP}, 0\ns_cbranch_scc1 L_nowb\nbuffer_wbl2 sc1\nL_nowb:")
    dbg_out()
    e("s_endpgm")

    KD, QO, S = 4, 68, 76
    e("L_K:")
    e(f"s_setprio {prio[1]}")
    e(f"v_bfe_u32 v2, v1, 1, 1\nv_lshlrev_b32 v{vA}, 10, v2\nv_bfe_u32 v2, v1, 2, 2\nv_lshl_add_u32 v{vA}, v2, 8, v{vA}")
    e(f"v_lshrrev_b32 v2, 4, v1\nv_lshl_add_u32 v{vA}, v2, 5, v{vA}\nv_and_b32 v2, 1, v1\nv_lshl_add_u32 v{vA}, v2, 4, v{vA}")
    def kv_base():
        e(f"s_lshr_b32 s{sTMP2}, s{sIDX}, 2\ns_lshl_b32 s{sOFF2}, s{sTMP2}, 22\ns_lshl_b32 s{sTMP}, s{sHKV}, 20\ns_add_u32 s{sOFF2}, s{sOFF2}, s{sTMP}")
        e(f"s_and_b32 s{sTMP}, s{sIDX}, 3\ns_lshl_b32 s{sTMP}, s{sTMP}, {kvl[0]}\ns_add_u32 s{sOFF2}, s{sOFF2}, s{sTMP}\ns_add_u32 s{sOFF2}, s{sOFF2}, 0xC0000")
        if kvlin == 1:
            e(f"s_lshl_b32 s{sOFF2}, s{sHKV}, 5\ns_add_u32 s{sOFF2}, s{sOFF2}, s{sIDX}\ns_lshl_b32 s{sOFF2}, s{sOFF2}, 16")
        if kvlin == 2:
            e(f"s_add_u32 s{sTMP}, s{sHKV}, s{sTMP2}\ns_and_b32 s{sTMP}, s{sTMP}, 3\ns_lshl_b32 s{sTMP}, s{sTMP}, 18\ns_sub_u32 s{sOFF2}, s{sOFF2}, s{sTMP}")
        e(f"s_lshl_b32 s{sTMP}, s{sI}, {kvl[2]}\ns_add_u32 s{sOFF2}, s{sOFF2}, s{sTMP}")
        if kvr == "idx": e(f"s_and_b32 s{sTMP2}, s{sIDX}, 7")
        elif kvr == "bg": e(f"s_add_u32 s{sTMP2}, s{sTMP2}, s{sGRP}\ns_and_b32 s{sTMP2}, s{sTMP2}, 7")
        elif kvr == "b2s": e(f"s_lshl_b32 s{sTMP}, s{sIDX}, 1\ns_add_u32 s{sTMP2}, s{sTMP2}, s{sTMP}\ns_and_b32 s{sTMP2}, s{sTMP2}, 7")
        elif kvr == "none": e(f"s_mov_b32 s{sTMP2}, 0")
        e(f"s_lshl_b32 s{sSTEP}, s{sTMP2}, {kvl[1]}\ns_add_u32 s{sOFF}, s{sOFF2}, s{sSTEP}")
    kv_step = f"s_add_u32 s{sSTEP}, s{sSTEP}, {1 << kvl[1]}\ns_and_b32 s{sSTEP}, s{sSTEP}, {(8 << kvl[1]) - 1}\ns_add_u32 s{sOFF}, s{sOFF2}, s{sSTEP}"
    kv_base()
    e(f"v_mov_b32 v{vZ}, 0\nv_mov_b32 v{vONE}, 1")
    e("s_waitcnt lgkmcnt(0)")
    srd(SRD_A, sK, 32 << 20); srd(SRD_WS, sWS, WS_BYTES)
    e("s_barrier")
    loads = []
    for t in range(8):
        for hh in range(2):
            loads.append((kv_step if (t and not hh) else "", f"buffer_load_dwordx4 {q(KD + 8*t + 4*hh)}, v{vA}, {A}, s{sOFF} offen offset:{hh*128}{pf}"))
    stream(loads, win[1], [(nq, F_GQ), (nh if hello == 'vec' else None, F_GH)])
    e(f"s_waitcnt vmcnt({ho[1]})")
    flag_add(GO_V, wait=False)
    ts(1)
    e(f"v_and_b32 v2, 7, v1\nv_mul_u32_u24 v{vA}, 272, v2\nv_lshrrev_b32 v2, 3, v1\nv_lshl_add_u32 v{vA}, v2, 4, v{vA}")
    e(f"v_lshlrev_b32 v{vB}, 4, v1\ns_lshl_b32 s{sTMP}, s{sI}, 11\nv_add_u32 v{vB}, s{sTMP}, v{vB}")
    e(f"s_mov_b32 s{sSC}, 0x3e0293ee")
    if dry[0]: dry_run("L_Kdry", "L_Kback"); e(f"s_setprio {prio[1]}")
    e("s_waitcnt vmcnt(0)")
    ts(2)
    if cut:
        dbg_out(); e("s_endpgm")
    spin(F_Q, 4, 2, sleep=1)
    ts(3)
    e("L_Kdry:")
    e(f"ds_read_b128 {q(QO)}, v{vA} offset:{QLDS}\nds_read_b128 {q(QO+4)}, v{vA} offset:{QLDS+128}")
    e("s_waitcnt lgkmcnt(0)")
    for t in range(8): mfma(S + 4*t, KD + 8*t, QO, None)
    for t in range(8): mfma(S + 4*t, KD + 8*t + 4, QO + 4, S + 4*t)
    e("s_nop 1")
    for t in range(8):
        for u in range(2):
            e(f"v_add_f32_dpp v{KD + 2*t + u}, v{S + 4*t + 2*u + 1}, v{S + 4*t + 2*u} row_ror:8 {dpp}")
    e(f"v_max3_f32 v20, v{KD}, v{KD+1}, v{KD+2}")
    for k in range(3, 15, 2): e(f"v_max3_f32 v20, v20, v{KD+k}, v{KD+k+1}")
    e(f"v_max_f32 v20, v20, v{KD+15}")
    def allred(v, t, op):
        e(f"v_mov_b32 v{t}, v{v}\ns_nop 1\nv_permlane32_swap_b32 v{v}, v{t}\nv_{op}_f32 v{v}, v{v}, v{t}")
        e(f"v_mov_b32 v{t}, v{v}\ns_nop 1\nv_permlane16_swap_b32 v{v}, v{t}\nv_{op}_f32 v{v}, v{v}, v{t}")
    allred(20, 21, "max")
    e(f"v_mul_f32 v20, s{sSC}, v20")
    for k in range(16): e(f"v_fma_f32 v{KD+k}, v{KD+k}, s{sSC}, -v20")
    for k in range(16): e(f"v_exp_f32 v{KD+k}, v{KD+k}")
    e("s_nop 0")
    for k in range(8): e(f"v_cvt_pk_bf16_f32 v{24+k}, v{KD+2*k}, v{KD+2*k+1}")
    e(f"ds_write_b128 v{vB}, {q(24)} offset:{PLDS}\nds_write_b128 v{vB}, {q(28)} offset:{PLDS+1024}")
    for st in (8, 4, 2, 1):
        for k in range(st): e(f"v_add_f32 v{KD+k}, v{KD+k}, v{KD+st+k}")
    e(f"v_mov_b32 v21, v{KD}")
    allred(21, 22, "add")
    e(f"v_lshlrev_b32 v2, 3, v1\ns_lshl_b32 s{sTMP}, s{sI}, 6\nv_add_u32 v2, s{sTMP}, v2")
    e(f"s_and_b64 exec, {FULL}, 0xff")
    e(f"ds_write_b64 v2, v[20:21] offset:{STLDS}")
    flag_add(F_P, wait=False)
    ts(4)
    e(f"s_add_u32 s{sB}, s{sI}, 4")
    e("s_branch L_G")

    VD, ACC, TV, PO, G = 4, 68, 100, 108, 122
    e("L_V:")
    e(f"s_setprio {prio[2]}")
    e(f"v_lshlrev_b32 v{vA}, 4, v1")
    kv_base()
    e(f"v_mov_b32 v{vZ}, 0\nv_mov_b32 v{vONE}, 1")
    e("s_waitcnt lgkmcnt(0)")
    srd(SRD_A, sV, 32 << 20); srd(SRD_WS, sWS, WS_BYTES)
    e("s_barrier")
    if dry[1]:
        e(f"s_mov_b32 s54, s{sOFF}\ns_mov_b32 s55, s{sOFF2}\ns_mov_b32 s{sMODE}, 1")
        dry_run("L_Vdry", "L_Vback")
        e(f"s_mov_b32 s{sOFF}, s54\ns_mov_b32 s{sOFF2}, s55")
    spin(GO_V, 4, 121, sleep=1)
    loads = []
    for k in range(16):
        loads.append((kv_step if (k and not k & 1) else "", f"buffer_load_dwordx4 {q(VD + 4*k)}, v{vA}, {A}, s{sOFF} offen offset:{(k&1)*1024}{pf}"))
    stream(loads, win[2])
    e(f"s_waitcnt vmcnt({ho[2]})")
    flag_add(GO_WO, wait=False)
    ts(1)
    if cut:
        e("s_waitcnt vmcnt(0)"); ts(3); dbg_out(); e("s_endpgm")
    e(f"s_lshl_b32 s{sTMP}, s{sI}, 11\nv_add_u32 v{vB}, s{sTMP}, v{vA}")
    e(f"v_lshrrev_b32 v2, 5, v1\nv_lshlrev_b32 v3, 3, v2\ns_lshl_b32 s{sTMP}, s{sI}, 4\nv_add_u32 v3, s{sTMP}, v3")
    spin(F_P, 4, 121)
    ts(2)
    e("L_Vdry:")
    e(f"ds_read_b32 v121, v{vZ} offset:{F_MODE}")
    e(f"ds_read_b128 {q(PO)}, v{vB} offset:{PLDS}\nds_read_b128 {q(PO+4)}, v{vB} offset:{PLDS+1024}")
    for w in range(4): e(f"ds_read_b64 v[{TV+2*w}:{TV+2*w+1}], v3 offset:{STLDS + 64*w}")
    e(f"v_lshlrev_b32 v2, 6, v2\nv_and_b32 v126, 3, v1\nv_lshl_add_u32 v2, v126, 4, v2\nv_lshlrev_b32 v{vA}, 3, v1")
    e(f"s_lshl_b32 s{sOFF2}, s{sGRP}, 2\ns_add_u32 s{sOFF2}, s{sOFF2}, s{sI}\ns_lshl_b32 s{sOFF2}, s{sOFF2}, 5\ns_add_u32 s{sOFF2}, s{sOFF2}, s{sIDX}")
    e(f"s_lshl_b32 s{sOFF}, s{sOFF2}, 7\ns_add_u32 s{sOFF}, s{sOFF}, {S_BASE}")
    e("s_waitcnt lgkmcnt(0)")
    e(f"v_readfirstlane_b32 s{sMODE}, v121")
    e(f"v_max3_f32 v126, v{TV}, v{TV+2}, v{TV+4}\nv_max_f32 v126, v126, v{TV+6}")
    for w in range(4): e(f"v_sub_f32 v{G+w}, v{TV+2*w}, v126")
    for w in range(4): e(f"v_exp_f32 v{G+w}, v{G+w}")
    e(f"s_nop 0\nv_mul_f32 v127, v{G}, v{TV+1}")
    for w in range(1, 4): e(f"v_fmac_f32 v127, v{G+w}, v{TV+2*w+1}")
    e(f"v_log_f32 v{TV}, v127\nv_rcp_f32 v127, v127\ns_nop 0\nv_add_f32 v{TV}, v{TV}, v126")
    for w in range(4): e(f"v_mul_f32 v{G+w}, v{G+w}, v127")
    e(f"v_min_u32 v{TV}, -2, v{TV}")
    for r in range(1, 4): e(f"v_mov_b32 v{TV+r}, v{TV}")
    with skip():
        e("s_mov_b32 exec_lo, 15\ns_mov_b32 exec_hi, 15")
        store_by_mode("buffer_store_dwordx4", q(TV), 2)
        e("s_mov_b64 exec, -1")
    part_addrs(3)
    e(f"s_lshl_b32 s{sOFF}, s{sOFF2}, 9\ns_add_u32 s{sOFF}, s{sOFF}, {O_BASE}")
    if ho[2] > 8: e(f"s_waitcnt vmcnt(9)")
    pingpong(VD, PO, ACC, TV)
    for ip in range(4):
        e(f"s_waitcnt vmcnt({7 - 2*ip})")
        if ip < 3:
            for j in range(8): perm(VD + 4*j + ip, VD + 32, j, ip)
    ts(3); tc(6)
    finish(last_block(VD + 32, VD, PO + 4, ACC), ACC)
    tc(7)
    flag_add(F_O1, wait=False)
    with skip(): spin(F_O1, 4, 121)
    for w in range(4): e(f"ds_read_b128 {q(VD + 4*w)}, v3 offset:{PART + w*4480}")
    e("s_waitcnt lgkmcnt(0)")
    for r in range(4): e(f"v_mul_f32 v{VD+r}, v{G}, v{VD+r}")
    for w in range(1, 4):
        for r in range(4): e(f"v_fmac_f32 v{VD+r}, v{G+w}, v{VD+4*w+r}")
    pack(VD, VD)
    tc(9)
    if dry[1]: e("s_cbranch_execz L_Vback")
    store_by_mode("buffer_store_dwordx2", d2(VD), vA)
    flag_add(F_O2, wait=False)
    ts(4)
    dbg_out()
    e("s_endpgm")

    WD, T0, OO = 4, 68, 100
    e("L_WO:")
    lite[0] = False
    e(f"s_setprio {prio[3]}")
    e(f"v_mov_b32 v{vZ}, 0\nv_lshlrev_b32 v2, 2, v1")
    e("s_mov_b64 exec, 0xffff")
    e(f"ds_write_b32 v2, v{vZ}")
    e("s_mov_b64 exec, -1")
    e("s_waitcnt lgkmcnt(0)")
    epoch_load()
    srd(SRD_WS, sWS, WS_BYTES)
    e(f"s_cmp_lg_u32 s{sI}, {3 if hello else 7}\ns_cbranch_scc1 L_nohello")
    e(f"s_mov_b32 s{sMODE}, 1")
    for r in range(4): e(f"v_mov_b32 v{4+r}, -1")
    e(f"v_lshrrev_b32 v2, 4, v1\nv_and_b32 v3, 15, v1\nv_lshlrev_b32 v3, 4, v3\nv_lshl_add_u32 v8, v2, 10, v3")
    e(f"v_lshrrev_b32 v2, 5, v1\nv_and_b32 v3, 31, v1\nv_lshlrev_b32 v3, 4, v3\nv_lshl_add_u32 v9, v2, 14, v3")
    e(f"v_bfe_u32 v2, v1, 3, 2\nv_and_b32 v11, 7, v1\nv_lshlrev_b32 v11, 4, v11\nv_lshl_add_u32 v10, v2, 12, v11")
    e(f"s_lshl_b32 s54, s{sGRP}, 3\ns_lshr_b32 s{sTMP}, s{sIDX}, 2\ns_add_u32 s54, s54, s{sTMP}\ns_lshl_b32 s54, s54, 5\ns_and_b32 s{sTMP}, s{sIDX}, 3\ns_add_u32 s54, s54, s{sTMP}")
    e(f"s_lshl_b32 s54, s54, 8\ns_add_u32 s54, s54, {Q_BASE}\ns_add_u32 s55, s54, 4096")
    e(f"s_lshl_b32 s{sTMP}, s{sGRP}, 7\ns_add_u32 s{sTMP}, s{sTMP}, s{sIDX}\ns_lshl_b32 s56, s{sTMP}, 9\ns_add_u32 s56, s56, {O_BASE}\ns_add_u32 s57, s56, 32768")
    e(f"s_lshl_b32 s{sTMP2}, s{sTMP}, 7\ns_add_u32 s{sTMP2}, s{sTMP2}, {S_BASE}")
    e(f"s_lshl_b32 s{sOFF2}, s{sGRP}, 12\ns_add_u32 s{sOFF2}, s{sOFF2}, {H_BASE}")
    def clears(p):
        e(f"buffer_store_dwordx4 {q(4)}, v8, {WS}, s54 offen {p}\nbuffer_store_dwordx4 {q(4)}, v8, {WS}, s55 offen {p}")
        e(f"buffer_store_dwordx4 {q(4)}, v9, {WS}, s56 offen {p}\nbuffer_store_dwordx4 {q(4)}, v9, {WS}, s57 offen {p}")
        e(f"s_mov_b32 exec_hi, 0\nbuffer_store_dwordx4 {q(4)}, v10, {WS}, s{sTMP2} offen {p}\ns_mov_b32 exec_hi, -1")
    if "noclear" not in diag: clears(opol)
    if clrflag: e("s_barrier")
    e(f"s_getreg_b32 s{sSC}, hwreg(HW_REG_XCC_ID, 0, 4)")
    e("s_waitcnt lgkmcnt(0)")
    tag_setup()
    e(f"s_add_u32 s{sSC}, s{sSC}, s{sT}")
    e("L_hello:")
    for r in range(4): e(f"v_mov_b32 v{12+r}, s{sSC}")
    e(f"s_lshl_b32 s{sOFF}, s{sIDX}, 7\ns_add_u32 s{sOFF}, s{sOFF}, s{sOFF2}")
    e("s_waitcnt vmcnt(0)\ns_mov_b64 exec, 0xff")
    if "nostore" not in diag: e(f"buffer_store_dwordx4 {q(12)}, v11, {WS}, s{sOFF} offen sc1")
    e("s_mov_b64 exec, -1")
    e(f"s_cmp_eq_u32 s{sMODE}, 2\ns_cbranch_scc1 L_hpoll0")
    if clrflag: e(f"ds_write_b32 v{vZ}, v4 offset:{F_CLR}")
    else: e("s_barrier")
    if "nopoll" in diag: e("s_branch L_hdone")
    if hello == "vec":
        if nh: spin(F_GH, 4, 16, sleep=1)
        e("L_hpoll0:")
        e(f"v_and_b32 v16, 31, v1\nv_lshlrev_b32 v16, 7, v16\ns_mov_b32 s{sCNT}, 0x4000")
        e("L_hpoll:")
        e(f"buffer_load_dword v17, v16, {WS}, s{sOFF2} offen sc1\ns_waitcnt vmcnt(0)")
        e(f"v_cmp_ne_u32 s[10:11], s{sSC}, v17\nv_subrev_u32 v17, s{sT}, v17\nv_cmp_lt_u32 vcc, 15, v17")
        e(f"s_or_b32 s{sH}, s10, s11\ns_cbranch_vccz L_hall")
        e(f"s_sleep 8\ns_sub_u32 s{sCNT}, s{sCNT}, 1\ns_cbranch_scc0 L_hpoll\ns_endpgm")
    else:
        e("L_hpoll0:")
        e(f"s_add_u32 s10, s{sWS}, s{sOFF2}\ns_addc_u32 s11, s{sWS+1}, 0\ns_mov_b32 s{sCNT}, 0x4000")
        e("L_hpoll:")
        e(f"s_mov_b32 s{sB}, 0\ns_mov_b32 s{sH}, 0")
        for half in range(1):
            for k in range(32): e(f"s_load_dword s{HS+k}, s[10:11], {k*128} glc")
            e("s_waitcnt lgkmcnt(0)")
            for k in range(32):
                e(f"s_xor_b32 s{sTMP}, s{HS+k}, s{sSC}\ns_or_b32 s{sH}, s{sH}, s{sTMP}\ns_sub_u32 s{sTMP}, s{HS+k}, s{sT}\ns_or_b32 s{sB}, s{sB}, s{sTMP}")
        e(f"s_cmp_lt_u32 s{sB}, 16\ns_cbranch_scc1 L_hall")
        e(f"s_sub_u32 s{sCNT}, s{sCNT}, 1\ns_cbranch_scc0 L_hpoll\ns_endpgm")
    e("L_hall:")
    e(f"s_cmp_eq_u32 s{sMODE}, 2\ns_cbranch_scc1 L_hdone\ns_cmp_eq_u32 s{sH}, 0\ns_cbranch_scc1 L_hdone")
    e(f"s_mov_b32 s{sMODE}, 2\ns_add_u32 s{sOFF2}, s{sOFF2}, 0x8000")
    clears("sc1")
    e("s_branch L_hello")
    e("L_hdone:")
    e(f"v_mov_b32 v4, s{sMODE}\nds_write_b32 v{vZ}, v4 offset:{F_MODE}")
    if dbg:
        for k in range(2, 12): e(f"s_mov_b32 s{TS0+2*k}, 0")
    ts(7); cnt(9)
    e("s_branch L_wosetup")
    e("L_nohello:")
    if warm:
        e(f"s_getpc_b64 s[54:55]\nL_pc:\ns_sub_u32 s54, s54, L_pc-{KN}\ns_subb_u32 s55, s55, 0")
        e(f"s_lshl_b32 s{sTMP}, s{sI}, 5\ns_add_u32 s{sTMP}, s{sTMP}, s{sIDX}\ns_lshl_b32 s56, s{sTMP}, 7\ns_min_u32 s56, s56, L_end-{KN}")
        e("s_load_dword s57, s[54:55], s56")
    e("s_waitcnt lgkmcnt(0)")
    tag_setup()
    e("s_barrier")
    e("L_wosetup:")
    e(f"v_lshrrev_b32 v2, 4, v1\nv_and_b32 v3, 15, v1\nv_lshlrev_b32 v3, 4, v3\nv_lshl_add_u32 v{vA}, v2, 11, v3\nv_lshl_add_u32 v125, v2, 12, v3")
    e(f"s_lshr_b32 s{sTMP}, s{sIDX}, 3\ns_lshl_b32 s{sB}, s{sHKV}, 2\ns_add_u32 s{sB}, s{sB}, s{sTMP}\ns_and_b32 s{sSC}, s{sIDX}, 7")
    e(f"s_lshl_b32 s{sOFF}, s{sB}, 19\ns_lshl_b32 s{sTMP}, s{sI}, 13\ns_add_u32 s{sOFF}, s{sOFF}, s{sTMP}\ns_lshl_b32 s{sTMP}, s{sSC}, 8\ns_add_u32 s{sOFF}, s{sOFF}, s{sTMP}")
    e(f"v_and_b32 v3, 7, v1\nv_mul_u32_u24 v123, 528, v3\nv_lshl_add_u32 v123, v2, 4, v123\ns_lshl_b32 s{sTMP}, s{sI}, 7\nv_add_u32 v123, s{sTMP}, v123")
    e(f"v_bfe_u32 v122, v1, 3, 1\nv_lshlrev_b32 v122, 6, v122\nv_lshl_add_u32 v122, v2, 4, v122\nv_lshl_add_u32 v122, v3, 1, v122")
    part_addrs(3)
    e(f"v_mov_b32 v{vM}, 0x7ff\nv_mov_b32 v{vONE}, 1\nv_lshlrev_b32 v2, 4, v1")
    srd(SRD_A, sWO, 8 << 20); srd(SRD_B, sOUT, 32768)
    if dry[2]: dry_run("L_WOdry", "L_WOback")
    spin(GO_WO, 4, 121, sleep=1)
    loads = [(f"s_add_u32 s{sOFF}, s{sOFF}, 32768" if n else "", f"buffer_load_dwordx4 {q(WD + 4*n)}, v{vA}, {A}, s{sOFF} offen{pf}") for n in range(16)]
    if woj:
        e(rots[woj] + f"\ns_and_b32 s54, s54, 15\ns_lshl_b32 s54, s54, 15\ns_mov_b32 s55, s{sOFF}\ns_add_u32 s{sOFF}, s55, s54")
        loads = [(f"s_add_u32 s54, s54, 32768\ns_and_b32 s54, s54, 0x7ffff\ns_add_u32 s{sOFF}, s55, s54" if n else "", l) for n, (p, l) in enumerate(loads)]
    stream(loads, win[3], [(no, F_O2)])
    ts(1)
    e(f"s_lshl_b32 s{sOFF}, s{sBR}, 3\ns_add_u32 s{sOFF}, s{sOFF}, s{sSC}\ns_lshl_b32 s{sOFF}, s{sOFF}, 16\ns_add_u32 s{sOFF}, s{sOFF}, {R_BASE}")
    e(f"s_lshl_b32 s{sTMP}, s{sB}, 12\ns_add_u32 s{sTMP2}, s{sOFF}, s{sTMP}")
    e(f"s_lshl_b32 s{sTMP}, s{sI}, 14\ns_add_u32 s{sOFF}, s{sOFF}, s{sTMP}\ns_lshl_b32 s{sTMP}, s{sB}, 8\ns_add_u32 s{sOFF}, s{sOFF}, s{sTMP}")
    e(f"s_lshr_b32 s{sOFF2}, s{sB}, 1\ns_lshl_b32 s{sOFF2}, s{sOFF2}, 12\ns_lshl_b32 s{sTMP}, s{sBR}, 11\ns_add_u32 s{sOFF2}, s{sOFF2}, s{sTMP}")
    e(f"s_lshl_b32 s{sTMP}, s{sSC}, 8\ns_add_u32 s{sOFF2}, s{sOFF2}, s{sTMP}\ns_and_b32 s{sTMP}, s{sB}, 1\ns_lshl_b32 s{sTMP}, s{sTMP}, 7\ns_add_u32 s{sOFF2}, s{sOFF2}, s{sTMP}")
    e(f"s_mov_b32 s{sCNT}, 0x4000")
    AC = WD + 32
    for blk in range(2):
        for ip in range(4):
            if early and (blk, ip) == (1, 3): break
            e(f"s_waitcnt vmcnt({14 - 8*blk - 2*ip})")
            for j in range(8): perm((T0 if blk == 0 else WD) + 4*j + ip, WD + 32*blk, j, ip)
    if cut: e("s_waitcnt vmcnt(0)")
    ts(2)
    if cut:
        dbg_out(); e("s_endpgm")
    e("s_setprio 3\ns_barrier")
    ts(3)
    e("L_WOdry:")
    e(f"ds_read_b128 {q(OO)}, v123 offset:{OLDS}\nds_read_b128 {q(OO+4)}, v123 offset:{OLDS+64}")
    e("s_waitcnt lgkmcnt(0)")
    if early:
        AC = 36
        accs = [36, 40, 44, 48, 52, 56, 108, 112]
        for j in JORD: e(mfma_s(accs[j], T0 + 4*j, OO, None))
        e("s_waitcnt vmcnt(0)")
        ts(6)
        finish(last_block(WD + 32, WD, OO + 4, None, accs), None, accs)
    else:
        m = []
        for j in JORD: m += [(mfma_s(AC + 4*j, T0 + 4*j, OO, None), None), (mfma_s(AC + 4*j, WD + 4*j, OO + 4, AC + 4*j), j)]
        finish(m, AC)
    e("s_waitcnt lgkmcnt(0)")
    with skip(): e("s_barrier")
    for w in range(4): e(f"ds_read_b128 {q(T0 + 4*w)}, v3 offset:{PART + w*4480}")
    e("s_waitcnt lgkmcnt(0)")
    for st in (8, 4):
        for k in range(st): e(f"v_add_f32 v{T0+k}, v{T0+k}, v{T0+st+k}")
    tag_insert(T0)
    e("s_cbranch_execz L_rgot")
    e(f"buffer_store_dwordx4 {q(T0)}, v125, {WS}, s{sOFF} offen sc1")
    ts(4)
    e(f"s_cmp_lg_u32 s{sI}, 0\ns_cbranch_scc1 L_fin")
    if rdelay: e(f"s_sleep {rdelay}")
    if rack: e("s_waitcnt vmcnt(0)")
    ts(10)
    e("s_branch L_rpoll")
    e("L_rretry:")
    retry(0)
    e("L_rpoll:")
    for k in range(4): e(f"buffer_load_dwordx4 {q(12+4*k)}, v2, {WS}, s{sTMP2} offen offset:{1024*k} sc1")
    e("L_rgot:\ns_waitcnt vmcnt(0)")
    tag_check([12, 16, 20, 24], 28, "L_rretry")
    for st in (8, 4):
        for k in range(st): e(f"v_add_f32 v{12+k}, v{12+k}, v{12+st+k}")
    e("s_nop 1\nv_permlane32_swap_b32 v12, v14\nv_permlane32_swap_b32 v13, v15")
    e("v_add_f32 v12, v12, v14\nv_add_f32 v13, v13, v15\ns_nop 1\nv_permlane16_swap_b32 v12, v13\nv_add_f32 v12, v12, v13")
    e("v_cvt_pk_bf16_f32 v12, v12, v12")
    if dry[2]: e("s_cbranch_execz L_WOback")
    e(f"buffer_store_short v12, v122, {B}, s{sOFF2} offen {outpol}")
    ts(5); cnt(8)
    e(f"s_or_b32 s{sTMP}, s{sHKV}, s{sIDX}\ns_cmp_lg_u32 s{sTMP}, 0\ns_cbranch_scc1 L_fin")
    e(f"s_lshl_b32 s{sTMP}, s{sBR}, 8\nv_mov_b32 v4, s{sT}\nv_mov_b32 v5, 0\ns_mov_b64 exec, 1")
    e(f"buffer_store_dword v4, v5, {WS}, s{sTMP} offen sc1")
    e("L_fin:")
    if dbg: e("s_nop 1")
    dbg_out()
    e("L_end:\ns_endpgm")
    e(f""".section .rodata,"a"
.p2align 6
.amdhsa_kernel {KN}
  .amdhsa_next_free_vgpr 128
  .amdhsa_next_free_sgpr 96
  .amdhsa_accum_offset 128
  .amdhsa_group_segment_fixed_size 0
  .amdhsa_kernarg_size 104
  .amdhsa_user_sgpr_count 2
  .amdhsa_user_sgpr_kernarg_segment_ptr 1
  .amdhsa_system_sgpr_workgroup_id_x 1
.end_amdhsa_kernel""")
    return "\n".join(o) + "\n"

if __name__ == "__main__":
    kw = eval("dict(" + (sys.argv[2] if len(sys.argv) > 2 else "") + ")")
    open(sys.argv[1], "w").write(gen(**kw))
```

```python
import sys
KN = "concat_heads__sliding_block_cached__sliding_block_cached__decode_kernel"
REF = "concat_heads__sliding_block_cached__sliding_block_cached__decode.s.ref"

H_BASE = 0x1000
S_BASE = 0x20000
Q_BASE = 0x80000
O_BASE = 0x100000
R_BASE = 0x200000
DBG_BASE = 0x800000
WS_BYTES = 0x1000000
F_Q1, F_Q, F_P, F_O1, F_O2, F_GQ, GO_V, GO_WO, F_MODE, F_GH = 0, 4, 8, 12, 16, 20, 24, 28, 32, 36
QLDS = 64
PLDS = 2304
STLDS = 10496
OLDS = 10752
PART = 15360
LDS_BYTES = PART + 4 * 4480
sGRP, sIDX, sBR, sHKV, sI, sROLE = 3, 4, 5, 6, 7, 8
sX, sK, sV, sWQ, sWO, sOUT, sWS = 12, 14, 16, 18, 20, 22, 24
sLO = 26
SRD_A, SRD_WS, SRD_B = 28, 32, 36
sT = 40
sSELLO, sSELHI = 44, 45
sOFF, sTMP, sTMP2, sCNT, sB, sSC, sOFF2, sH, sSTEP, sMODE = 46, 47, 48, 49, 50, 51, 52, 53, 58, 59
TS0 = 60

def gen(pol="nt", dbg=False, prio=(3, 2, 2, 1), gprio=2, win=(6, 6, 6, 6), ho=(5, 5, 5), nq=16, no=8, nh=8, xpos=6,
        cut=0, warm=True, rack=True, xperm=False, outpol="", eppol="", slp=1, kvm=(8, 15, 10, 13, 16), kvr="b", wqord=None):
    o = []
    two = lambda x: x if isinstance(x, tuple) else (x, x + 1)
    (g0, g1), ub, Tb, (i0, i1), (s0, s1) = two(kvm[0]), kvm[1], kvm[2], two(kvm[3]), two(kvm[4])
    assert sorted([g0, g1, ub, Tb, Tb + 1, Tb + 2, i0, i1, s0, s1]) == list(range(8, 18))
    def e(s): o.append(s)
    def c(s): o.append("; " + s)
    pf = (" " + pol) if pol else ""
    dpp = "row_mask:0xf bank_mask:0xf"
    A = f"s[{SRD_A}:{SRD_A+3}]"; WS = f"s[{SRD_WS}:{SRD_WS+3}]"; B = f"s[{SRD_B}:{SRD_B+3}]"; LO = f"s[{sLO}:{sLO+1}]"
    vZ, vONE, vA, vM, vB = 116, 117, 118, 119, 120
    DAT = 4
    uid = [0]
    def lab(n):
        uid[0] += 1; return f"L_{n}_{uid[0]}"
    lite = [dbg == 6]
    def ts(k):
        if dbg and not (lite[0] and k): e(f"s_memrealtime s[{TS0+2*k}:{TS0+2*k+1}]")
    def cnt(k):
        if dbg and dbg != 7 and not lite[0]: e(f"s_sub_u32 s{TS0+2*k}, 0x4000, s{sCNT}")
    def srd(d, base, nbytes):
        e(f"s_mov_b32 s{d}, s{base}\ns_mov_b32 s{d+1}, s{base+1}\ns_mov_b32 s{d+2}, {nbytes}\ns_mov_b32 s{d+3}, 0x20000")
    def q(a): return f"v[{a}:{a+3}]"
    def d2(a): return f"v[{a}:{a+1}]"
    def flag_add(off):
        e(f"s_mov_b64 exec, 1\nds_add_u32 v{vZ}, v{vONE} offset:{off}\ns_mov_b64 exec, -1")
    def spin(off, n, vt, sleep=0):
        l = lab("spin"); d = lab("spun")
        e(f"s_mov_b32 s{sCNT}, 0x80000\n{l}:")
        e(f"ds_read_b32 v{vt}, v{vZ} offset:{off}\ns_waitcnt lgkmcnt(0)\nv_readfirstlane_b32 s{sTMP}, v{vt}")
        e(f"s_cmp_ge_u32 s{sTMP}, {n}\ns_cbranch_scc1 {d}")
        if sleep: e(f"s_sleep {sleep}")
        e(f"s_sub_u32 s{sCNT}, s{sCNT}, 1\ns_cbranch_scc0 {l}\ns_endpgm\n{d}:")
    def tag_setup():
        e(f"s_add_u32 s{sT}, s{sT}, 0x9E3779B1")
        e(f"s_lshr_b32 s{sT+1}, s{sT}, 7\ns_lshr_b32 s{sT+2}, s{sT}, 14\ns_lshr_b32 s{sT+3}, s{sT}, 21")
    def sum4(v):
        for a, b in ((0, 8), (2, 10), (4, 12), (6, 14), (0, 4), (2, 6)): e(f"v_pk_add_f32 {d2(v+a)}, {d2(v+a)}, {d2(v+b)}")
    def pack(dst, src):
        e(f"v_cvt_pk_bf16_f32 v{dst}, v{src}, v{src+1}\nv_cvt_pk_bf16_f32 v{dst+1}, v{src+2}, v{src+3}")
        e(f"v_min_u32 v{dst}, -2, v{dst}\nv_min_u32 v{dst+1}, -2, v{dst+1}")
    def ones_check(regs, vacc, retry):
        regs = list(regs)
        e(f"v_max3_u32 v{vacc}, v{regs[0]}, v{regs[1]}, v{regs[2]}")
        k = 3
        while k + 1 < len(regs): e(f"v_max3_u32 v{vacc}, v{vacc}, v{regs[k]}, v{regs[k+1]}"); k += 2
        if k < len(regs): e(f"v_max_u32 v{vacc}, v{vacc}, v{regs[k]}")
        e(f"v_cmp_eq_u32 vcc, -1, v{vacc}\ns_cbranch_vccnz {retry}")
    def unpack(dst, src):
        e(f"v_lshlrev_b32 v{dst}, 16, v{src}\nv_and_b32 v{dst+1}, 0xffff0000, v{src}")
    def store_by_mode(op, data, va):
        g, d = lab("wt"), lab("st")
        e(f"s_cmp_eq_u32 s{sMODE}, 2\ns_cbranch_scc1 {g}")
        e(f"{op} {data}, v{va}, {WS}, s{sOFF} offen\ns_branch {d}")
        e(f"{g}:\n{op} {data}, v{va}, {WS}, s{sOFF} offen sc1\n{d}:")
    def retry(sleep):
        e(f"s_sub_u32 s{sCNT}, s{sCNT}, 1\ns_cbranch_scc1 L_end")
        if sleep: e(f"s_sleep {sleep}")
    def perm_s(dst, src, j, ip):
        u, p = j >> 1, j & 1
        return f"v_perm_b32 v{dst}, v{src + (2*ip+1)*4 + u}, v{src + (2*ip)*4 + u}, s{sSELHI if p else sSELLO}"
    def perm(*a): e(perm_s(*a))
    def mfma_s(d, a, b, cc):
        return f"v_mfma_f32_16x16x32_bf16 {q(d)}, {q(a)}, {q(b)}, {q(cc) if cc is not None else 0}"
    def mfma(*a): e(mfma_s(*a))
    def wm(acc, j, a, bop, first): return mfma_s(acc + 4*(j & 3), a, bop + 4*(j >> 2), None if (first and j < 4) else acc + 4*(j & 3))
    def pingpong(bop, acc, T):
        for ip in range(4): perm(T + ip, DAT, 0, ip)
        for j in range(8):
            if j < 7:
                for ip in range(4): perm(T + 4*((j+1) & 1) + ip, DAT, j + 1, ip)
            else:
                e("s_nop 0")
            e(wm(acc, j, T + 4*(j & 1), bop, True))
    def second_block_early(base):
        for ip in range(3):
            e(f"s_waitcnt vmcnt({base + 6 - 2*ip})")
            for j in range(8): perm(DAT + 4*j + ip, DAT + 32, j, ip)
    def second_block_last(bop, acc):
        slot = 0; todo = []
        def emit(t):
            nonlocal slot; e(t); slot += 1
        emit(perm_s(DAT + 3, DAT + 32, 0, 3)); emit(perm_s(DAT + 7, DAT + 32, 1, 3))
        for j in range(8):
            if j < 6: emit(perm_s(DAT + 4*(j+2) + 3, DAT + 32, j + 2, 3))
            emit(wm(acc, j, DAT + 4*j, bop, False))
            if j >= 4: todo.append((slot + 8, f"ds_write_b128 v{vB}, {q(acc + 4*(j-4))} offset:{PART + (j-4)*1120}"))
        for at, t in todo:
            if at > slot: e(f"s_nop {at - slot - 1}"); slot = at
            emit(t)
    def part_addrs(vr):
        e(f"v_lshrrev_b32 v2, 4, v1\nv_mul_u32_u24 v2, 272, v2\nv_and_b32 v{vr}, 15, v1\nv_lshl_add_u32 v2, v{vr}, 4, v2")
        e(f"s_mul_i32 s{sTMP}, s{sI}, 4480\nv_add_u32 v{vB}, s{sTMP}, v2")
        e(f"v_and_b32 v{vr}, 3, v1\nv_mul_u32_u24 v{vr}, 1120, v{vr}\nv_bfe_u32 v2, v1, 3, 2\nv_mul_u32_u24 v2, 272, v2\nv_add_u32 v{vr}, v{vr}, v2")
        e(f"v_bfe_u32 v2, v1, 2, 1\nv_lshl_add_u32 v{vr}, v2, 7, v{vr}\nv_lshrrev_b32 v2, 5, v1\nv_lshl_add_u32 v{vr}, v2, 4, v{vr}")
        e(f"s_lshl_b32 s{sTMP}, s{sI}, 5\nv_add_u32 v{vr}, s{sTMP}, v{vr}")
    def part_read(v, vr):
        for w in range(4): e(f"ds_read_b128 {q(v + 4*w)}, v{vr} offset:{PART + w*4480}")
        e("s_waitcnt lgkmcnt(0)")
    def zero(v, n):
        for k in range(n): e(f"v_mov_b32 v{v+k}, 0")
    def lds_operands(v, va, off0, off1):
        e(f"s_mov_b64 exec, {LO}\nds_read_b128 {q(v)}, v{va} offset:{off0}\nds_read_b128 {q(v+8)}, v{va} offset:{off1}")
        e(f"s_not_b64 exec, exec\nds_read_b128 {q(v+4)}, v{va} offset:{off0}\nds_read_b128 {q(v+12)}, v{va} offset:{off1}\ns_mov_b64 exec, -1")
    def stream(loads, w, sig=()):
        for n, (pre, ld) in enumerate(loads):
            if pre: e(pre)
            if n >= w: e(f"s_waitcnt vmcnt({w-1})")
            e(ld)
            for k, off in sig:
                if k == n + 1: flag_add(off)
    def dbg_out():
        if not dbg or lite[0]: return
        e("s_waitcnt lgkmcnt(0)\ns_mov_b64 exec, 1")
        e(f"s_lshl_b32 s{sTMP}, s{sROLE}, 2\ns_add_u32 s{sTMP}, s{sTMP}, s{sI}\ns_lshl_b32 s{sTMP2}, s2, 4\ns_add_u32 s{sTMP}, s{sTMP}, s{sTMP2}")
        e(f"s_lshl_b32 s{sTMP}, s{sTMP}, 6\ns_add_u32 s{sTMP}, s{sTMP}, {DBG_BASE}")
        for k in range(12): e(f"v_mov_b32 v{4+k}, s{TS0+2*k}")
        e(f"s_getreg_b32 s{sTMP2}, hwreg(HW_REG_XCC_ID)\nv_mov_b32 v16, s{sTMP2}\nv_mov_b32 v17, s{sCNT}\ns_getreg_b32 s{sTMP2}, hwreg(HW_REG_HW_ID)\nv_mov_b32 v18, s{sTMP2}\nv_mov_b32 v19, 0\nv_mov_b32 v2, 0")
        for k in range(4): e(f"buffer_store_dwordx4 {q(4+4*k)}, v2, {WS}, s{sTMP} offen offset:{16*k}")
        e("s_mov_b64 exec, -1")

    hdr = [l for l in open(REF).read().split("\n") if l.startswith(";") and "@launch" not in l]
    o += hdr
    e(f"; @launch grid=(256,1,1) block=(1024,1,1) lds={LDS_BYTES}")
    for l in __doc__.split("\n"): c(l.replace("Generator v9 for the fused decode kernel: one", "One"))
    e('.amdgcn_target "amdgcn-amd-amdhsa--gfx950"\n.text')
    e(f".globl {KN}\n.p2align 8\n.type {KN},@function\n{KN}:")
    if dbg:
        for k in range(1, 12): e(f"s_mov_b32 s{TS0+2*k}, 0")
    ts(0)
    c("workgroup = (group = id & 7 = (branch, kv head), idx = id >> 3); wave = (role, i)")
    e("s_cmp_ge_u32 s2, 256\ns_cbranch_scc1 L_end")
    if xperm == 2: e("s_bitcmp1_b32 s2, 3\ns_cbranch_scc0 L_xp\ns_xor_b32 s2, s2, 5\nL_xp:")
    if xperm == 3: e("s_and_b32 s3, s2, 0xf9\ns_cmp_eq_u32 s3, 0x40\ns_cbranch_scc0 L_xp\ns_xor_b32 s2, s2, 2\nL_xp:")
    if xperm == 1: e("s_and_b32 s3, s2, 7\ns_bfe_u32 s4, s2, 0x30003\ns_andn2_b32 s2, s2, 63\ns_lshl_b32 s3, s3, 3\ns_or_b32 s2, s2, s3\ns_or_b32 s2, s2, s4")
    e(f"s_and_b32 s{sBR}, s2, 1\ns_mul_i32 s9, s{sBR}, 40\ns_add_u32 s10, s0, s9\ns_addc_u32 s11, s1, 0")
    e(f"s_load_dwordx8 s[12:19], s[10:11], 0\ns_load_dwordx2 s[20:21], s[10:11], 32")
    e(f"s_load_dwordx2 s[22:23], s[0:1], 80\ns_load_dwordx2 s[24:25], s[0:1], 96")
    e("v_lshrrev_b32 v2, 6, v0\nv_and_b32 v1, 63, v0")
    e(f"v_readfirstlane_b32 s{sROLE}, v2")
    e(f"s_and_b32 s{sGRP}, s2, 7\ns_lshr_b32 s{sIDX}, s2, 3\ns_lshr_b32 s{sHKV}, s{sGRP}, 1")
    e(f"s_mov_b32 s{sSELLO}, 0x05040100\ns_mov_b32 s{sSELHI}, 0x07060302\ns_mov_b32 s{sLO}, 0x00ff00ff\ns_mov_b32 s{sLO+1}, 0x00ff00ff")
    e(f"s_and_b32 s{sI}, s{sROLE}, 3\ns_lshr_b32 s{sROLE}, s{sROLE}, 2")
    e(f"s_cmp_eq_u32 s{sROLE}, 1\ns_cbranch_scc1 L_K\ns_cmp_eq_u32 s{sROLE}, 2\ns_cbranch_scc1 L_V\ns_cmp_eq_u32 s{sROLE}, 3\ns_cbranch_scc1 L_WO")

    c("=========== WQ role: partial q of head idx>>2 over the k quarter idx&3, all 8 batches; 64 rows x 128 columns per wave")
    XO, D, T = 68, 84, 100
    e(f"s_setprio {prio[0]}")
    e("v_lshrrev_b32 v2, 4, v1\nv_and_b32 v3, 15, v1")
    e(f"v_lshlrev_b32 v{vA}, 16, v2\nv_lshl_add_u32 v{vA}, v3, 4, v{vA}")
    e(f"v_and_b32 v3, 7, v1\nv_lshlrev_b32 v{vB}, 11, v3\nv_lshl_add_u32 v{vB}, v2, 4, v{vB}")
    e(f"s_lshr_b32 s{sB}, s{sIDX}, 2\ns_and_b32 s{sSC}, s{sIDX}, 3")
    c("neighbours along a row start on different 32-row blocks")
    e(f"s_add_u32 s{sH}, s{sI}, s{sB}\ns_and_b32 s{sH}, s{sH}, 3\ns_lshr_b32 s{sTMP2}, s{sB}, 2")
    e(f"s_lshl_b32 s{sTMP}, s{sSC}, 2\ns_add_u32 s{sTMP}, s{sTMP}, s{sH}\ns_lshl_b32 s{sTMP}, s{sTMP}, 1\ns_add_u32 s{sTMP}, s{sTMP}, s{sTMP2}")
    e(f"s_lshl_b32 s{sOFF}, s{sTMP}, 18\ns_lshl_b32 s{sOFF2}, s{sTMP}, 6\ns_xor_b32 s9, s{sOFF2}, 64")
    e(f"s_lshl_b32 s{sSTEP}, s{sTMP2}, 19\ns_sub_u32 s{sSTEP}, {25*8192}, s{sSTEP}")
    e(f"s_lshl_b32 s{sTMP}, s{sHKV}, 11\ns_add_u32 s{sOFF}, s{sOFF}, s{sTMP}\ns_lshl_b32 s{sTMP}, s{sB}, 8\ns_add_u32 s{sOFF}, s{sOFF}, s{sTMP}")
    e(f"s_mov_b32 s{SRD_A+2}, {8 << 20}\ns_mov_b32 s{SRD_A+3}, 0x20000")
    e("s_waitcnt lgkmcnt(0)")
    e(f"s_mov_b32 s{SRD_A}, s{sWQ}\ns_mov_b32 s{SRD_A+1}, s{sWQ+1}")
    if dbg == 7: ts(9)
    loads = []
    for n in range(16):
        pre = "" if n == 0 else (f"s_add_u32 s{sOFF}, s{sOFF}, s{sSTEP}" if n == 8 else f"s_add_u32 s{sOFF}, s{sOFF}, 8192")
        loads.append((pre, f"buffer_load_dwordx4 {q(DAT + 4*n)}, v{vA}, {A}, s{sOFF} offen{pf}"))
    if wqord:
        loads = []; cur = 0
        for blk in range(2):
            for jj in wqord:
                d = (jj - cur) * 8192; cur = jj
                pre = (f"s_add_u32 s{sOFF}, s{sOFF}, s{sSTEP}\ns_add_u32 s{sOFF}, s{sOFF}, {(7*8192 + d) & 0xffffffff}" if (blk and jj == wqord[0]) else (f"s_add_u32 s{sOFF}, s{sOFF}, {d & 0xffffffff}" if d else ""))
                loads.append((pre, f"buffer_load_dwordx4 {q(DAT + 32*blk + 4*jj)}, v{vA}, {A}, s{sOFF} offen{pf}"))
    xpre = "\n".join(f"v_mov_b32 v{XO+k}, 0" for k in range(16))
    xpre += f"\ns_mov_b32 s{SRD_B}, s{sX}\ns_mov_b32 s{SRD_B+1}, s{sX+1}\ns_mov_b32 s{SRD_B+2}, 16384\ns_mov_b32 s{SRD_B+3}, 0x20000\ns_mov_b64 exec, {LO}"
    loads[xpos:xpos] = [(xpre, f"buffer_load_dwordx4 {q(XO)}, v{vB}, {B}, s{sOFF2} offen"),
                        ("", f"buffer_load_dwordx4 {q(XO+8)}, v{vB}, {B}, s9 offen\ns_mov_b64 exec, -1")]
    if dbg == 7: loads[xpos] = (loads[xpos][0] + f"\ns_memrealtime s[{TS0+16}:{TS0+17}]\ns_waitcnt vmcnt({win[0]-1})\ns_memrealtime s[{TS0+20}:{TS0+21}]", loads[xpos][1])
    stream(loads, win[0])
    e(f"s_waitcnt vmcnt({ho[0]})")
    ts(11)
    e("s_barrier")
    ts(1)
    srd(SRD_WS, sWS, WS_BYTES)
    e(f"v_mov_b32 v{vZ}, 0\nv_mov_b32 v{vONE}, 1")
    part_addrs(121)
    if cut == 1:
        e("s_waitcnt vmcnt(0)"); ts(2); dbg_out(); e("s_endpgm")
    for blk in range(2):
        for r in range(4): e(f"v_mov_b32_dpp v{XO + 8*blk + 4 + r}, v{XO + 8*blk + r} row_ror:8 row_mask:0xf bank_mask:0xc")
    c("publish v122: ((grp*8 + h)*8 + 2i + b')*1024 + kq*256 + (l&31)*8 ; gather vA: ((grp*8 + 2i + h')*8 + b)*1024 + kq*256 + (l&31)*8")
    e(f"v_lshrrev_b32 v2, 5, v1\nv_and_b32 v{vA}, 31, v1\nv_lshlrev_b32 v{vA}, 3, v{vA}\nv_lshl_add_u32 v122, v2, 10, v{vA}\nv_lshl_add_u32 v{vA}, v2, 13, v{vA}")
    e(f"s_lshl_b32 s{sOFF2}, s{sGRP}, 16\ns_add_u32 s{sOFF2}, s{sOFF2}, {Q_BASE}")
    e(f"s_lshl_b32 s{sOFF}, s{sB}, 2\ns_add_u32 s{sOFF}, s{sOFF}, s{sI}\ns_lshl_b32 s{sOFF}, s{sOFF}, 3\ns_add_u32 s{sOFF}, s{sOFF}, s{sSC}\ns_lshl_b32 s{sOFF}, s{sOFF}, 8\ns_add_u32 s{sOFF}, s{sOFF}, s{sOFF2}")
    c("q in LDS: (2i + h')*272 + ((l>>3)&3)*64 + (l&7)*2")
    e(f"v_mul_u32_u24 v2, 272, v2\nv_bfe_u32 v123, v1, 3, 2\nv_lshl_add_u32 v2, v123, 6, v2\nv_lshl_add_u32 v2, v3, 1, v2\ns_mul_i32 s{sTMP}, s{sI}, 544\nv_add_u32 v2, s{sTMP}, v2")
    assert ho[0] <= 8 and ho[2] <= 8 and xpos <= 16 - ho[0]
    pingpong(XO, D, T)
    second_block_early(0)
    e("s_waitcnt vmcnt(0)")
    ts(2)
    second_block_last(XO + 8, D)
    flag_add(F_Q1)
    spin(F_Q1, 4, 123)
    part_read(DAT, 121)
    sum4(DAT)
    pack(DAT, DAT)
    e(f"buffer_store_dwordx2 {d2(DAT)}, v122, {WS}, s{sOFF} offen")
    ts(3)
    spin(F_MODE, 1, 123, sleep=slp)
    e(f"s_cmp_eq_u32 s{sTMP}, 1\ns_cbranch_scc1 L_qloc")
    e(f"buffer_store_dwordx2 {d2(DAT)}, v122, {WS}, s{sOFF} offen sc1\nL_qloc:")
    e(f"s_lshl_b32 s{sOFF}, s{sI}, 4\ns_add_u32 s{sOFF}, s{sOFF}, s{sB}\ns_lshl_b32 s{sOFF}, s{sOFF}, 10\ns_add_u32 s{sOFF}, s{sOFF}, s{sOFF2}")
    spin(F_GQ, 4, 123, sleep=slp)
    ts(7)
    c("gather q of this workgroup's batch: heads 2i, 2i+1, four partials")
    e(f"s_mov_b32 s{sCNT}, 0x4000\ns_branch L_qpoll\nL_qretry:")
    retry(2)
    e("L_qpoll:")
    for k in range(4): e(f"buffer_load_dwordx2 {d2(20+2*k)}, v{vA}, {WS}, s{sOFF} offen offset:{256*k} sc1")
    e("s_waitcnt vmcnt(0)")
    ones_check(range(20, 28), 28, "L_qretry")
    for k in range(8): unpack(32 + 2*k, 20 + k)
    sum4(32)
    e("v_cvt_pk_bf16_f32 v20, v32, v33\nv_cvt_pk_bf16_f32 v22, v34, v35")
    e(f"ds_write_b16 v2, v20 offset:{QLDS}\nds_write_b16_d16_hi v2, v20 offset:{QLDS+16}")
    e(f"ds_write_b16 v2, v22 offset:{QLDS+32}\nds_write_b16_d16_hi v2, v22 offset:{QLDS+48}")
    flag_add(F_Q)
    ts(4); cnt(8)
    e(f"s_mov_b32 s{sB}, s{sI}")

    c("=========== o gather (WQ and K waves, one batch each): merge the four key quarters of head pair idx>>3")
    e("L_G:")
    e(f"s_setprio {gprio}")
    e(f"s_lshr_b32 s{sH}, s{sIDX}, 3")
    c("stats: grp*16K + hp*4K + (4b + s)*128 + h'*64")
    e(f"v_lshrrev_b32 v2, 5, v1\nv_lshlrev_b32 v4, 6, v2\nv_and_b32 v5, 3, v1\nv_lshl_add_u32 v3, v5, 7, v4")
    e(f"s_lshl_b32 s{sOFF}, s{sGRP}, 2\ns_add_u32 s{sOFF}, s{sOFF}, s{sH}\ns_lshl_b32 s{sOFF}, s{sOFF}, 3\ns_add_u32 s{sOFF}, s{sOFF}, s{sB}")
    e(f"s_lshl_b32 s{sOFF2}, s{sOFF}, 9\ns_add_u32 s{sOFF2}, s{sOFF2}, {S_BASE}")
    e(f"s_lshl_b32 s{sOFF}, s{sOFF}, 11\ns_add_u32 s{sOFF}, s{sOFF}, {O_BASE}")
    c("o in LDS [b][wave 4][h' 2][g 4][jj 8]: values r0,r2 -> wave j>>2, r1,r3 -> wave 2 + (j>>2); g = j&3, jj = 2 gD")
    e(f"v_bfe_u32 v30, v1, 2, 1\nv_lshlrev_b32 v30, 7, v30\nv_lshl_add_u32 v30, v2, 6, v30\nv_lshl_add_u32 v30, v5, 4, v30\nv_bfe_u32 v4, v1, 3, 2\nv_lshl_add_u32 v30, v4, 2, v30")
    e(f"s_mul_i32 s{sTMP}, s{sB}, 528\nv_add_u32 v30, s{sTMP}, v30\nv_lshlrev_b32 v2, 3, v1")
    spin(F_O2, 8 if no else 4, 31, sleep=slp)
    ts(5)
    e(f"s_mov_b32 s{sCNT}, 0x4000\ns_branch L_opoll\nL_oretry:")
    retry(0)
    e("L_opoll:")
    e(f"buffer_load_dword v4, v3, {WS}, s{sOFF2} offen sc1")
    for k in range(4): e(f"buffer_load_dwordx2 {d2(12+2*k)}, v2, {WS}, s{sOFF} offen offset:{512*k} sc1")
    e("s_waitcnt vmcnt(4)")
    c("weights of the quarters: softmax over the four log2-sum-exp values held by a quad of lanes")
    e(f"v_max_f32_dpp v6, v4, v4 quad_perm:[1,0,3,2] {dpp}\ns_nop 1")
    e(f"v_max_f32_dpp v6, v6, v6 quad_perm:[2,3,0,1] {dpp}")
    e("v_sub_f32 v6, v4, v6\nv_exp_f32 v6, v6\ns_nop 1")
    e(f"v_add_f32_dpp v7, v6, v6 quad_perm:[1,0,3,2] {dpp}\ns_nop 1")
    e(f"v_add_f32_dpp v7, v7, v7 quad_perm:[2,3,0,1] {dpp}")
    e("v_rcp_f32 v7, v7\ns_waitcnt vmcnt(0)\nv_mul_f32 v6, v6, v7")
    ones_check([4] + list(range(12, 20)), 28, "L_oretry")
    for k in range(8): unpack(32 + 2*k, 12 + k)
    for r in range(4): e(f"v_mul_f32_dpp v{32+r}, v6, v{32+r} quad_perm:[0,0,0,0] {dpp}")
    for k in range(1, 4):
        for r in range(4): e(f"v_fmac_f32_dpp v{32+r}, v6, v{32+4*k+r} quad_perm:[{k},{k},{k},{k}] {dpp}")
    e("v_cvt_pk_bf16_f32 v12, v32, v34\nv_cvt_pk_bf16_f32 v13, v33, v35")
    e(f"ds_write_b32 v30, v12 offset:{OLDS}\nds_write_b32 v30, v13 offset:{OLDS+256}")
    ts(6); cnt(10)
    e("s_waitcnt lgkmcnt(0)\ns_barrier")
    dbg_out()
    e("s_endpgm")

    c("=========== K role: scores and probabilities of batch idx>>2, key quarter idx&3; 64 keys per wave")
    QO, S = 68, 76
    e("L_K:")
    e(f"s_setprio {prio[1]}")
    c("A rows = (key, parity of the 16-byte chunk), B columns = (parity, head): one load covers 128 B of 8 keys")
    e(f"v_bfe_u32 v2, v1, 1, 1\nv_lshlrev_b32 v{vA}, {ub}, v2")
    if g1 == g0 + 1: e(f"v_bfe_u32 v2, v1, 2, 2\nv_lshl_add_u32 v{vA}, v2, {g0}, v{vA}")
    else: e(f"v_bfe_u32 v2, v1, 2, 1\nv_lshl_add_u32 v{vA}, v2, {g0}, v{vA}\nv_bfe_u32 v2, v1, 3, 1\nv_lshl_add_u32 v{vA}, v2, {g1}, v{vA}")
    e(f"v_lshrrev_b32 v2, 4, v1\nv_lshl_add_u32 v{vA}, v2, 5, v{vA}\nv_and_b32 v2, 1, v1\nv_lshl_add_u32 v{vA}, v2, 4, v{vA}")
    def sfield(reg, p0, p1):
        if p1 == p0 + 1: e(f"s_and_b32 s{sTMP}, s{reg}, 3\ns_lshl_b32 s{sTMP}, s{sTMP}, {p0}\ns_add_u32 s{sOFF2}, s{sOFF2}, s{sTMP}")
        else:
            for k, p in enumerate((p0, p1)): e(f"s_bfe_u32 s{sTMP}, s{reg}, {0x10000 + k}\ns_lshl_b32 s{sTMP}, s{sTMP}, {p}\ns_add_u32 s{sOFF2}, s{sOFF2}, s{sTMP}")
    def kv_base():
        c(f"key of slot (g, tile T, u) in the 256-KB window: byte offset g << {g0}, wave << {i0}, ((T + b) & 7) << {Tb}, u << {ub}, quarter << {s0}")
        e(f"s_lshr_b32 s{sTMP2}, s{sIDX}, 2\ns_lshl_b32 s{sOFF2}, s{sTMP2}, 22\ns_lshl_b32 s{sTMP}, s{sHKV}, 20\ns_add_u32 s{sOFF2}, s{sOFF2}, s{sTMP}\ns_add_u32 s{sOFF2}, s{sOFF2}, 0xC0000")
        sfield(sIDX, s0, s1); sfield(sI, i0, i1)
        if kvr == "none": e(f"s_mov_b32 s{sTMP2}, 0")
        if kvr == "idx": e(f"s_and_b32 s{sTMP2}, s{sIDX}, 7")
        if kvr == "bg": e(f"s_add_u32 s{sTMP2}, s{sTMP2}, s{sGRP}\ns_and_b32 s{sTMP2}, s{sTMP2}, 7")
        e(f"s_lshl_b32 s{sSTEP}, s{sTMP2}, {Tb}\ns_add_u32 s{sOFF}, s{sOFF2}, s{sSTEP}")
    kv_step = f"s_add_u32 s{sSTEP}, s{sSTEP}, {1 << Tb}\ns_and_b32 s{sSTEP}, s{sSTEP}, {(8 << Tb) - 1}\ns_add_u32 s{sOFF}, s{sOFF2}, s{sSTEP}"
    kv_base()
    e(f"v_mov_b32 v{vZ}, 0\nv_mov_b32 v{vONE}, 1")
    e("s_waitcnt lgkmcnt(0)")
    srd(SRD_A, sK, 32 << 20); srd(SRD_WS, sWS, WS_BYTES)
    e("s_barrier")
    loads = []
    for t in range(8):
        for hh in range(2):
            loads.append((kv_step if (t and not hh) else "", f"buffer_load_dwordx4 {q(DAT + 8*t + 4*hh)}, v{vA}, {A}, s{sOFF} offen offset:{hh*128}{pf}"))
    stream(loads, win[1], [(nq, F_GQ), (nh, F_GH)])
    e(f"s_waitcnt vmcnt({ho[1]})")
    flag_add(GO_V)
    ts(1)
    e(f"v_and_b32 v2, 7, v1\nv_mul_u32_u24 v{vA}, 272, v2\nv_lshrrev_b32 v2, 3, v1\nv_lshl_add_u32 v{vA}, v2, 4, v{vA}")
    e(f"v_lshlrev_b32 v{vB}, 4, v1\ns_lshl_b32 s{sTMP}, s{sI}, 11\nv_add_u32 v{vB}, s{sTMP}, v{vB}")
    e(f"s_mov_b32 s{sSC}, 0x3e0293ee")
    e("s_waitcnt vmcnt(0)")
    ts(2)
    if cut:
        dbg_out(); e("s_endpgm")
    spin(F_Q, 4, 2, sleep=slp)
    ts(3)
    e(f"ds_read_b128 {q(QO)}, v{vA} offset:{QLDS}\nds_read_b128 {q(QO+4)}, v{vA} offset:{QLDS+128}")
    e("s_waitcnt lgkmcnt(0)")
    for t in range(8): mfma(S + 4*t, DAT + 8*t, QO, None)
    for t in range(8): mfma(S + 4*t, DAT + 8*t + 4, QO + 4, S + 4*t)
    e("s_nop 1")
    for t in range(8):
        for u in range(2):
            e(f"v_add_f32_dpp v{DAT + 2*t + u}, v{S + 4*t + 2*u + 1}, v{S + 4*t + 2*u} row_ror:8 {dpp}")
    e(f"v_max3_f32 v20, v{DAT}, v{DAT+1}, v{DAT+2}")
    for k in range(3, 15, 2): e(f"v_max3_f32 v20, v20, v{DAT+k}, v{DAT+k+1}")
    e(f"v_max_f32 v20, v20, v{DAT+15}")
    def allred(v, t, op):
        e(f"v_mov_b32 v{t}, v{v}\ns_nop 1\nv_permlane32_swap_b32 v{v}, v{t}\nv_{op}_f32 v{v}, v{v}, v{t}")
        e(f"v_mov_b32 v{t}, v{v}\ns_nop 1\nv_permlane16_swap_b32 v{v}, v{t}\nv_{op}_f32 v{v}, v{v}, v{t}")
    allred(20, 21, "max")
    e(f"v_mul_f32 v20, s{sSC}, v20")
    for k in range(16): e(f"v_fma_f32 v{DAT+k}, v{DAT+k}, s{sSC}, -v20")
    for k in range(16): e(f"v_exp_f32 v{DAT+k}, v{DAT+k}")
    e("s_nop 0")
    for k in range(8): e(f"v_cvt_pk_bf16_f32 v{24+k}, v{DAT+2*k}, v{DAT+2*k+1}")
    e(f"ds_write_b128 v{vB}, {q(24)} offset:{PLDS}\nds_write_b128 v{vB}, {q(28)} offset:{PLDS+1024}")
    for st in (8, 4, 2, 1):
        for k in range(st): e(f"v_add_f32 v{DAT+k}, v{DAT+k}, v{DAT+st+k}")
    e(f"v_mov_b32 v21, v{DAT}")
    allred(21, 22, "add")
    e(f"v_lshlrev_b32 v2, 3, v1\ns_lshl_b32 s{sTMP}, s{sI}, 6\nv_add_u32 v2, s{sTMP}, v2")
    e(f"s_mov_b64 exec, 0xff\nds_write_b64 v2, v[20:21] offset:{STLDS}")
    flag_add(F_P)
    ts(4)
    e(f"s_add_u32 s{sB}, s{sI}, 4\ns_branch L_G")

    c("=========== V role: P x V over the keys of the K wave with the same i")
    ACC, PO, TV, G = 68, 84, 100, 122
    e("L_V:")
    e(f"s_setprio {prio[2]}")
    e(f"v_lshlrev_b32 v{vA}, 4, v1")
    e(f"v_lshrrev_b32 v2, 4, v1\nv_and_b32 v109, 15, v1\nv_lshlrev_b32 v109, 4, v109")
    if g1 == g0 + 1: e(f"v_lshl_add_u32 v109, v2, {g0}, v109")
    else: e(f"v_bfe_u32 v2, v1, 4, 1\nv_lshl_add_u32 v109, v2, {g0}, v109\nv_lshrrev_b32 v2, 5, v1\nv_lshl_add_u32 v109, v2, {g1}, v109")
    e(f"v_add_u32 v110, {1 << ub}, v109")
    kv_base()
    e(f"v_mov_b32 v{vZ}, 0\nv_mov_b32 v{vONE}, 1")
    zero(PO, 16)
    c("P address: i*2048 + (g*16 + (l&7))*16 ; statistics address: (2i + (l>>5))*8")
    e(f"v_and_b32 v{vB}, 0x370, v{vA}\ns_lshl_b32 s{sTMP}, s{sI}, 11\nv_add_u32 v{vB}, s{sTMP}, v{vB}")
    e(f"v_lshrrev_b32 v2, 5, v1\nv_lshlrev_b32 v3, 3, v2\ns_lshl_b32 s{sTMP}, s{sI}, 4\nv_add_u32 v3, s{sTMP}, v3")
    c("statistics message lane offset: (l>>5)*64 + (l&3)*16")
    e(f"v_lshlrev_b32 v2, 6, v2\nv_and_b32 v126, 3, v1\nv_lshl_add_u32 v108, v126, 4, v2")
    e("s_waitcnt lgkmcnt(0)")
    srd(SRD_A, sV, 32 << 20); srd(SRD_WS, sWS, WS_BYTES)
    e("s_barrier")
    spin(GO_V, 4, 121, sleep=slp)
    loads = [(kv_step if (k and not k & 1) else "", f"buffer_load_dwordx4 {q(DAT + 4*k)}, v{109 + (k&1)}, {A}, s{sOFF} offen{pf}") for k in range(16)]
    stream(loads, win[2])
    e(f"s_waitcnt vmcnt({ho[2]})")
    flag_add(GO_WO)
    ts(1)
    if cut:
        e("s_waitcnt vmcnt(0)"); ts(3); dbg_out(); e("s_endpgm")
    e(f"v_lshlrev_b32 v{vA}, 3, v1")
    e(f"s_lshl_b32 s{sOFF2}, s{sGRP}, 2\ns_add_u32 s{sOFF2}, s{sOFF2}, s{sI}\ns_lshl_b32 s{sOFF2}, s{sOFF2}, 5\ns_add_u32 s{sOFF2}, s{sOFF2}, s{sIDX}")
    e(f"s_lshl_b32 s{sOFF}, s{sOFF2}, 7\ns_add_u32 s{sOFF}, s{sOFF}, {S_BASE}")
    spin(F_P, 4, 121)
    ts(2)
    e(f"ds_read_b32 v121, v{vZ} offset:{F_MODE}")
    for w in range(4): e(f"ds_read_b64 v[{TV+2*w}:{TV+2*w+1}], v3 offset:{STLDS + 64*w}")
    lds_operands(PO, vB, PLDS, PLDS + 1024)
    e("s_waitcnt lgkmcnt(0)")
    e(f"v_readfirstlane_b32 s{sMODE}, v121")
    c("factors exp2(m_w - M) / l of the four waves' partial sums, and L = M + log2 l")
    e(f"v_max3_f32 v126, v{TV}, v{TV+2}, v{TV+4}\nv_max_f32 v126, v126, v{TV+6}")
    for w in range(4): e(f"v_sub_f32 v{G+w}, v{TV+2*w}, v126")
    for w in range(4): e(f"v_exp_f32 v{G+w}, v{G+w}")
    e(f"s_nop 0\nv_mul_f32 v127, v{G}, v{TV+1}")
    for w in range(1, 4): e(f"v_fmac_f32 v127, v{G+w}, v{TV+2*w+1}")
    e(f"v_log_f32 v112, v127\nv_rcp_f32 v127, v127\ns_nop 0\nv_add_f32 v112, v112, v126")
    for w in range(4): e(f"v_mul_f32 v{G+w}, v{G+w}, v127")
    e(f"v_min_u32 v112, -2, v112")
    for r in range(1, 4): e(f"v_mov_b32 v{112+r}, v112")
    e("s_mov_b32 exec_lo, 15\ns_mov_b32 exec_hi, 15")
    store_by_mode("buffer_store_dwordx4", q(112), 108)
    e("s_mov_b64 exec, -1")
    part_addrs(3)
    e(f"s_lshl_b32 s{sOFF}, s{sOFF2}, 9\ns_add_u32 s{sOFF}, s{sOFF}, {O_BASE}")
    pingpong(PO, ACC, TV)
    second_block_early(1)
    e("s_waitcnt vmcnt(1)")
    ts(3)
    second_block_last(PO + 8, ACC)
    flag_add(F_O1)
    spin(F_O1, 4, 121)
    part_read(DAT, 3)
    for r in range(4): e(f"v_mul_f32 v{DAT+r}, v{G}, v{DAT+r}")
    for w in range(1, 4):
        for r in range(4): e(f"v_fmac_f32 v{DAT+r}, v{G+w}, v{DAT+4*w+r}")
    pack(DAT, DAT)
    store_by_mode("buffer_store_dwordx2", d2(DAT), vA)
    flag_add(F_O2)
    ts(4)
    dbg_out()
    e("s_endpgm")

    c("=========== WO role: rows of head pair 4 hkv + (idx>>3), column group idx&7; wave 3 first runs the hello round")
    T0, OO, AC = 68, 100, 36
    e("L_WO:")
    lite[0] = False
    e(f"s_setprio {prio[3]}")
    e(f"v_mov_b32 v{vZ}, 0\nv_lshlrev_b32 v2, 2, v1")
    e(f"s_mov_b64 exec, 0xffff\nds_write_b32 v2, v{vZ}\ns_mov_b64 exec, -1")
    e("s_waitcnt lgkmcnt(0)")
    e(f"s_lshl_b32 s9, s{sBR}, 8\ns_load_dword s{sT}, s[{sWS}:{sWS+1}], s9")
    srd(SRD_WS, sWS, WS_BYTES)
    e(f"s_cmp_lg_u32 s{sI}, 3\ns_cbranch_scc1 L_nohello")
    e(f"s_mov_b32 s{sMODE}, 1")
    for r in range(4): e(f"v_mov_b32 v{4+r}, -1")
    c("q slots: 8 x 256 B at stride 1 KB; o slots: 4 x 512 B at stride 16 KB; statistics: 4 x 128 B at stride 4 KB")
    e(f"v_lshrrev_b32 v2, 4, v1\nv_and_b32 v3, 15, v1\nv_lshlrev_b32 v3, 4, v3\nv_lshl_add_u32 v8, v2, 10, v3")
    e(f"v_lshrrev_b32 v2, 5, v1\nv_and_b32 v3, 31, v1\nv_lshlrev_b32 v3, 4, v3\nv_lshl_add_u32 v9, v2, 14, v3")
    e(f"v_bfe_u32 v2, v1, 3, 2\nv_and_b32 v11, 7, v1\nv_lshlrev_b32 v11, 4, v11\nv_lshl_add_u32 v10, v2, 12, v11")
    e(f"s_lshl_b32 s54, s{sGRP}, 3\ns_lshr_b32 s{sTMP}, s{sIDX}, 2\ns_add_u32 s54, s54, s{sTMP}\ns_lshl_b32 s54, s54, 5\ns_and_b32 s{sTMP}, s{sIDX}, 3\ns_add_u32 s54, s54, s{sTMP}")
    e(f"s_lshl_b32 s54, s54, 8\ns_add_u32 s54, s54, {Q_BASE}\ns_add_u32 s55, s54, 4096")
    e(f"s_lshl_b32 s{sTMP}, s{sGRP}, 7\ns_add_u32 s{sTMP}, s{sTMP}, s{sIDX}\ns_lshl_b32 s56, s{sTMP}, 9\ns_add_u32 s56, s56, {O_BASE}\ns_add_u32 s57, s56, 32768")
    e(f"s_lshl_b32 s{sTMP2}, s{sTMP}, 7\ns_add_u32 s{sTMP2}, s{sTMP2}, {S_BASE}")
    e(f"s_lshl_b32 s{sOFF2}, s{sGRP}, 12\ns_add_u32 s{sOFF2}, s{sOFF2}, {H_BASE}")
    def clears(p):
        e(f"buffer_store_dwordx4 {q(4)}, v8, {WS}, s54 offen{p}\nbuffer_store_dwordx4 {q(4)}, v8, {WS}, s55 offen{p}")
        e(f"buffer_store_dwordx4 {q(4)}, v9, {WS}, s56 offen{p}\nbuffer_store_dwordx4 {q(4)}, v9, {WS}, s57 offen{p}")
        e(f"s_mov_b32 exec_hi, 0\nbuffer_store_dwordx4 {q(4)}, v10, {WS}, s{sTMP2} offen{p}\ns_mov_b32 exec_hi, -1")
    clears("")
    e(f"s_getreg_b32 s{sSC}, hwreg(HW_REG_XCC_ID, 0, 4)")
    e("s_waitcnt lgkmcnt(0)")
    tag_setup()
    c("hello word = tag + die")
    e(f"s_add_u32 s{sSC}, s{sSC}, s{sT}")
    e("L_hello:")
    for r in range(4): e(f"v_mov_b32 v{12+r}, s{sSC}")
    e(f"s_lshl_b32 s{sOFF}, s{sIDX}, 7\ns_add_u32 s{sOFF}, s{sOFF}, s{sOFF2}")
    e("s_waitcnt vmcnt(0)\ns_mov_b64 exec, 0xff")
    e(f"buffer_store_dwordx4 {q(12)}, v11, {WS}, s{sOFF} offen sc1\ns_mov_b64 exec, -1")
    e(f"s_cmp_eq_u32 s{sMODE}, 2\ns_cbranch_scc1 L_hpoll0")
    ts(11)
    e("s_barrier")
    spin(F_GH, 4, 16, sleep=slp)
    e("L_hpoll0:")
    e(f"v_and_b32 v16, 31, v1\nv_lshlrev_b32 v16, 7, v16\ns_mov_b32 s{sCNT}, 0x4000")
    e("L_hpoll:")
    e(f"buffer_load_dword v17, v16, {WS}, s{sOFF2} offen sc1\ns_waitcnt vmcnt(0)")
    e(f"v_cmp_ne_u32 s[10:11], s{sSC}, v17\nv_subrev_u32 v17, s{sT}, v17\nv_cmp_lt_u32 vcc, 15, v17")
    e(f"s_or_b32 s{sH}, s10, s11\ns_cbranch_vccz L_hall")
    e(f"s_sleep 8\ns_sub_u32 s{sCNT}, s{sCNT}, 1\ns_cbranch_scc0 L_hpoll\ns_endpgm")
    e("L_hall:")
    e(f"s_cmp_eq_u32 s{sMODE}, 2\ns_cbranch_scc1 L_hdone\ns_cmp_eq_u32 s{sH}, 0\ns_cbranch_scc1 L_hdone")
    c("the group spans dies: clear again write-through, then a second round")
    e(f"s_mov_b32 s{sMODE}, 2\ns_add_u32 s{sOFF2}, s{sOFF2}, 0x8000")
    clears(" sc1")
    e("s_branch L_hello")
    e("L_hdone:")
    e(f"v_mov_b32 v4, s{sMODE}\nds_write_b32 v{vZ}, v4 offset:{F_MODE}")
    ts(7); cnt(9)
    e("s_branch L_wosetup")
    e("L_nohello:")
    if warm:
        c("pull the kernel's code into this die's L2: workgroup idx, wave i reads line idx + 32 i")
        e(f"s_getpc_b64 s[54:55]\nL_pc:\ns_sub_u32 s54, s54, L_pc-{KN}\ns_subb_u32 s55, s55, 0")
        e(f"s_lshl_b32 s{sTMP}, s{sI}, 5\ns_add_u32 s{sTMP}, s{sTMP}, s{sIDX}\ns_lshl_b32 s56, s{sTMP}, 7\ns_min_u32 s56, s56, L_end-{KN}")
        e("s_load_dword s57, s[54:55], s56")
    e("s_waitcnt lgkmcnt(0)")
    tag_setup()
    e("s_barrier")
    e("L_wosetup:")
    c("rows 16 n + 4 i + g of the 256, 256 B of each")
    e(f"v_lshrrev_b32 v2, 4, v1\nv_and_b32 v3, 15, v1\nv_lshlrev_b32 v3, 4, v3\nv_lshl_add_u32 v{vA}, v2, 11, v3\nv_lshl_add_u32 v125, v2, 12, v3")
    e(f"s_lshr_b32 s{sTMP}, s{sIDX}, 3\ns_lshl_b32 s{sB}, s{sHKV}, 2\ns_add_u32 s{sB}, s{sB}, s{sTMP}\ns_and_b32 s{sSC}, s{sIDX}, 7")
    e(f"s_lshl_b32 s{sOFF}, s{sB}, 19\ns_lshl_b32 s{sTMP}, s{sI}, 13\ns_add_u32 s{sOFF}, s{sOFF}, s{sTMP}\ns_lshl_b32 s{sTMP}, s{sSC}, 8\ns_add_u32 s{sOFF}, s{sOFF}, s{sTMP}")
    c("o operand address: (l&7)*528 + i*128 + block*64 + g*16 ; out lane offset: (32*((l>>3)&1) + 8*(l>>4) + (l&7))*2")
    e(f"v_and_b32 v3, 7, v1\nv_mul_u32_u24 v123, 528, v3\nv_lshl_add_u32 v123, v2, 4, v123\ns_lshl_b32 s{sTMP}, s{sI}, 7\nv_add_u32 v123, s{sTMP}, v123")
    e(f"v_bfe_u32 v122, v1, 3, 1\nv_lshlrev_b32 v122, 6, v122\nv_lshl_add_u32 v122, v2, 4, v122\nv_lshl_add_u32 v122, v3, 1, v122")
    part_addrs(3)
    e(f"v_mov_b32 v{vM}, 0x7ff\nv_mov_b32 v{vONE}, 1\nv_lshlrev_b32 v2, 4, v1")
    zero(OO, 16)
    srd(SRD_A, sWO, 8 << 20); srd(SRD_B, sOUT, 32768)
    spin(GO_WO, 4, 121, sleep=slp)
    loads = [(f"s_add_u32 s{sOFF}, s{sOFF}, 32768" if n else "", f"buffer_load_dwordx4 {q(DAT + 4*n)}, v{vA}, {A}, s{sOFF} offen{pf}") for n in range(16)]
    stream(loads, win[3], [(no, F_O2)])
    ts(1)
    e(f"s_lshl_b32 s{sOFF}, s{sBR}, 3\ns_add_u32 s{sOFF}, s{sOFF}, s{sSC}\ns_lshl_b32 s{sOFF}, s{sOFF}, 16\ns_add_u32 s{sOFF}, s{sOFF}, {R_BASE}")
    e(f"s_lshl_b32 s{sTMP}, s{sB}, 12\ns_add_u32 s{sTMP2}, s{sOFF}, s{sTMP}")
    e(f"s_lshl_b32 s{sTMP}, s{sI}, 14\ns_add_u32 s{sOFF}, s{sOFF}, s{sTMP}\ns_lshl_b32 s{sTMP}, s{sB}, 8\ns_add_u32 s{sOFF}, s{sOFF}, s{sTMP}")
    c("out byte offset: (b*2048 + br*1024 + cg*128 + nh*64)*2 with (b, nh) = row group")
    e(f"s_lshr_b32 s{sOFF2}, s{sB}, 1\ns_lshl_b32 s{sOFF2}, s{sOFF2}, 12\ns_lshl_b32 s{sTMP}, s{sBR}, 11\ns_add_u32 s{sOFF2}, s{sOFF2}, s{sTMP}")
    e(f"s_lshl_b32 s{sTMP}, s{sSC}, 8\ns_add_u32 s{sOFF2}, s{sOFF2}, s{sTMP}\ns_and_b32 s{sTMP}, s{sB}, 1\ns_lshl_b32 s{sTMP}, s{sTMP}, 7\ns_add_u32 s{sOFF2}, s{sOFF2}, s{sTMP}")
    e(f"s_mov_b32 s{sCNT}, 0x4000")
    for ip in range(4):
        e(f"s_waitcnt vmcnt({14 - 2*ip})")
        for j in range(8): perm(T0 + 4*j + ip, DAT, j, ip)
    second_block_early(0)
    if cut: e("s_waitcnt vmcnt(0)")
    ts(2)
    if cut:
        dbg_out(); e("s_endpgm")
    e("s_setprio 3\ns_barrier")
    ts(3)
    lds_operands(OO, 123, OLDS, OLDS + 64)
    e("s_waitcnt lgkmcnt(0)")
    for j in range(8): e(wm(AC, j, T0 + 4*j, OO, True))
    e("s_waitcnt vmcnt(0)")
    ts(6)
    second_block_last(OO + 8, AC)
    e("s_waitcnt lgkmcnt(0)\ns_barrier")
    part_read(T0, 3)
    sum4(T0)
    for r in range(4): e(f"v_bfi_b32 v{T0+r}, v{vM}, s{sT+r}, v{T0+r}")
    e(f"buffer_store_dwordx4 {q(T0)}, v125, {WS}, s{sOFF} offen sc1")
    ts(4)
    e(f"s_cmp_lg_u32 s{sI}, 0\ns_cbranch_scc1 L_fin")
    c("wave 0 sums the 16 row groups' partials of 64 outputs; the others' need about as long to land as its own")
    if rack: e("s_waitcnt vmcnt(0)")
    ts(10)
    e("s_branch L_rpoll\nL_rretry:")
    retry(0)
    e("L_rpoll:")
    for k in range(4): e(f"buffer_load_dwordx4 {q(12+4*k)}, v2, {WS}, s{sTMP2} offen offset:{1024*k} sc1")
    e("s_waitcnt vmcnt(0)")
    for r in range(4):
        for k in range(2): e(f"v_bitop3_b32 v{28 + 2*r + k}, v{12 + 8*k + r}, v{16 + 8*k + r}, s{sT+r} bitop3:0x7e")
    e("v_or3_b32 v28, v28, v29, v30\nv_or3_b32 v31, v31, v32, v33\nv_or3_b32 v28, v28, v34, v35")
    e(f"v_bitop3_b32 v28, v28, v31, v{vM} bitop3:0xa8\nv_cmp_ne_u32 vcc, 0, v28\ns_cbranch_vccnz L_rretry")
    sum4(12)
    e("s_nop 1\nv_permlane32_swap_b32 v12, v14\nv_permlane32_swap_b32 v13, v15")
    e("v_add_f32 v12, v12, v14\nv_add_f32 v13, v13, v15\ns_nop 1\nv_permlane16_swap_b32 v12, v13\nv_add_f32 v12, v12, v13")
    e("v_cvt_pk_bf16_f32 v12, v12, v12")
    e(f"buffer_store_short v12, v122, {B}, s{sOFF2} offen {outpol}")
    ts(5); cnt(8)
    c("the first workgroup of a branch moves the epoch word on: every workgroup of that branch has read it by now")
    e(f"s_or_b32 s{sTMP}, s{sHKV}, s{sIDX}\ns_cmp_lg_u32 s{sTMP}, 0\ns_cbranch_scc1 L_fin")
    e(f"s_lshl_b32 s{sTMP}, s{sBR}, 8\nv_mov_b32 v4, s{sT}\nv_mov_b32 v5, 0\ns_mov_b64 exec, 1")
    e(f"buffer_store_dword v4, v5, {WS}, s{sTMP} offen {eppol}")
    e("L_fin:")
    if dbg: e("s_nop 1")
    dbg_out()
    e("L_end:\ns_endpgm")
    e(f""".section .rodata,"a"
.p2align 6
.amdhsa_kernel {KN}
  .amdhsa_next_free_vgpr 128
  .amdhsa_next_free_sgpr 96
  .amdhsa_accum_offset 128
  .amdhsa_group_segment_fixed_size 0
  .amdhsa_kernarg_size 104
  .amdhsa_user_sgpr_count 2
  .amdhsa_user_sgpr_kernarg_segment_ptr 1
  .amdhsa_system_sgpr_workgroup_id_x 1
.end_amdhsa_kernel""")
    return "\n".join(o) + "\n"

if __name__ == "__main__":
    kw = eval("dict(" + (sys.argv[2] if len(sys.argv) > 2 else "") + ")")
    open(sys.argv[1], "w").write(gen(**kw))
```

```python
import sys
KN = "concat_heads__sliding_block_cached__sliding_block_cached__decode_kernel"
REF = "concat_heads__sliding_block_cached__sliding_block_cached__decode.s.ref"

H_BASE = 0x1000
S_BASE = 0x20000
Q_BASE = 0x80000
O_BASE = 0x100000
R_BASE = 0x200000
DBG_BASE = 0x800000
WS_BYTES = 0x1000000
F_Q1, F_Q, F_P, F_O1, F_O2, F_GQ, GO_V, GO_WO, F_MODE, F_GH = 0, 4, 8, 12, 16, 20, 24, 28, 32, 36
QLDS = 64
PLDS = 2304
STLDS = 10496
OLDS = 10752
PART = 15360
LDS_BYTES = PART + 4 * 4480
sGRP, sIDX, sBR, sHKV, sI, sROLE = 3, 4, 5, 6, 7, 8
sX, sK, sV, sWQ, sWO, sOUT, sWS = 12, 14, 16, 18, 20, 22, 24
sLO = 26
SRD_A, SRD_WS, SRD_B = 28, 32, 36
sT = 40
sTAG = 9
sSELLO, sSELHI = 44, 45
sOFF, sTMP, sTMP2, sCNT, sB, sSC, sOFF2, sH, sSTEP, sMODE = 46, 47, 48, 49, 50, 51, 52, 53, 58, 59
TS0 = 60
NPOLL = 0x20000

def gen(pol="nt", dbg=False, prio=(3, 2, 2, 1), gprio=2, win=(6, 6, 6, 6), ho=(5, 5, 5), nq=16, no=8, nh=8, xpos=6,
        cut=0, warm=True, rack=True, xperm=False, outpol="", eppol="", slp=1, kvm=(8, 15, 10, 13, 16), kvr="b", wqord=None, wide=(0, 0, 0, 0), widex=4):
    o = []
    two = lambda x: x if isinstance(x, tuple) else (x, x + 1)
    (g0, g1), ub, Tb, (i0, i1), (s0, s1) = two(kvm[0]), kvm[1], kvm[2], two(kvm[3]), two(kvm[4])
    assert sorted([g0, g1, ub, Tb, Tb + 1, Tb + 2, i0, i1, s0, s1]) == list(range(8, 18))
    def e(s): o.append(s)
    def c(s): o.append("; " + s)
    pf = (" " + pol) if pol else ""
    dpp = "row_mask:0xf bank_mask:0xf"
    A = f"s[{SRD_A}:{SRD_A+3}]"; WS = f"s[{SRD_WS}:{SRD_WS+3}]"; B = f"s[{SRD_B}:{SRD_B+3}]"; LO = f"s[{sLO}:{sLO+1}]"
    vZ, vONE, vA, vM, vB = 116, 117, 118, 119, 120
    DAT = 4
    uid = [0]
    def lab(n):
        uid[0] += 1; return f"L_{n}_{uid[0]}"
    lite = [dbg == 6]
    def ts(k):
        if dbg and not (lite[0] and k): e(f"s_memrealtime s[{TS0+2*k}:{TS0+2*k+1}]")
    def cnt(k):
        if dbg and dbg != 7 and not lite[0]: e(f"s_sub_u32 s{TS0+2*k}, {NPOLL}, s{sCNT}")
    def srd(d, base, nbytes):
        e(f"s_mov_b32 s{d}, s{base}\ns_mov_b32 s{d+1}, s{base+1}\ns_mov_b32 s{d+2}, {nbytes}\ns_mov_b32 s{d+3}, 0x20000")
    def q(a): return f"v[{a}:{a+3}]"
    def d2(a): return f"v[{a}:{a+1}]"
    def flag_add(off):
        e(f"s_mov_b64 exec, 1\nds_add_u32 v{vZ}, v{vONE} offset:{off}\ns_mov_b64 exec, -1")
    def spin(off, n, vt, sleep=0):
        l = lab("spin"); d = lab("spun")
        e(f"s_mov_b32 s{sCNT}, 0x80000\n{l}:")
        e(f"ds_read_b32 v{vt}, v{vZ} offset:{off}\ns_waitcnt lgkmcnt(0)\nv_readfirstlane_b32 s{sTMP}, v{vt}")
        e(f"s_cmp_ge_u32 s{sTMP}, {n}\ns_cbranch_scc1 {d}")
        if sleep: e(f"s_sleep {sleep}")
        e(f"s_sub_u32 s{sCNT}, s{sCNT}, 1\ns_cbranch_scc0 {l}\ns_endpgm\n{d}:")
    def tag_setup():
        e(f"s_add_u32 s{sTAG}, s{sT}, 0x9E3779B1")
        for r in range(4): e(f"s_bfe_u32 s{sT+r}, s{sTAG}, {hex((11 << 16) + 7*r)}")
    def sum4(v):
        for a, b in ((0, 8), (2, 10), (4, 12), (6, 14), (0, 4), (2, 6)): e(f"v_pk_add_f32 {d2(v+a)}, {d2(v+a)}, {d2(v+b)}")
    def pack(dst, src):
        e(f"v_cvt_pk_bf16_f32 v{dst}, v{src}, v{src+1}\nv_cvt_pk_bf16_f32 v{dst+1}, v{src+2}, v{src+3}")
        e(f"v_min_u32 v{dst}, -2, v{dst}\nv_min_u32 v{dst+1}, -2, v{dst+1}")
    def ones_check(regs, vacc, retry):
        regs = list(regs)
        e(f"v_max3_u32 v{vacc}, v{regs[0]}, v{regs[1]}, v{regs[2]}")
        k = 3
        while k + 1 < len(regs): e(f"v_max3_u32 v{vacc}, v{vacc}, v{regs[k]}, v{regs[k+1]}"); k += 2
        if k < len(regs): e(f"v_max_u32 v{vacc}, v{vacc}, v{regs[k]}")
        e(f"v_cmp_eq_u32 vcc, -1, v{vacc}\ns_cbranch_vccnz {retry}")
    def unpack(dst, src):
        e(f"v_lshlrev_b32 v{dst}, 16, v{src}\nv_and_b32 v{dst+1}, 0xffff0000, v{src}")
    def store_by_mode(op, data, va):
        g, d = lab("wt"), lab("st")
        e(f"s_cmp_eq_u32 s{sMODE}, 2\ns_cbranch_scc1 {g}")
        e(f"{op} {data}, v{va}, {WS}, s{sOFF} offen\ns_branch {d}")
        e(f"{g}:\n{op} {data}, v{va}, {WS}, s{sOFF} offen sc1\n{d}:")
    def retry(sleep):
        e(f"s_sub_u32 s{sCNT}, s{sCNT}, 1\ns_cbranch_scc1 L_end")
        if sleep: e(f"s_sleep {sleep}")
    def perm_s(dst, src, j, ip):
        u, p = j >> 1, j & 1
        return f"v_perm_b32 v{dst}, v{src + (2*ip+1)*4 + u}, v{src + (2*ip)*4 + u}, s{sSELHI if p else sSELLO}"
    def perm(*a): e(perm_s(*a))
    def mfma_s(d, a, b, cc):
        return f"v_mfma_f32_16x16x32_bf16 {q(d)}, {q(a)}, {q(b)}, {q(cc) if cc is not None else 0}"
    def mfma(*a): e(mfma_s(*a))
    def wm(acc, j, a, bop, first): return mfma_s(acc + 4*(j & 3), a, bop + 4*(j >> 2), None if (first and j < 4) else acc + 4*(j & 3))
    def pingpong(bop, acc, T):
        for ip in range(4): perm(T + ip, DAT, 0, ip)
        for j in range(8):
            if j < 7:
                for ip in range(4): perm(T + 4*((j+1) & 1) + ip, DAT, j + 1, ip)
            else:
                e("s_nop 0")
            e(wm(acc, j, T + 4*(j & 1), bop, True))
    def second_block_early(base):
        for ip in range(3):
            e(f"s_waitcnt vmcnt({base + 6 - 2*ip})")
            for j in range(8): perm(DAT + 4*j + ip, DAT + 32, j, ip)
    def second_block_last(bop, acc):
        slot = 0; todo = []
        def emit(t):
            nonlocal slot; e(t); slot += 1
        emit(perm_s(DAT + 3, DAT + 32, 0, 3)); emit(perm_s(DAT + 7, DAT + 32, 1, 3))
        for j in range(8):
            if j < 6: emit(perm_s(DAT + 4*(j+2) + 3, DAT + 32, j + 2, 3))
            emit(wm(acc, j, DAT + 4*j, bop, False))
            if j >= 4: todo.append((slot + 8, f"ds_write_b128 v{vB}, {q(acc + 4*(j-4))} offset:{PART + (j-4)*1120}"))
        for at, t in todo:
            if at > slot: e(f"s_nop {at - slot - 1}"); slot = at
            emit(t)
    def part_addrs(vr):
        e(f"v_lshrrev_b32 v2, 4, v1\nv_mul_u32_u24 v2, 272, v2\nv_and_b32 v{vr}, 15, v1\nv_lshl_add_u32 v2, v{vr}, 4, v2")
        e(f"s_mul_i32 s{sTMP}, s{sI}, 4480\nv_add_u32 v{vB}, s{sTMP}, v2")
        e(f"v_and_b32 v{vr}, 3, v1\nv_mul_u32_u24 v{vr}, 1120, v{vr}\nv_bfe_u32 v2, v1, 3, 2\nv_mul_u32_u24 v2, 272, v2\nv_add_u32 v{vr}, v{vr}, v2")
        e(f"v_bfe_u32 v2, v1, 2, 1\nv_lshl_add_u32 v{vr}, v2, 7, v{vr}\nv_lshrrev_b32 v2, 5, v1\nv_lshl_add_u32 v{vr}, v2, 4, v{vr}")
        e(f"s_lshl_b32 s{sTMP}, s{sI}, 5\nv_add_u32 v{vr}, s{sTMP}, v{vr}")
    def part_read(v, vr):
        for w in range(4): e(f"ds_read_b128 {q(v + 4*w)}, v{vr} offset:{PART + w*4480}")
        e("s_waitcnt lgkmcnt(0)")
    def zero(v, n):
        for k in range(n): e(f"v_mov_b32 v{v+k}, 0")
    def lds_operands(v, va, off0, off1):
        e(f"s_mov_b64 exec, {LO}\nds_read_b128 {q(v)}, v{va} offset:{off0}\nds_read_b128 {q(v+8)}, v{va} offset:{off1}")
        e(f"s_not_b64 exec, exec\nds_read_b128 {q(v+4)}, v{va} offset:{off0}\nds_read_b128 {q(v+12)}, v{va} offset:{off1}\ns_mov_b64 exec, -1")
    def stream(loads, w, sig=(), more=0):
        if more: e(f"s_getreg_b32 s{sTMP}, hwreg(HW_REG_XCC_ID, 0, 4)\ns_cmp_ge_u32 s{sTMP}, {widex}\ns_cselect_b64 vcc, -1, 0")
        for n, (pre, ld) in enumerate(loads):
            if pre: e(pre)
            if n >= w:
                if more:
                    l = lab("wide"); e(f"s_cbranch_vccnz {l}\ns_waitcnt vmcnt({w-1})\n{l}:\ns_waitcnt vmcnt({w-1+more})")
                else: e(f"s_waitcnt vmcnt({w-1})")
            e(ld)
            for k, off in sig:
                if k == n + 1: flag_add(off)
    def dbg_out():
        if not dbg or lite[0]: return
        e("s_waitcnt lgkmcnt(0)\ns_mov_b64 exec, 1")
        e(f"s_lshl_b32 s{sTMP}, s{sROLE}, 2\ns_add_u32 s{sTMP}, s{sTMP}, s{sI}\ns_lshl_b32 s{sTMP2}, s2, 4\ns_add_u32 s{sTMP}, s{sTMP}, s{sTMP2}")
        e(f"s_lshl_b32 s{sTMP}, s{sTMP}, 6\ns_add_u32 s{sTMP}, s{sTMP}, {DBG_BASE}")
        for k in range(12): e(f"v_mov_b32 v{4+k}, s{TS0+2*k}")
        e(f"s_getreg_b32 s{sTMP2}, hwreg(HW_REG_XCC_ID)\nv_mov_b32 v16, s{sTMP2}\nv_mov_b32 v17, s{sCNT}\ns_getreg_b32 s{sTMP2}, hwreg(HW_REG_HW_ID)\nv_mov_b32 v18, s{sTMP2}\nv_mov_b32 v19, 0\nv_mov_b32 v2, 0")
        for k in range(4): e(f"buffer_store_dwordx4 {q(4+4*k)}, v2, {WS}, s{sTMP} offen offset:{16*k}")
        e("s_mov_b64 exec, -1")

    hdr = [l for l in open(REF).read().split("\n") if l.startswith(";") and "@launch" not in l]
    o += hdr
    e(f"; @launch grid=(256,1,1) block=(1024,1,1) lds={LDS_BYTES}")
    for l in __doc__.split("\n"): c(l.replace("Generator v9 for the fused decode kernel: one", "One"))
    e('.amdgcn_target "amdgcn-amd-amdhsa--gfx950"\n.text')
    e(f".globl {KN}\n.p2align 8\n.type {KN},@function\n{KN}:")
    if dbg:
        for k in range(1, 12): e(f"s_mov_b32 s{TS0+2*k}, 0")
    ts(0)
    c("workgroup = (group = id & 7 = (branch, kv head), idx = id >> 3); wave = (role, i)")
    e("s_cmp_ge_u32 s2, 256\ns_cbranch_scc1 L_end")
    if xperm == 2: e("s_bitcmp1_b32 s2, 3\ns_cbranch_scc0 L_xp\ns_xor_b32 s2, s2, 5\nL_xp:")
    if xperm == 3: e("s_and_b32 s3, s2, 0xf9\ns_cmp_eq_u32 s3, 0x40\ns_cbranch_scc0 L_xp\ns_xor_b32 s2, s2, 2\nL_xp:")
    if xperm == 1: e("s_and_b32 s3, s2, 7\ns_bfe_u32 s4, s2, 0x30003\ns_andn2_b32 s2, s2, 63\ns_lshl_b32 s3, s3, 3\ns_or_b32 s2, s2, s3\ns_or_b32 s2, s2, s4")
    e(f"s_and_b32 s{sBR}, s2, 1\ns_mul_i32 s9, s{sBR}, 40\ns_add_u32 s10, s0, s9\ns_addc_u32 s11, s1, 0")
    e(f"s_load_dwordx8 s[12:19], s[10:11], 0\ns_load_dwordx2 s[20:21], s[10:11], 32")
    e(f"s_load_dwordx2 s[22:23], s[0:1], 80\ns_load_dwordx2 s[24:25], s[0:1], 96")
    e("v_lshrrev_b32 v2, 6, v0\nv_and_b32 v1, 63, v0")
    e(f"v_readfirstlane_b32 s{sROLE}, v2")
    e(f"s_and_b32 s{sGRP}, s2, 7\ns_lshr_b32 s{sIDX}, s2, 3\ns_lshr_b32 s{sHKV}, s{sGRP}, 1")
    e(f"s_mov_b32 s{sSELLO}, 0x05040100\ns_mov_b32 s{sSELHI}, 0x07060302\ns_mov_b32 s{sLO}, 0x00ff00ff\ns_mov_b32 s{sLO+1}, 0x00ff00ff")
    e(f"s_and_b32 s{sI}, s{sROLE}, 3\ns_lshr_b32 s{sROLE}, s{sROLE}, 2")
    e(f"s_cmp_eq_u32 s{sROLE}, 1\ns_cbranch_scc1 L_K\ns_cmp_eq_u32 s{sROLE}, 2\ns_cbranch_scc1 L_V\ns_cmp_eq_u32 s{sROLE}, 3\ns_cbranch_scc1 L_WO")

    c("=========== WQ role: partial q of head idx>>2 over the k quarter idx&3, all 8 batches; 64 rows x 128 columns per wave")
    XO, D, T = 68, 84, 100
    e(f"s_setprio {prio[0]}")
    e("v_lshrrev_b32 v2, 4, v1\nv_and_b32 v3, 15, v1")
    e(f"v_lshlrev_b32 v{vA}, 16, v2\nv_lshl_add_u32 v{vA}, v3, 4, v{vA}")
    e(f"v_and_b32 v3, 7, v1\nv_lshlrev_b32 v{vB}, 11, v3\nv_lshl_add_u32 v{vB}, v2, 4, v{vB}")
    e(f"s_lshr_b32 s{sB}, s{sIDX}, 2\ns_and_b32 s{sSC}, s{sIDX}, 3")
    c("neighbours along a row start on different 32-row blocks")
    e(f"s_add_u32 s{sH}, s{sI}, s{sB}\ns_and_b32 s{sH}, s{sH}, 3\ns_lshr_b32 s{sTMP2}, s{sB}, 2")
    e(f"s_lshl_b32 s{sTMP}, s{sSC}, 2\ns_add_u32 s{sTMP}, s{sTMP}, s{sH}\ns_lshl_b32 s{sTMP}, s{sTMP}, 1\ns_add_u32 s{sTMP}, s{sTMP}, s{sTMP2}")
    e(f"s_lshl_b32 s{sOFF}, s{sTMP}, 18\ns_lshl_b32 s{sOFF2}, s{sTMP}, 6\ns_xor_b32 s9, s{sOFF2}, 64")
    e(f"s_lshl_b32 s{sSTEP}, s{sTMP2}, 19\ns_sub_u32 s{sSTEP}, {25*8192}, s{sSTEP}")
    e(f"s_lshl_b32 s{sTMP}, s{sHKV}, 11\ns_add_u32 s{sOFF}, s{sOFF}, s{sTMP}\ns_lshl_b32 s{sTMP}, s{sB}, 8\ns_add_u32 s{sOFF}, s{sOFF}, s{sTMP}")
    e(f"s_mov_b32 s{SRD_A+2}, {8 << 20}\ns_mov_b32 s{SRD_A+3}, 0x20000")
    e("s_waitcnt lgkmcnt(0)")
    e(f"s_mov_b32 s{SRD_A}, s{sWQ}\ns_mov_b32 s{SRD_A+1}, s{sWQ+1}")
    if dbg == 7: ts(9)
    loads = []
    for n in range(16):
        pre = "" if n == 0 else (f"s_add_u32 s{sOFF}, s{sOFF}, s{sSTEP}" if n == 8 else f"s_add_u32 s{sOFF}, s{sOFF}, 8192")
        loads.append((pre, f"buffer_load_dwordx4 {q(DAT + 4*n)}, v{vA}, {A}, s{sOFF} offen{pf}"))
    if wqord:
        loads = []; cur = 0
        for blk in range(2):
            for jj in wqord:
                d = (jj - cur) * 8192; cur = jj
                pre = (f"s_add_u32 s{sOFF}, s{sOFF}, s{sSTEP}\ns_add_u32 s{sOFF}, s{sOFF}, {(7*8192 + d) & 0xffffffff}" if (blk and jj == wqord[0]) else (f"s_add_u32 s{sOFF}, s{sOFF}, {d & 0xffffffff}" if d else ""))
                loads.append((pre, f"buffer_load_dwordx4 {q(DAT + 32*blk + 4*jj)}, v{vA}, {A}, s{sOFF} offen{pf}"))
    xpre = "\n".join(f"v_mov_b32 v{XO+k}, 0" for k in range(16))
    xpre += f"\ns_mov_b32 s{SRD_B}, s{sX}\ns_mov_b32 s{SRD_B+1}, s{sX+1}\ns_mov_b32 s{SRD_B+2}, 16384\ns_mov_b32 s{SRD_B+3}, 0x20000\ns_mov_b64 exec, {LO}"
    loads[xpos:xpos] = [(xpre, f"buffer_load_dwordx4 {q(XO)}, v{vB}, {B}, s{sOFF2} offen"),
                        ("", f"buffer_load_dwordx4 {q(XO+8)}, v{vB}, {B}, s9 offen\ns_mov_b64 exec, -1")]
    if dbg == 7: loads[xpos] = (loads[xpos][0] + f"\ns_memrealtime s[{TS0+16}:{TS0+17}]\ns_waitcnt vmcnt({win[0]-1})\ns_memrealtime s[{TS0+20}:{TS0+21}]", loads[xpos][1])
    stream(loads, win[0], more=wide[0])
    e(f"s_waitcnt vmcnt({ho[0]})")
    ts(11)
    e("s_barrier")
    ts(1)
    srd(SRD_WS, sWS, WS_BYTES)
    e(f"v_mov_b32 v{vZ}, 0\nv_mov_b32 v{vONE}, 1")
    part_addrs(121)
    if cut == 1:
        e("s_waitcnt vmcnt(0)"); ts(2); dbg_out(); e("s_endpgm")
    for blk in range(2):
        for r in range(4): e(f"v_mov_b32_dpp v{XO + 8*blk + 4 + r}, v{XO + 8*blk + r} row_ror:8 row_mask:0xf bank_mask:0xc")
    c("publish v122: ((grp*8 + h)*8 + 2i + b')*1024 + kq*256 + (l&31)*8 ; gather vA: ((grp*8 + 2i + h')*8 + b)*1024 + kq*256 + (l&31)*8")
    e(f"v_lshrrev_b32 v2, 5, v1\nv_and_b32 v{vA}, 31, v1\nv_lshlrev_b32 v{vA}, 3, v{vA}\nv_lshl_add_u32 v122, v2, 10, v{vA}\nv_lshl_add_u32 v{vA}, v2, 13, v{vA}")
    e(f"s_lshl_b32 s{sOFF2}, s{sGRP}, 16\ns_add_u32 s{sOFF2}, s{sOFF2}, {Q_BASE}")
    e(f"s_lshl_b32 s{sOFF}, s{sB}, 2\ns_add_u32 s{sOFF}, s{sOFF}, s{sI}\ns_lshl_b32 s{sOFF}, s{sOFF}, 3\ns_add_u32 s{sOFF}, s{sOFF}, s{sSC}\ns_lshl_b32 s{sOFF}, s{sOFF}, 8\ns_add_u32 s{sOFF}, s{sOFF}, s{sOFF2}")
    c("q in LDS: (2i + h')*272 + ((l>>3)&3)*64 + (l&7)*2")
    e(f"v_mul_u32_u24 v2, 272, v2\nv_bfe_u32 v123, v1, 3, 2\nv_lshl_add_u32 v2, v123, 6, v2\nv_lshl_add_u32 v2, v3, 1, v2\ns_mul_i32 s{sTMP}, s{sI}, 544\nv_add_u32 v2, s{sTMP}, v2")
    assert ho[0] <= 8 and ho[2] <= 8 and xpos <= 16 - ho[0]
    pingpong(XO, D, T)
    second_block_early(0)
    e("s_waitcnt vmcnt(0)")
    ts(2)
    second_block_last(XO + 8, D)
    flag_add(F_Q1)
    spin(F_Q1, 4, 123)
    part_read(DAT, 121)
    sum4(DAT)
    pack(DAT, DAT)
    e(f"buffer_store_dwordx2 {d2(DAT)}, v122, {WS}, s{sOFF} offen")
    ts(3)
    spin(F_MODE, 1, 123, sleep=slp)
    e(f"s_cmp_eq_u32 s{sTMP}, 1\ns_cbranch_scc1 L_qloc")
    e(f"buffer_store_dwordx2 {d2(DAT)}, v122, {WS}, s{sOFF} offen sc1\nL_qloc:")
    e(f"s_lshl_b32 s{sOFF}, s{sI}, 4\ns_add_u32 s{sOFF}, s{sOFF}, s{sB}\ns_lshl_b32 s{sOFF}, s{sOFF}, 10\ns_add_u32 s{sOFF}, s{sOFF}, s{sOFF2}")
    spin(F_GQ, 4, 123, sleep=slp)
    ts(7)
    c("gather q of this workgroup's batch: heads 2i, 2i+1, four partials")
    e(f"s_mov_b32 s{sCNT}, {NPOLL}\ns_branch L_qpoll\nL_qretry:")
    retry(2)
    e("L_qpoll:")
    for k in range(4): e(f"buffer_load_dwordx2 {d2(20+2*k)}, v{vA}, {WS}, s{sOFF} offen offset:{256*k} sc1")
    e("s_waitcnt vmcnt(0)")
    ones_check(range(20, 28), 28, "L_qretry")
    for k in range(8): unpack(32 + 2*k, 20 + k)
    sum4(32)
    e("v_cvt_pk_bf16_f32 v20, v32, v33\nv_cvt_pk_bf16_f32 v22, v34, v35")
    e(f"ds_write_b16 v2, v20 offset:{QLDS}\nds_write_b16_d16_hi v2, v20 offset:{QLDS+16}")
    e(f"ds_write_b16 v2, v22 offset:{QLDS+32}\nds_write_b16_d16_hi v2, v22 offset:{QLDS+48}")
    flag_add(F_Q)
    ts(4); cnt(8)
    e(f"s_mov_b32 s{sB}, s{sI}")

    c("=========== o gather (WQ and K waves, one batch each): merge the four key quarters of head pair idx>>3")
    e("L_G:")
    e(f"s_setprio {gprio}")
    e(f"s_lshr_b32 s{sH}, s{sIDX}, 3")
    c("stats: grp*16K + hp*4K + (4b + s)*128 + h'*64")
    e(f"v_lshrrev_b32 v2, 5, v1\nv_lshlrev_b32 v4, 6, v2\nv_and_b32 v5, 3, v1\nv_lshl_add_u32 v3, v5, 7, v4")
    e(f"s_lshl_b32 s{sOFF}, s{sGRP}, 2\ns_add_u32 s{sOFF}, s{sOFF}, s{sH}\ns_lshl_b32 s{sOFF}, s{sOFF}, 3\ns_add_u32 s{sOFF}, s{sOFF}, s{sB}")
    e(f"s_lshl_b32 s{sOFF2}, s{sOFF}, 9\ns_add_u32 s{sOFF2}, s{sOFF2}, {S_BASE}")
    e(f"s_lshl_b32 s{sOFF}, s{sOFF}, 11\ns_add_u32 s{sOFF}, s{sOFF}, {O_BASE}")
    c("o in LDS [b][wave 4][h' 2][g 4][jj 8]: values r0,r2 -> wave j>>2, r1,r3 -> wave 2 + (j>>2); g = j&3, jj = 2 gD")
    e(f"v_bfe_u32 v30, v1, 2, 1\nv_lshlrev_b32 v30, 7, v30\nv_lshl_add_u32 v30, v2, 6, v30\nv_lshl_add_u32 v30, v5, 4, v30\nv_bfe_u32 v4, v1, 3, 2\nv_lshl_add_u32 v30, v4, 2, v30")
    e(f"s_mul_i32 s{sTMP}, s{sB}, 528\nv_add_u32 v30, s{sTMP}, v30\nv_lshlrev_b32 v2, 3, v1")
    spin(F_O2, 8 if no else 4, 31, sleep=slp)
    ts(5)
    e(f"s_mov_b32 s{sCNT}, {NPOLL}\ns_branch L_opoll\nL_oretry:")
    retry(0)
    e("L_opoll:")
    e(f"buffer_load_dword v4, v3, {WS}, s{sOFF2} offen sc1")
    for k in range(4): e(f"buffer_load_dwordx2 {d2(12+2*k)}, v2, {WS}, s{sOFF} offen offset:{512*k} sc1")
    e("s_waitcnt vmcnt(4)")
    c("weights of the quarters: softmax over the four log2-sum-exp values held by a quad of lanes")
    e(f"v_max_f32_dpp v6, v4, v4 quad_perm:[1,0,3,2] {dpp}\ns_nop 1")
    e(f"v_max_f32_dpp v6, v6, v6 quad_perm:[2,3,0,1] {dpp}")
    e("v_sub_f32 v6, v4, v6\nv_exp_f32 v6, v6\ns_nop 1")
    e(f"v_add_f32_dpp v7, v6, v6 quad_perm:[1,0,3,2] {dpp}\ns_nop 1")
    e(f"v_add_f32_dpp v7, v7, v7 quad_perm:[2,3,0,1] {dpp}")
    e("v_rcp_f32 v7, v7\ns_waitcnt vmcnt(0)\nv_mul_f32 v6, v6, v7")
    ones_check([4] + list(range(12, 20)), 28, "L_oretry")
    for k in range(8): unpack(32 + 2*k, 12 + k)
    for r in range(4): e(f"v_mul_f32_dpp v{32+r}, v6, v{32+r} quad_perm:[0,0,0,0] {dpp}")
    for k in range(1, 4):
        for r in range(4): e(f"v_fmac_f32_dpp v{32+r}, v6, v{32+4*k+r} quad_perm:[{k},{k},{k},{k}] {dpp}")
    e("v_cvt_pk_bf16_f32 v12, v32, v34\nv_cvt_pk_bf16_f32 v13, v33, v35")
    e(f"ds_write_b32 v30, v12 offset:{OLDS}\nds_write_b32 v30, v13 offset:{OLDS+256}")
    ts(6); cnt(10)
    e("s_waitcnt lgkmcnt(0)\ns_barrier")
    dbg_out()
    e("s_endpgm")

    c("=========== K role: scores and probabilities of batch idx>>2, key quarter idx&3; 64 keys per wave")
    QO, S = 68, 76
    e("L_K:")
    e(f"s_setprio {prio[1]}")
    c("A rows = (key, parity of the 16-byte chunk), B columns = (parity, head): one load covers 128 B of 8 keys")
    e(f"v_bfe_u32 v2, v1, 1, 1\nv_lshlrev_b32 v{vA}, {ub}, v2")
    if g1 == g0 + 1: e(f"v_bfe_u32 v2, v1, 2, 2\nv_lshl_add_u32 v{vA}, v2, {g0}, v{vA}")
    else: e(f"v_bfe_u32 v2, v1, 2, 1\nv_lshl_add_u32 v{vA}, v2, {g0}, v{vA}\nv_bfe_u32 v2, v1, 3, 1\nv_lshl_add_u32 v{vA}, v2, {g1}, v{vA}")
    e(f"v_lshrrev_b32 v2, 4, v1\nv_lshl_add_u32 v{vA}, v2, 5, v{vA}\nv_and_b32 v2, 1, v1\nv_lshl_add_u32 v{vA}, v2, 4, v{vA}")
    def sfield(reg, p0, p1):
        if p1 == p0 + 1: e(f"s_and_b32 s{sTMP}, s{reg}, 3\ns_lshl_b32 s{sTMP}, s{sTMP}, {p0}\ns_add_u32 s{sOFF2}, s{sOFF2}, s{sTMP}")
        else:
            for k, p in enumerate((p0, p1)): e(f"s_bfe_u32 s{sTMP}, s{reg}, {0x10000 + k}\ns_lshl_b32 s{sTMP}, s{sTMP}, {p}\ns_add_u32 s{sOFF2}, s{sOFF2}, s{sTMP}")
    def kv_base():
        c(f"key of slot (g, tile T, u) in the 256-KB window: byte offset g << {g0}, wave << {i0}, ((T + b) & 7) << {Tb}, u << {ub}, quarter << {s0}")
        e(f"s_lshr_b32 s{sTMP2}, s{sIDX}, 2\ns_lshl_b32 s{sOFF2}, s{sTMP2}, 22\ns_lshl_b32 s{sTMP}, s{sHKV}, 20\ns_add_u32 s{sOFF2}, s{sOFF2}, s{sTMP}\ns_add_u32 s{sOFF2}, s{sOFF2}, 0xC0000")
        sfield(sIDX, s0, s1); sfield(sI, i0, i1)
        if kvr == "none": e(f"s_mov_b32 s{sTMP2}, 0")
        if kvr == "idx": e(f"s_and_b32 s{sTMP2}, s{sIDX}, 7")
        if kvr == "bg": e(f"s_add_u32 s{sTMP2}, s{sTMP2}, s{sGRP}\ns_and_b32 s{sTMP2}, s{sTMP2}, 7")
        e(f"s_lshl_b32 s{sSTEP}, s{sTMP2}, {Tb}\ns_add_u32 s{sOFF}, s{sOFF2}, s{sSTEP}")
    kv_step = f"s_add_u32 s{sSTEP}, s{sSTEP}, {1 << Tb}\ns_and_b32 s{sSTEP}, s{sSTEP}, {(8 << Tb) - 1}\ns_add_u32 s{sOFF}, s{sOFF2}, s{sSTEP}"
    kv_base()
    e(f"v_mov_b32 v{vZ}, 0\nv_mov_b32 v{vONE}, 1")
    e("s_waitcnt lgkmcnt(0)")
    srd(SRD_A, sK, 32 << 20); srd(SRD_WS, sWS, WS_BYTES)
    e("s_barrier")
    loads = []
    for t in range(8):
        for hh in range(2):
            loads.append((kv_step if (t and not hh) else "", f"buffer_load_dwordx4 {q(DAT + 8*t + 4*hh)}, v{vA}, {A}, s{sOFF} offen offset:{hh*128}{pf}"))
    stream(loads, win[1], [(nq, F_GQ), (nh, F_GH)], wide[1])
    e(f"s_waitcnt vmcnt({ho[1]})")
    flag_add(GO_V)
    ts(1)
    e(f"v_and_b32 v2, 7, v1\nv_mul_u32_u24 v{vA}, 272, v2\nv_lshrrev_b32 v2, 3, v1\nv_lshl_add_u32 v{vA}, v2, 4, v{vA}")
    e(f"v_lshlrev_b32 v{vB}, 4, v1\ns_lshl_b32 s{sTMP}, s{sI}, 11\nv_add_u32 v{vB}, s{sTMP}, v{vB}")
    e(f"s_mov_b32 s{sSC}, 0x3e0293ee")
    e("s_waitcnt vmcnt(0)")
    ts(2)
    if cut:
        dbg_out(); e("s_endpgm")
    spin(F_Q, 4, 2, sleep=slp)
    ts(3)
    e(f"ds_read_b128 {q(QO)}, v{vA} offset:{QLDS}\nds_read_b128 {q(QO+4)}, v{vA} offset:{QLDS+128}")
    e("s_waitcnt lgkmcnt(0)")
    for t in range(8): mfma(S + 4*t, DAT + 8*t, QO, None)
    for t in range(8): mfma(S + 4*t, DAT + 8*t + 4, QO + 4, S + 4*t)
    e("s_nop 1")
    for t in range(8):
        for u in range(2):
            e(f"v_add_f32_dpp v{DAT + 2*t + u}, v{S + 4*t + 2*u + 1}, v{S + 4*t + 2*u} row_ror:8 {dpp}")
    e(f"v_max3_f32 v20, v{DAT}, v{DAT+1}, v{DAT+2}")
    for k in range(3, 15, 2): e(f"v_max3_f32 v20, v20, v{DAT+k}, v{DAT+k+1}")
    e(f"v_max_f32 v20, v20, v{DAT+15}")
    def allred(v, t, op):
        e(f"v_mov_b32 v{t}, v{v}\ns_nop 1\nv_permlane32_swap_b32 v{v}, v{t}\nv_{op}_f32 v{v}, v{v}, v{t}")
        e(f"v_mov_b32 v{t}, v{v}\ns_nop 1\nv_permlane16_swap_b32 v{v}, v{t}\nv_{op}_f32 v{v}, v{v}, v{t}")
    allred(20, 21, "max")
    e(f"v_mul_f32 v20, s{sSC}, v20")
    for k in range(16): e(f"v_fma_f32 v{DAT+k}, v{DAT+k}, s{sSC}, -v20")
    for k in range(16): e(f"v_exp_f32 v{DAT+k}, v{DAT+k}")
    e("s_nop 0")
    for k in range(8): e(f"v_cvt_pk_bf16_f32 v{24+k}, v{DAT+2*k}, v{DAT+2*k+1}")
    e(f"ds_write_b128 v{vB}, {q(24)} offset:{PLDS}\nds_write_b128 v{vB}, {q(28)} offset:{PLDS+1024}")
    for st in (8, 4, 2, 1):
        for k in range(st): e(f"v_add_f32 v{DAT+k}, v{DAT+k}, v{DAT+st+k}")
    e(f"v_mov_b32 v21, v{DAT}")
    allred(21, 22, "add")
    e(f"v_lshlrev_b32 v2, 3, v1\ns_lshl_b32 s{sTMP}, s{sI}, 6\nv_add_u32 v2, s{sTMP}, v2")
    e(f"s_mov_b64 exec, 0xff\nds_write_b64 v2, v[20:21] offset:{STLDS}")
    flag_add(F_P)
    ts(4)
    e(f"s_add_u32 s{sB}, s{sI}, 4\ns_branch L_G")

    c("=========== V role: P x V over the keys of the K wave with the same i")
    ACC, PO, TV, G = 68, 84, 100, 122
    e("L_V:")
    e(f"s_setprio {prio[2]}")
    e(f"v_lshlrev_b32 v{vA}, 4, v1")
    e(f"v_lshrrev_b32 v2, 4, v1\nv_and_b32 v109, 15, v1\nv_lshlrev_b32 v109, 4, v109")
    if g1 == g0 + 1: e(f"v_lshl_add_u32 v109, v2, {g0}, v109")
    else: e(f"v_bfe_u32 v2, v1, 4, 1\nv_lshl_add_u32 v109, v2, {g0}, v109\nv_lshrrev_b32 v2, 5, v1\nv_lshl_add_u32 v109, v2, {g1}, v109")
    e(f"v_add_u32 v110, {1 << ub}, v109")
    kv_base()
    e(f"v_mov_b32 v{vZ}, 0\nv_mov_b32 v{vONE}, 1")
    zero(PO, 16)
    c("P address: i*2048 + (g*16 + (l&7))*16 ; statistics address: (2i + (l>>5))*8")
    e(f"v_and_b32 v{vB}, 0x370, v{vA}\ns_lshl_b32 s{sTMP}, s{sI}, 11\nv_add_u32 v{vB}, s{sTMP}, v{vB}")
    e(f"v_lshrrev_b32 v2, 5, v1\nv_lshlrev_b32 v3, 3, v2\ns_lshl_b32 s{sTMP}, s{sI}, 4\nv_add_u32 v3, s{sTMP}, v3")
    c("statistics message lane offset: (l>>5)*64 + (l&3)*16")
    e(f"v_lshlrev_b32 v2, 6, v2\nv_and_b32 v126, 3, v1\nv_lshl_add_u32 v108, v126, 4, v2")
    e("s_waitcnt lgkmcnt(0)")
    srd(SRD_A, sV, 32 << 20); srd(SRD_WS, sWS, WS_BYTES)
    e("s_barrier")
    spin(GO_V, 4, 121, sleep=slp)
    loads = [(kv_step if (k and not k & 1) else "", f"buffer_load_dwordx4 {q(DAT + 4*k)}, v{109 + (k&1)}, {A}, s{sOFF} offen{pf}") for k in range(16)]
    stream(loads, win[2], more=wide[2])
    e(f"s_waitcnt vmcnt({ho[2]})")
    flag_add(GO_WO)
    ts(1)
    if cut:
        e("s_waitcnt vmcnt(0)"); ts(3); dbg_out(); e("s_endpgm")
    e(f"v_lshlrev_b32 v{vA}, 3, v1")
    e(f"s_lshl_b32 s{sOFF2}, s{sGRP}, 2\ns_add_u32 s{sOFF2}, s{sOFF2}, s{sI}\ns_lshl_b32 s{sOFF2}, s{sOFF2}, 5\ns_add_u32 s{sOFF2}, s{sOFF2}, s{sIDX}")
    e(f"s_lshl_b32 s{sOFF}, s{sOFF2}, 7\ns_add_u32 s{sOFF}, s{sOFF}, {S_BASE}")
    spin(F_P, 4, 121)
    ts(2)
    e(f"ds_read_b32 v121, v{vZ} offset:{F_MODE}")
    for w in range(4): e(f"ds_read_b64 v[{TV+2*w}:{TV+2*w+1}], v3 offset:{STLDS + 64*w}")
    lds_operands(PO, vB, PLDS, PLDS + 1024)
    e("s_waitcnt lgkmcnt(0)")
    e(f"v_readfirstlane_b32 s{sMODE}, v121")
    c("factors exp2(m_w - M) / l of the four waves' partial sums, and L = M + log2 l")
    e(f"v_max3_f32 v126, v{TV}, v{TV+2}, v{TV+4}\nv_max_f32 v126, v126, v{TV+6}")
    for w in range(4): e(f"v_sub_f32 v{G+w}, v{TV+2*w}, v126")
    for w in range(4): e(f"v_exp_f32 v{G+w}, v{G+w}")
    e(f"s_nop 0\nv_mul_f32 v127, v{G}, v{TV+1}")
    for w in range(1, 4): e(f"v_fmac_f32 v127, v{G+w}, v{TV+2*w+1}")
    e(f"v_log_f32 v112, v127\nv_rcp_f32 v127, v127\ns_nop 0\nv_add_f32 v112, v112, v126")
    for w in range(4): e(f"v_mul_f32 v{G+w}, v{G+w}, v127")
    e(f"v_min_u32 v112, -2, v112")
    for r in range(1, 4): e(f"v_mov_b32 v{112+r}, v112")
    e("s_mov_b32 exec_lo, 15\ns_mov_b32 exec_hi, 15")
    store_by_mode("buffer_store_dwordx4", q(112), 108)
    e("s_mov_b64 exec, -1")
    part_addrs(3)
    e(f"s_lshl_b32 s{sOFF}, s{sOFF2}, 9\ns_add_u32 s{sOFF}, s{sOFF}, {O_BASE}")
    pingpong(PO, ACC, TV)
    second_block_early(1)
    e("s_waitcnt vmcnt(1)")
    ts(3)
    second_block_last(PO + 8, ACC)
    flag_add(F_O1)
    spin(F_O1, 4, 121)
    part_read(DAT, 3)
    for r in range(4): e(f"v_mul_f32 v{DAT+r}, v{G}, v{DAT+r}")
    for w in range(1, 4):
        for r in range(4): e(f"v_fmac_f32 v{DAT+r}, v{G+w}, v{DAT+4*w+r}")
    pack(DAT, DAT)
    store_by_mode("buffer_store_dwordx2", d2(DAT), vA)
    flag_add(F_O2)
    ts(4)
    dbg_out()
    e("s_endpgm")

    c("=========== WO role: rows of head pair 4 hkv + (idx>>3), column group idx&7; wave 3 first runs the hello round")
    T0, OO, AC = 68, 100, 36
    e("L_WO:")
    lite[0] = False
    e(f"s_setprio {prio[3]}")
    e(f"v_mov_b32 v{vZ}, 0\nv_lshlrev_b32 v2, 2, v1")
    e(f"s_mov_b64 exec, 0xffff\nds_write_b32 v2, v{vZ}\ns_mov_b64 exec, -1")
    e("s_waitcnt lgkmcnt(0)")
    e(f"s_lshl_b32 s{sSTEP}, s{sBR}, 8\ns_load_dword s{sT}, s[{sWS}:{sWS+1}], s{sSTEP}")
    srd(SRD_WS, sWS, WS_BYTES)
    e(f"s_cmp_lg_u32 s{sI}, 3\ns_cbranch_scc1 L_nohello")
    e(f"s_mov_b32 s{sMODE}, 1")
    for r in range(4): e(f"v_mov_b32 v{4+r}, -1")
    c("q slots: 8 x 256 B at stride 1 KB; o slots: 4 x 512 B at stride 16 KB; statistics: 4 x 128 B at stride 4 KB")
    e(f"v_lshrrev_b32 v2, 4, v1\nv_and_b32 v3, 15, v1\nv_lshlrev_b32 v3, 4, v3\nv_lshl_add_u32 v8, v2, 10, v3")
    e(f"v_lshrrev_b32 v2, 5, v1\nv_and_b32 v3, 31, v1\nv_lshlrev_b32 v3, 4, v3\nv_lshl_add_u32 v9, v2, 14, v3")
    e(f"v_bfe_u32 v2, v1, 3, 2\nv_and_b32 v11, 7, v1\nv_lshlrev_b32 v11, 4, v11\nv_lshl_add_u32 v10, v2, 12, v11")
    e(f"s_lshl_b32 s54, s{sGRP}, 3\ns_lshr_b32 s{sTMP}, s{sIDX}, 2\ns_add_u32 s54, s54, s{sTMP}\ns_lshl_b32 s54, s54, 5\ns_and_b32 s{sTMP}, s{sIDX}, 3\ns_add_u32 s54, s54, s{sTMP}")
    e(f"s_lshl_b32 s54, s54, 8\ns_add_u32 s54, s54, {Q_BASE}\ns_add_u32 s55, s54, 4096")
    e(f"s_lshl_b32 s{sTMP}, s{sGRP}, 7\ns_add_u32 s{sTMP}, s{sTMP}, s{sIDX}\ns_lshl_b32 s56, s{sTMP}, 9\ns_add_u32 s56, s56, {O_BASE}\ns_add_u32 s57, s56, 32768")
    e(f"s_lshl_b32 s{sTMP2}, s{sTMP}, 7\ns_add_u32 s{sTMP2}, s{sTMP2}, {S_BASE}")
    e(f"s_lshl_b32 s{sOFF2}, s{sGRP}, 12\ns_add_u32 s{sOFF2}, s{sOFF2}, {H_BASE}")
    def clears(p):
        e(f"buffer_store_dwordx4 {q(4)}, v8, {WS}, s54 offen{p}\nbuffer_store_dwordx4 {q(4)}, v8, {WS}, s55 offen{p}")
        e(f"buffer_store_dwordx4 {q(4)}, v9, {WS}, s56 offen{p}\nbuffer_store_dwordx4 {q(4)}, v9, {WS}, s57 offen{p}")
        e(f"s_mov_b32 exec_hi, 0\nbuffer_store_dwordx4 {q(4)}, v10, {WS}, s{sTMP2} offen{p}\ns_mov_b32 exec_hi, -1")
    clears("")
    e(f"s_getreg_b32 s{sSC}, hwreg(HW_REG_XCC_ID, 0, 4)")
    e("s_waitcnt lgkmcnt(0)")
    tag_setup()
    c("hello word = tag + die")
    e(f"s_add_u32 s{sSC}, s{sSC}, s{sTAG}")
    e("L_hello:")
    for r in range(4): e(f"v_mov_b32 v{12+r}, s{sSC}")
    e(f"s_lshl_b32 s{sOFF}, s{sIDX}, 7\ns_add_u32 s{sOFF}, s{sOFF}, s{sOFF2}")
    e("s_waitcnt vmcnt(0)\ns_mov_b64 exec, 0xff")
    e(f"buffer_store_dwordx4 {q(12)}, v11, {WS}, s{sOFF} offen sc1\ns_mov_b64 exec, -1")
    e(f"s_cmp_eq_u32 s{sMODE}, 2\ns_cbranch_scc1 L_hpoll0")
    ts(11)
    e("s_barrier")
    spin(F_GH, 4, 16, sleep=slp)
    e("L_hpoll0:")
    e(f"v_and_b32 v16, 31, v1\nv_lshlrev_b32 v16, 7, v16\ns_mov_b32 s{sCNT}, {NPOLL}")
    e("L_hpoll:")
    e(f"buffer_load_dword v17, v16, {WS}, s{sOFF2} offen sc1\ns_waitcnt vmcnt(0)")
    e(f"v_cmp_ne_u32 s[10:11], s{sSC}, v17\nv_subrev_u32 v17, s{sTAG}, v17\nv_cmp_lt_u32 vcc, 15, v17")
    e(f"s_or_b32 s{sH}, s10, s11\ns_cbranch_vccz L_hall")
    e(f"s_sleep 8\ns_sub_u32 s{sCNT}, s{sCNT}, 1\ns_cbranch_scc0 L_hpoll\ns_endpgm")
    e("L_hall:")
    e(f"s_cmp_eq_u32 s{sMODE}, 2\ns_cbranch_scc1 L_hdone\ns_cmp_eq_u32 s{sH}, 0\ns_cbranch_scc1 L_hdone")
    c("the group spans dies: clear again write-through, then a second round")
    e(f"s_mov_b32 s{sMODE}, 2\ns_add_u32 s{sOFF2}, s{sOFF2}, 0x8000")
    clears(" sc1")
    e("s_branch L_hello")
    e("L_hdone:")
    e(f"v_mov_b32 v4, s{sMODE}\nds_write_b32 v{vZ}, v4 offset:{F_MODE}")
    ts(7); cnt(9)
    e("s_branch L_wosetup")
    e("L_nohello:")
    if warm:
        c("pull the kernel's code into this die's L2: workgroup idx, wave i reads line idx + 32 i")
        e(f"s_getpc_b64 s[54:55]\nL_pc:\ns_sub_u32 s54, s54, L_pc-{KN}\ns_subb_u32 s55, s55, 0")
        e(f"s_lshl_b32 s{sTMP}, s{sI}, 5\ns_add_u32 s{sTMP}, s{sTMP}, s{sIDX}\ns_lshl_b32 s56, s{sTMP}, 7\ns_min_u32 s56, s56, L_end-{KN}")
        e("s_load_dword s57, s[54:55], s56")
    e("s_waitcnt lgkmcnt(0)")
    tag_setup()
    e("s_barrier")
    e("L_wosetup:")
    c("rows 16 n + 4 i + g of the 256, 256 B of each")
    e(f"v_lshrrev_b32 v2, 4, v1\nv_and_b32 v3, 15, v1\nv_lshlrev_b32 v3, 4, v3\nv_lshl_add_u32 v{vA}, v2, 11, v3\nv_lshl_add_u32 v125, v2, 12, v3")
    e(f"s_lshr_b32 s{sTMP}, s{sIDX}, 3\ns_lshl_b32 s{sB}, s{sHKV}, 2\ns_add_u32 s{sB}, s{sB}, s{sTMP}\ns_and_b32 s{sSC}, s{sIDX}, 7")
    e(f"s_lshl_b32 s{sOFF}, s{sB}, 19\ns_lshl_b32 s{sTMP}, s{sI}, 13\ns_add_u32 s{sOFF}, s{sOFF}, s{sTMP}\ns_lshl_b32 s{sTMP}, s{sSC}, 8\ns_add_u32 s{sOFF}, s{sOFF}, s{sTMP}")
    c("o operand address: (l&7)*528 + i*128 + block*64 + g*16 ; out lane offset: (32*((l>>3)&1) + 8*(l>>4) + (l&7))*2")
    e(f"v_and_b32 v3, 7, v1\nv_mul_u32_u24 v123, 528, v3\nv_lshl_add_u32 v123, v2, 4, v123\ns_lshl_b32 s{sTMP}, s{sI}, 7\nv_add_u32 v123, s{sTMP}, v123")
    e(f"v_bfe_u32 v122, v1, 3, 1\nv_lshlrev_b32 v122, 6, v122\nv_lshl_add_u32 v122, v2, 4, v122\nv_lshl_add_u32 v122, v3, 1, v122")
    part_addrs(3)
    e(f"v_mov_b32 v{vM}, 0x7ff\nv_mov_b32 v{vONE}, 1\nv_lshlrev_b32 v2, 4, v1")
    zero(OO, 16)
    srd(SRD_A, sWO, 8 << 20); srd(SRD_B, sOUT, 32768)
    spin(GO_WO, 4, 121, sleep=slp)
    loads = [(f"s_add_u32 s{sOFF}, s{sOFF}, 32768" if n else "", f"buffer_load_dwordx4 {q(DAT + 4*n)}, v{vA}, {A}, s{sOFF} offen{pf}") for n in range(16)]
    stream(loads, win[3], [(no, F_O2)], wide[3])
    ts(1)
    e(f"s_lshl_b32 s{sOFF}, s{sBR}, 3\ns_add_u32 s{sOFF}, s{sOFF}, s{sSC}\ns_lshl_b32 s{sOFF}, s{sOFF}, 16\ns_add_u32 s{sOFF}, s{sOFF}, {R_BASE}")
    e(f"s_lshl_b32 s{sTMP}, s{sB}, 12\ns_add_u32 s{sTMP2}, s{sOFF}, s{sTMP}")
    e(f"s_lshl_b32 s{sTMP}, s{sI}, 14\ns_add_u32 s{sOFF}, s{sOFF}, s{sTMP}\ns_lshl_b32 s{sTMP}, s{sB}, 8\ns_add_u32 s{sOFF}, s{sOFF}, s{sTMP}")
    c("out byte offset: (b*2048 + br*1024 + cg*128 + nh*64)*2 with (b, nh) = row group")
    e(f"s_lshr_b32 s{sOFF2}, s{sB}, 1\ns_lshl_b32 s{sOFF2}, s{sOFF2}, 12\ns_lshl_b32 s{sTMP}, s{sBR}, 11\ns_add_u32 s{sOFF2}, s{sOFF2}, s{sTMP}")
    e(f"s_lshl_b32 s{sTMP}, s{sSC}, 8\ns_add_u32 s{sOFF2}, s{sOFF2}, s{sTMP}\ns_and_b32 s{sTMP}, s{sB}, 1\ns_lshl_b32 s{sTMP}, s{sTMP}, 7\ns_add_u32 s{sOFF2}, s{sOFF2}, s{sTMP}")
    e(f"s_mov_b32 s{sCNT}, {NPOLL}")
    for ip in range(4):
        e(f"s_waitcnt vmcnt({14 - 2*ip})")
        for j in range(8): perm(T0 + 4*j + ip, DAT, j, ip)
    second_block_early(0)
    if cut: e("s_waitcnt vmcnt(0)")
    ts(2)
    if cut:
        dbg_out(); e("s_endpgm")
    e("s_setprio 3\ns_barrier")
    ts(3)
    lds_operands(OO, 123, OLDS, OLDS + 64)
    e("s_waitcnt lgkmcnt(0)")
    for j in range(8): e(wm(AC, j, T0 + 4*j, OO, True))
    e("s_waitcnt vmcnt(0)")
    ts(6)
    second_block_last(OO + 8, AC)
    e("s_waitcnt lgkmcnt(0)\ns_barrier")
    part_read(T0, 3)
    sum4(T0)
    for r in range(4): e(f"v_bfi_b32 v{T0+r}, v{vM}, s{sT+r}, v{T0+r}")
    e(f"buffer_store_dwordx4 {q(T0)}, v125, {WS}, s{sOFF} offen sc1")
    ts(4)
    e(f"s_cmp_lg_u32 s{sI}, 0\ns_cbranch_scc1 L_fin")
    c("wave 0 sums the 16 row groups' partials of 64 outputs; the others' need about as long to land as its own")
    if rack: e("s_waitcnt vmcnt(0)")
    ts(10)
    e("s_branch L_rpoll\nL_rretry:")
    retry(0)
    e("L_rpoll:")
    for k in range(4): e(f"buffer_load_dwordx4 {q(12+4*k)}, v2, {WS}, s{sTMP2} offen offset:{1024*k} sc1")
    e("s_waitcnt vmcnt(0)")
    c("the tag fields cancel out of valid words, so the sums do not depend on the tag")
    for k in range(16): e(f"v_xor_b32 v{12+k}, s{sT + (k & 3)}, v{12+k}")
    for k in range(5): e(f"v_or3_b32 v{28+k}, v{12+3*k}, v{13+3*k}, v{14+3*k}")
    e("v_or3_b32 v28, v28, v29, v30\nv_or3_b32 v31, v31, v32, v27")
    e(f"v_bitop3_b32 v28, v28, v31, v{vM} bitop3:0xa8\nv_cmp_ne_u32 vcc, 0, v28\ns_cbranch_vccnz L_rretry")
    sum4(12)
    e("s_nop 1\nv_permlane32_swap_b32 v12, v14\nv_permlane32_swap_b32 v13, v15")
    e("v_add_f32 v12, v12, v14\nv_add_f32 v13, v13, v15\ns_nop 1\nv_permlane16_swap_b32 v12, v13\nv_add_f32 v12, v12, v13")
    e("v_cvt_pk_bf16_f32 v12, v12, v12")
    e(f"buffer_store_short v12, v122, {B}, s{sOFF2} offen {outpol}")
    ts(5); cnt(8)
    c("the first workgroup of a branch moves the epoch word on: every workgroup of that branch has read it by now")
    e(f"s_or_b32 s{sTMP}, s{sHKV}, s{sIDX}\ns_cmp_lg_u32 s{sTMP}, 0\ns_cbranch_scc1 L_fin")
    e(f"v_mov_b32 v4, s{sTAG}\nv_mov_b32 v5, 0\ns_mov_b64 exec, 1")
    e(f"buffer_store_dword v4, v5, {WS}, s{sSTEP} offen {eppol}")
    e("L_fin:")
    if dbg: e("s_nop 1")
    dbg_out()
    e("L_end:\ns_endpgm")
    e(f""".section .rodata,"a"
.p2align 6
.amdhsa_kernel {KN}
  .amdhsa_next_free_vgpr 128
  .amdhsa_next_free_sgpr 96
  .amdhsa_accum_offset 128
  .amdhsa_group_segment_fixed_size 0
  .amdhsa_kernarg_size 104
  .amdhsa_user_sgpr_count 2
  .amdhsa_user_sgpr_kernarg_segment_ptr 1
  .amdhsa_system_sgpr_workgroup_id_x 1
.end_amdhsa_kernel""")
    return "\n".join(o) + "\n"

if __name__ == "__main__":
    kw = eval("dict(" + (sys.argv[2] if len(sys.argv) > 2 else "") + ")")
    open(sys.argv[1], "w").write(gen(**kw))
```

```python
import sys
KN = "concat_heads__sliding_block_cached__sliding_block_cached__decode_kernel"
REF = "concat_heads__sliding_block_cached__sliding_block_cached__decode.s.ref"

H_BASE = 0x1000
S_BASE = 0x20000
Q_BASE = 0x80000
O_BASE = 0x100000
R_BASE = 0x200000
DBG_BASE = 0x800000
WS_BYTES = 0x1000000
F_Q1, F_Q, F_P, F_O1, F_O2, F_GQ, GO_V, GO_WO, F_MODE, F_GH = 0, 4, 8, 12, 16, 20, 24, 28, 32, 36
QLDS = 64
PLDS = 2304
STLDS = 10496
OLDS = 10752
PART = 15360
LDS_BYTES = PART + 4 * 4480
sGRP, sIDX, sBR, sHKV, sI, sROLE = 3, 4, 5, 6, 7, 8
sX, sK, sV, sWQ, sWO, sOUT, sWS = 12, 14, 16, 18, 20, 22, 24
sLO = 26
SRD_A, SRD_WS, SRD_B = 28, 32, 36
sT = 40
sTAG = 9
sSELLO, sSELHI = 44, 45
sOFF, sTMP, sTMP2, sCNT, sB, sSC, sOFF2, sH, sSTEP, sMODE = 46, 47, 48, 49, 50, 51, 52, 53, 58, 59
TS0 = 60
NPOLL = 0x20000

def gen(pol="nt", dbg=False, prio=(3, 2, 2, 1), gprio=2, win=(6, 6, 6, 6), ho=(5, 5, 5), nq=16, no=8, nh=8, xpos=6,
        cut=0, warm=True, rack=True, xperm=False, outpol="", eppol="", slp=1, kvm=(8, 15, 10, 13, 16), kvr="b", wqord=None, wide=(0, 0, 0, 0), widex=4, wqm=(3, 5, 6, 8), wqr='h', mix=None):
    o = []
    two = lambda x: x if isinstance(x, tuple) else (x, x + 1)
    (g0, g1), ub, Tb, (i0, i1), (s0, s1) = two(kvm[0]), kvm[1], kvm[2], two(kvm[3]), two(kvm[4])
    assert sorted([g0, g1, ub, Tb, Tb + 1, Tb + 2, i0, i1, s0, s1]) == list(range(8, 18))
    def e(s): o.append(s)
    def c(s): o.append("; " + s)
    pf = (" " + pol) if pol else ""
    dpp = "row_mask:0xf bank_mask:0xf"
    A = f"s[{SRD_A}:{SRD_A+3}]"; WS = f"s[{SRD_WS}:{SRD_WS+3}]"; B = f"s[{SRD_B}:{SRD_B+3}]"; LO = f"s[{sLO}:{sLO+1}]"
    vZ, vONE, vA, vM, vB = 116, 117, 118, 119, 120
    DAT = 4
    uid = [0]
    def lab(n):
        uid[0] += 1; return f"L_{n}_{uid[0]}"
    lite = [dbg == 6]
    def ts(k):
        if dbg and not (lite[0] and k): e(f"s_memrealtime s[{TS0+2*k}:{TS0+2*k+1}]")
    def cnt(k):
        if dbg and dbg != 7 and not lite[0]: e(f"s_sub_u32 s{TS0+2*k}, {NPOLL}, s{sCNT}")
    def srd(d, base, nbytes):
        e(f"s_mov_b32 s{d}, s{base}\ns_mov_b32 s{d+1}, s{base+1}\ns_mov_b32 s{d+2}, {nbytes}\ns_mov_b32 s{d+3}, 0x20000")
    def q(a): return f"v[{a}:{a+3}]"
    def d2(a): return f"v[{a}:{a+1}]"
    def flag_add(off):
        e(f"s_mov_b64 exec, 1\nds_add_u32 v{vZ}, v{vONE} offset:{off}\ns_mov_b64 exec, -1")
    def spin(off, n, vt, sleep=0):
        l = lab("spin"); d = lab("spun")
        e(f"s_mov_b32 s{sCNT}, 0x80000\n{l}:")
        e(f"ds_read_b32 v{vt}, v{vZ} offset:{off}\ns_waitcnt lgkmcnt(0)\nv_readfirstlane_b32 s{sTMP}, v{vt}")
        e(f"s_cmp_ge_u32 s{sTMP}, {n}\ns_cbranch_scc1 {d}")
        if sleep: e(f"s_sleep {sleep}")
        e(f"s_sub_u32 s{sCNT}, s{sCNT}, 1\ns_cbranch_scc0 {l}\ns_endpgm\n{d}:")
    def tag_setup():
        e(f"s_add_u32 s{sTAG}, s{sT}, 0x9E3779B1")
        for r in range(4): e(f"s_bfe_u32 s{sT+r}, s{sTAG}, {hex((11 << 16) + 7*r)}")
    def sum4(v):
        for a, b in ((0, 8), (2, 10), (4, 12), (6, 14), (0, 4), (2, 6)): e(f"v_pk_add_f32 {d2(v+a)}, {d2(v+a)}, {d2(v+b)}")
    def pack(dst, src):
        e(f"v_cvt_pk_bf16_f32 v{dst}, v{src}, v{src+1}\nv_cvt_pk_bf16_f32 v{dst+1}, v{src+2}, v{src+3}")
        e(f"v_min_u32 v{dst}, -2, v{dst}\nv_min_u32 v{dst+1}, -2, v{dst+1}")
    def ones_check(regs, vacc, retry):
        regs = list(regs)
        e(f"v_max3_u32 v{vacc}, v{regs[0]}, v{regs[1]}, v{regs[2]}")
        k = 3
        while k + 1 < len(regs): e(f"v_max3_u32 v{vacc}, v{vacc}, v{regs[k]}, v{regs[k+1]}"); k += 2
        if k < len(regs): e(f"v_max_u32 v{vacc}, v{vacc}, v{regs[k]}")
        e(f"v_cmp_eq_u32 vcc, -1, v{vacc}\ns_cbranch_vccnz {retry}")
    def unpack(dst, src):
        e(f"v_lshlrev_b32 v{dst}, 16, v{src}\nv_and_b32 v{dst+1}, 0xffff0000, v{src}")
    def store_by_mode(op, data, va):
        g, d = lab("wt"), lab("st")
        e(f"s_cmp_eq_u32 s{sMODE}, 2\ns_cbranch_scc1 {g}")
        e(f"{op} {data}, v{va}, {WS}, s{sOFF} offen\ns_branch {d}")
        e(f"{g}:\n{op} {data}, v{va}, {WS}, s{sOFF} offen sc1\n{d}:")
    def retry(sleep):
        e(f"s_sub_u32 s{sCNT}, s{sCNT}, 1\ns_cbranch_scc1 L_end")
        if sleep: e(f"s_sleep {sleep}")
    def perm_s(dst, src, j, ip):
        u, p = j >> 1, j & 1
        return f"v_perm_b32 v{dst}, v{src + (2*ip+1)*4 + u}, v{src + (2*ip)*4 + u}, s{sSELHI if p else sSELLO}"
    def perm(*a): e(perm_s(*a))
    def mfma_s(d, a, b, cc):
        return f"v_mfma_f32_16x16x32_bf16 {q(d)}, {q(a)}, {q(b)}, {q(cc) if cc is not None else 0}"
    def mfma(*a): e(mfma_s(*a))
    def wm(acc, j, a, bop, first): return mfma_s(acc + 4*(j & 3), a, bop + 4*(j >> 2), None if (first and j < 4) else acc + 4*(j & 3))
    def pingpong(bop, acc, T):
        for ip in range(4): perm(T + ip, DAT, 0, ip)
        for j in range(8):
            if j < 7:
                for ip in range(4): perm(T + 4*((j+1) & 1) + ip, DAT, j + 1, ip)
            else:
                e("s_nop 0")
            e(wm(acc, j, T + 4*(j & 1), bop, True))
    def second_block_early(base):
        for ip in range(3):
            e(f"s_waitcnt vmcnt({base + 6 - 2*ip})")
            for j in range(8): perm(DAT + 4*j + ip, DAT + 32, j, ip)
    def second_block_last(bop, acc):
        slot = 0; todo = []
        def emit(t):
            nonlocal slot; e(t); slot += 1
        emit(perm_s(DAT + 3, DAT + 32, 0, 3)); emit(perm_s(DAT + 7, DAT + 32, 1, 3))
        for j in range(8):
            if j < 6: emit(perm_s(DAT + 4*(j+2) + 3, DAT + 32, j + 2, 3))
            emit(wm(acc, j, DAT + 4*j, bop, False))
            if j >= 4: todo.append((slot + 8, f"ds_write_b128 v{vB}, {q(acc + 4*(j-4))} offset:{PART + (j-4)*1120}"))
        for at, t in todo:
            if at > slot: e(f"s_nop {at - slot - 1}"); slot = at
            emit(t)
    def part_addrs(vr):
        e(f"v_lshrrev_b32 v2, 4, v1\nv_mul_u32_u24 v2, 272, v2\nv_and_b32 v{vr}, 15, v1\nv_lshl_add_u32 v2, v{vr}, 4, v2")
        e(f"s_mul_i32 s{sTMP}, s{sI}, 4480\nv_add_u32 v{vB}, s{sTMP}, v2")
        e(f"v_and_b32 v{vr}, 3, v1\nv_mul_u32_u24 v{vr}, 1120, v{vr}\nv_bfe_u32 v2, v1, 3, 2\nv_mul_u32_u24 v2, 272, v2\nv_add_u32 v{vr}, v{vr}, v2")
        e(f"v_bfe_u32 v2, v1, 2, 1\nv_lshl_add_u32 v{vr}, v2, 7, v{vr}\nv_lshrrev_b32 v2, 5, v1\nv_lshl_add_u32 v{vr}, v2, 4, v{vr}")
        e(f"s_lshl_b32 s{sTMP}, s{sI}, 5\nv_add_u32 v{vr}, s{sTMP}, v{vr}")
    def part_read(v, vr):
        for w in range(4): e(f"ds_read_b128 {q(v + 4*w)}, v{vr} offset:{PART + w*4480}")
        e("s_waitcnt lgkmcnt(0)")
    def zero(v, n):
        for k in range(n): e(f"v_mov_b32 v{v+k}, 0")
    def lds_operands(v, va, off0, off1):
        e(f"s_mov_b64 exec, {LO}\nds_read_b128 {q(v)}, v{va} offset:{off0}\nds_read_b128 {q(v+8)}, v{va} offset:{off1}")
        e(f"s_not_b64 exec, exec\nds_read_b128 {q(v+4)}, v{va} offset:{off0}\nds_read_b128 {q(v+12)}, v{va} offset:{off1}\ns_mov_b64 exec, -1")
    def stream(loads, w, sig=(), more=0):
        if more: e(f"s_getreg_b32 s{sTMP}, hwreg(HW_REG_XCC_ID, 0, 4)\ns_cmp_ge_u32 s{sTMP}, {widex}\ns_cselect_b64 vcc, -1, 0")
        for n, (pre, ld) in enumerate(loads):
            if pre: e(pre)
            if n >= w:
                if more:
                    l = lab("wide"); e(f"s_cbranch_vccnz {l}\ns_waitcnt vmcnt({w-1})\n{l}:\ns_waitcnt vmcnt({w-1+more})")
                else: e(f"s_waitcnt vmcnt({w-1})")
            e(ld)
            for k, off in sig:
                if k == n + 1: flag_add(off)
    def dbg_out():
        if not dbg or lite[0]: return
        e("s_waitcnt lgkmcnt(0)\ns_mov_b64 exec, 1")
        e(f"s_lshl_b32 s{sTMP}, s{sROLE}, 2\ns_add_u32 s{sTMP}, s{sTMP}, s{sI}\ns_lshl_b32 s{sTMP2}, s2, 4\ns_add_u32 s{sTMP}, s{sTMP}, s{sTMP2}")
        e(f"s_lshl_b32 s{sTMP}, s{sTMP}, 6\ns_add_u32 s{sTMP}, s{sTMP}, {DBG_BASE}")
        for k in range(12): e(f"v_mov_b32 v{4+k}, s{TS0+2*k}")
        e(f"s_getreg_b32 s{sTMP2}, hwreg(HW_REG_XCC_ID)\nv_mov_b32 v16, s{sTMP2}\nv_mov_b32 v17, s{sCNT}\ns_getreg_b32 s{sTMP2}, hwreg(HW_REG_HW_ID)\nv_mov_b32 v18, s{sTMP2}\nv_mov_b32 v19, 0\nv_mov_b32 v2, 0")
        for k in range(4): e(f"buffer_store_dwordx4 {q(4+4*k)}, v2, {WS}, s{sTMP} offen offset:{16*k}")
        e("s_mov_b64 exec, -1")

    hdr = [l for l in open(REF).read().split("\n") if l.startswith(";") and "@launch" not in l]
    o += hdr
    e(f"; @launch grid=(256,1,1) block=(1024,1,1) lds={LDS_BYTES}")
    for l in __doc__.split("\n"): c(l.replace("Generator v9 for the fused decode kernel: one", "One"))
    e('.amdgcn_target "amdgcn-amd-amdhsa--gfx950"\n.text')
    e(f".globl {KN}\n.p2align 8\n.type {KN},@function\n{KN}:")
    if dbg:
        for k in range(1, 12): e(f"s_mov_b32 s{TS0+2*k}, 0")
    ts(0)
    c("workgroup = (group = id & 7 = (branch, kv head), idx = id >> 3); wave = (role, i)")
    e("s_cmp_ge_u32 s2, 256\ns_cbranch_scc1 L_end")
    if xperm == 2: e("s_bitcmp1_b32 s2, 3\ns_cbranch_scc0 L_xp\ns_xor_b32 s2, s2, 5\nL_xp:")
    if xperm == 3: e("s_and_b32 s3, s2, 0xf9\ns_cmp_eq_u32 s3, 0x40\ns_cbranch_scc0 L_xp\ns_xor_b32 s2, s2, 2\nL_xp:")
    if xperm == 1: e("s_and_b32 s3, s2, 7\ns_bfe_u32 s4, s2, 0x30003\ns_andn2_b32 s2, s2, 63\ns_lshl_b32 s3, s3, 3\ns_or_b32 s2, s2, s3\ns_or_b32 s2, s2, s4")
    e(f"s_and_b32 s{sBR}, s2, 1\ns_mul_i32 s9, s{sBR}, 40\ns_add_u32 s10, s0, s9\ns_addc_u32 s11, s1, 0")
    e(f"s_load_dwordx8 s[12:19], s[10:11], 0\ns_load_dwordx2 s[20:21], s[10:11], 32")
    e(f"s_load_dwordx2 s[22:23], s[0:1], 80\ns_load_dwordx2 s[24:25], s[0:1], 96")
    e("v_lshrrev_b32 v2, 6, v0\nv_and_b32 v1, 63, v0")
    e(f"v_readfirstlane_b32 s{sROLE}, v2")
    e(f"s_and_b32 s{sGRP}, s2, 7\ns_lshr_b32 s{sIDX}, s2, 3\ns_lshr_b32 s{sHKV}, s{sGRP}, 1")
    e(f"s_mov_b32 s{sSELLO}, 0x05040100\ns_mov_b32 s{sSELHI}, 0x07060302\ns_mov_b32 s{sLO}, 0x00ff00ff\ns_mov_b32 s{sLO+1}, 0x00ff00ff")
    e(f"s_and_b32 s{sI}, s{sROLE}, 3\ns_lshr_b32 s{sROLE}, s{sROLE}, 2")
    e(f"s_cmp_eq_u32 s{sROLE}, 1\ns_cbranch_scc1 L_K\ns_cmp_eq_u32 s{sROLE}, 2\ns_cbranch_scc1 L_V\ns_cmp_eq_u32 s{sROLE}, 3\ns_cbranch_scc1 L_WO")

    c("=========== WQ role: partial q of head idx>>2 over the k quarter idx&3, all 8 batches; 64 rows x 128 columns per wave")
    XO, D, T = 68, 84, 100
    e(f"s_setprio {prio[0]}")
    e("v_lshrrev_b32 v2, 4, v1\nv_and_b32 v3, 15, v1")
    ga, bb, ic, kd = wqm
    assert sorted([ga, ga + 1, bb, ic, ic + 1, kd, kd + 1]) == list(range(3, 10))
    e(f"v_lshlrev_b32 v{vA}, {13 + ga}, v2\nv_lshl_add_u32 v{vA}, v3, 4, v{vA}")
    e(f"v_and_b32 v3, 7, v1\nv_lshlrev_b32 v{vB}, 11, v3\nv_lshl_add_u32 v{vB}, v2, {1 + ga}, v{vB}")
    e(f"s_lshr_b32 s{sB}, s{sIDX}, 2\ns_and_b32 s{sSC}, s{sIDX}, 3")
    c(f"row = jj + (g << {ga}) + (block << {bb}) + (wave << {ic}) + (quarter << {kd}); neighbours along a row start on different blocks")
    rr = {"h": f"s_mov_b32 s{sTMP}, s{sB}", "hg": f"s_add_u32 s{sTMP}, s{sB}, s{sGRP}", "none": f"s_mov_b32 s{sTMP}, 0", "h2g": f"s_lshl_b32 s{sTMP}, s{sGRP}, 2\ns_add_u32 s{sTMP}, s{sTMP}, s{sB}",
          "hk": f"s_add_u32 s{sTMP}, s{sB}, s{sHKV}"}[wqr]
    e(rr + f"\ns_add_u32 s{sH}, s{sI}, s{sTMP}\ns_and_b32 s{sH}, s{sH}, 3\ns_bfe_u32 s{sTMP2}, s{sTMP}, 0x10002")
    e(f"s_lshl_b32 s{sTMP}, s{sSC}, {kd}\ns_lshl_b32 s{sH}, s{sH}, {ic}\ns_add_u32 s{sTMP}, s{sTMP}, s{sH}\ns_lshl_b32 s{sH}, s{sTMP2}, {bb}\ns_add_u32 s{sTMP}, s{sTMP}, s{sH}")
    e(f"s_lshl_b32 s{sOFF}, s{sTMP}, 13\ns_lshl_b32 s{sOFF2}, s{sTMP}, 1\ns_xor_b32 s9, s{sOFF2}, {2 << bb}")
    e(f"s_lshl_b32 s{sSTEP}, s{sTMP2}, {14 + bb}\ns_sub_u32 s{sSTEP}, {((1 << bb) - 7)*8192}, s{sSTEP}")
    e(f"s_lshl_b32 s{sTMP}, s{sHKV}, 11\ns_add_u32 s{sOFF}, s{sOFF}, s{sTMP}\ns_lshl_b32 s{sTMP}, s{sB}, 8\ns_add_u32 s{sOFF}, s{sOFF}, s{sTMP}")
    e(f"s_mov_b32 s{SRD_A+2}, {8 << 20}\ns_mov_b32 s{SRD_A+3}, 0x20000")
    e("s_waitcnt lgkmcnt(0)")
    e(f"s_mov_b32 s{SRD_A}, s{sWQ}\ns_mov_b32 s{SRD_A+1}, s{sWQ+1}")
    if dbg == 7: ts(9)
    loads = []
    for n in range(16):
        pre = "" if n == 0 else (f"s_add_u32 s{sOFF}, s{sOFF}, s{sSTEP}" if n == 8 else f"s_add_u32 s{sOFF}, s{sOFF}, 8192")
        loads.append((pre, f"buffer_load_dwordx4 {q(DAT + 4*n)}, v{vA}, {A}, s{sOFF} offen{pf}"))
    if wqord:
        loads = []; cur = 0
        for blk in range(2):
            for jj in wqord:
                d = (jj - cur) * 8192; cur = jj
                pre = (f"s_add_u32 s{sOFF}, s{sOFF}, s{sSTEP}\ns_add_u32 s{sOFF}, s{sOFF}, {(7*8192 + d) & 0xffffffff}" if (blk and jj == wqord[0]) else (f"s_add_u32 s{sOFF}, s{sOFF}, {d & 0xffffffff}" if d else ""))
                loads.append((pre, f"buffer_load_dwordx4 {q(DAT + 32*blk + 4*jj)}, v{vA}, {A}, s{sOFF} offen{pf}"))
    xpre = "\n".join(f"v_mov_b32 v{XO+k}, 0" for k in range(16))
    xpre += f"\ns_mov_b32 s{SRD_B}, s{sX}\ns_mov_b32 s{SRD_B+1}, s{sX+1}\ns_mov_b32 s{SRD_B+2}, 16384\ns_mov_b32 s{SRD_B+3}, 0x20000\ns_mov_b64 exec, {LO}"
    loads[xpos:xpos] = [(xpre, f"buffer_load_dwordx4 {q(XO)}, v{vB}, {B}, s{sOFF2} offen"),
                        ("", f"buffer_load_dwordx4 {q(XO+8)}, v{vB}, {B}, s9 offen\ns_mov_b64 exec, -1")]
    if dbg == 7: loads[xpos] = (loads[xpos][0] + f"\ns_memrealtime s[{TS0+16}:{TS0+17}]\ns_waitcnt vmcnt({win[0]-1})\ns_memrealtime s[{TS0+20}:{TS0+21}]", loads[xpos][1])
    stream(loads, win[0], more=wide[0])
    e(f"s_waitcnt vmcnt({ho[0]})")
    ts(11)
    e("s_barrier")
    ts(1)
    srd(SRD_WS, sWS, WS_BYTES)
    e(f"v_mov_b32 v{vZ}, 0\nv_mov_b32 v{vONE}, 1")
    part_addrs(121)
    if cut == 1:
        e("s_waitcnt vmcnt(0)"); ts(2); dbg_out(); e("s_endpgm")
    for blk in range(2):
        for r in range(4): e(f"v_mov_b32_dpp v{XO + 8*blk + 4 + r}, v{XO + 8*blk + r} row_ror:8 row_mask:0xf bank_mask:0xc")
    c("publish v122: ((grp*8 + h)*8 + 2i + b')*1024 + kq*256 + (l&31)*8 ; gather vA: ((grp*8 + 2i + h')*8 + b)*1024 + kq*256 + (l&31)*8")
    e(f"v_lshrrev_b32 v2, 5, v1\nv_and_b32 v{vA}, 31, v1\nv_lshlrev_b32 v{vA}, 3, v{vA}\nv_lshl_add_u32 v122, v2, 10, v{vA}\nv_lshl_add_u32 v{vA}, v2, 13, v{vA}")
    e(f"s_lshl_b32 s{sOFF2}, s{sGRP}, 16\ns_add_u32 s{sOFF2}, s{sOFF2}, {Q_BASE}")
    e(f"s_lshl_b32 s{sOFF}, s{sB}, 2\ns_add_u32 s{sOFF}, s{sOFF}, s{sI}\ns_lshl_b32 s{sOFF}, s{sOFF}, 3\ns_add_u32 s{sOFF}, s{sOFF}, s{sSC}\ns_lshl_b32 s{sOFF}, s{sOFF}, 8\ns_add_u32 s{sOFF}, s{sOFF}, s{sOFF2}")
    c("q in LDS: (2i + h')*272 + ((l>>3)&3)*64 + (l&7)*2")
    e(f"v_mul_u32_u24 v2, 272, v2\nv_bfe_u32 v123, v1, 3, 2\nv_lshl_add_u32 v2, v123, 6, v2\nv_lshl_add_u32 v2, v3, 1, v2\ns_mul_i32 s{sTMP}, s{sI}, 544\nv_add_u32 v2, s{sTMP}, v2")
    assert ho[0] <= 8 and ho[2] <= 8 and xpos <= 16 - ho[0]
    pingpong(XO, D, T)
    second_block_early(0)
    e("s_waitcnt vmcnt(0)")
    ts(2)
    second_block_last(XO + 8, D)
    flag_add(F_Q1)
    spin(F_Q1, 4, 123)
    part_read(DAT, 121)
    sum4(DAT)
    pack(DAT, DAT)
    e(f"buffer_store_dwordx2 {d2(DAT)}, v122, {WS}, s{sOFF} offen")
    ts(3)
    spin(F_MODE, 1, 123, sleep=slp)
    e(f"s_cmp_eq_u32 s{sTMP}, 1\ns_cbranch_scc1 L_qloc")
    e(f"buffer_store_dwordx2 {d2(DAT)}, v122, {WS}, s{sOFF} offen sc1\nL_qloc:")
    e(f"s_lshl_b32 s{sOFF}, s{sI}, 4\ns_add_u32 s{sOFF}, s{sOFF}, s{sB}\ns_lshl_b32 s{sOFF}, s{sOFF}, 10\ns_add_u32 s{sOFF}, s{sOFF}, s{sOFF2}")
    spin(F_GQ, 4, 123, sleep=slp)
    ts(7)
    c("gather q of this workgroup's batch: heads 2i, 2i+1, four partials")
    e(f"s_mov_b32 s{sCNT}, {NPOLL}\ns_branch L_qpoll\nL_qretry:")
    retry(2)
    e("L_qpoll:")
    for k in range(4): e(f"buffer_load_dwordx2 {d2(20+2*k)}, v{vA}, {WS}, s{sOFF} offen offset:{256*k} sc1")
    e("s_waitcnt vmcnt(0)")
    ones_check(range(20, 28), 28, "L_qretry")
    for k in range(8): unpack(32 + 2*k, 20 + k)
    sum4(32)
    e("v_cvt_pk_bf16_f32 v20, v32, v33\nv_cvt_pk_bf16_f32 v22, v34, v35")
    e(f"ds_write_b16 v2, v20 offset:{QLDS}\nds_write_b16_d16_hi v2, v20 offset:{QLDS+16}")
    e(f"ds_write_b16 v2, v22 offset:{QLDS+32}\nds_write_b16_d16_hi v2, v22 offset:{QLDS+48}")
    flag_add(F_Q)
    ts(4); cnt(8)
    e(f"s_mov_b32 s{sB}, s{sI}")

    c("=========== o gather (WQ and K waves, one batch each): merge the four key quarters of head pair idx>>3")
    e("L_G:")
    e(f"s_setprio {gprio}")
    e(f"s_lshr_b32 s{sH}, s{sIDX}, 3")
    c("stats: grp*16K + hp*4K + (4b + s)*128 + h'*64")
    e(f"v_lshrrev_b32 v2, 5, v1\nv_lshlrev_b32 v4, 6, v2\nv_and_b32 v5, 3, v1\nv_lshl_add_u32 v3, v5, 7, v4")
    e(f"s_lshl_b32 s{sOFF}, s{sGRP}, 2\ns_add_u32 s{sOFF}, s{sOFF}, s{sH}\ns_lshl_b32 s{sOFF}, s{sOFF}, 3\ns_add_u32 s{sOFF}, s{sOFF}, s{sB}")
    e(f"s_lshl_b32 s{sOFF2}, s{sOFF}, 9\ns_add_u32 s{sOFF2}, s{sOFF2}, {S_BASE}")
    e(f"s_lshl_b32 s{sOFF}, s{sOFF}, 11\ns_add_u32 s{sOFF}, s{sOFF}, {O_BASE}")
    c("o in LDS [b][wave 4][h' 2][g 4][jj 8]: values r0,r2 -> wave j>>2, r1,r3 -> wave 2 + (j>>2); g = j&3, jj = 2 gD")
    e(f"v_bfe_u32 v30, v1, 2, 1\nv_lshlrev_b32 v30, 7, v30\nv_lshl_add_u32 v30, v2, 6, v30\nv_lshl_add_u32 v30, v5, 4, v30\nv_bfe_u32 v4, v1, 3, 2\nv_lshl_add_u32 v30, v4, 2, v30")
    e(f"s_mul_i32 s{sTMP}, s{sB}, 528\nv_add_u32 v30, s{sTMP}, v30\nv_lshlrev_b32 v2, 3, v1")
    spin(F_O2, 8 if no else 4, 31, sleep=slp)
    ts(5)
    e(f"s_mov_b32 s{sCNT}, {NPOLL}\ns_branch L_opoll\nL_oretry:")
    retry(0)
    e("L_opoll:")
    e(f"buffer_load_dword v4, v3, {WS}, s{sOFF2} offen sc1")
    for k in range(4): e(f"buffer_load_dwordx2 {d2(12+2*k)}, v2, {WS}, s{sOFF} offen offset:{512*k} sc1")
    e("s_waitcnt vmcnt(4)")
    c("weights of the quarters: softmax over the four log2-sum-exp values held by a quad of lanes")
    e(f"v_max_f32_dpp v6, v4, v4 quad_perm:[1,0,3,2] {dpp}\ns_nop 1")
    e(f"v_max_f32_dpp v6, v6, v6 quad_perm:[2,3,0,1] {dpp}")
    e("v_sub_f32 v6, v4, v6\nv_exp_f32 v6, v6\ns_nop 1")
    e(f"v_add_f32_dpp v7, v6, v6 quad_perm:[1,0,3,2] {dpp}\ns_nop 1")
    e(f"v_add_f32_dpp v7, v7, v7 quad_perm:[2,3,0,1] {dpp}")
    e("v_rcp_f32 v7, v7\ns_waitcnt vmcnt(0)\nv_mul_f32 v6, v6, v7")
    ones_check([4] + list(range(12, 20)), 28, "L_oretry")
    for k in range(8): unpack(32 + 2*k, 12 + k)
    for r in range(4): e(f"v_mul_f32_dpp v{32+r}, v6, v{32+r} quad_perm:[0,0,0,0] {dpp}")
    for k in range(1, 4):
        for r in range(4): e(f"v_fmac_f32_dpp v{32+r}, v6, v{32+4*k+r} quad_perm:[{k},{k},{k},{k}] {dpp}")
    e("v_cvt_pk_bf16_f32 v12, v32, v34\nv_cvt_pk_bf16_f32 v13, v33, v35")
    e(f"ds_write_b32 v30, v12 offset:{OLDS}\nds_write_b32 v30, v13 offset:{OLDS+256}")
    ts(6); cnt(10)
    e("s_waitcnt lgkmcnt(0)\ns_barrier")
    dbg_out()
    e("s_endpgm")

    c("=========== K role: scores and probabilities of batch idx>>2, key quarter idx&3; 64 keys per wave")
    QO, S = 68, 76
    e("L_K:")
    e(f"s_setprio {prio[1]}")
    c("A rows = (key, parity of the 16-byte chunk), B columns = (parity, head): one load covers 128 B of 8 keys")
    e(f"v_bfe_u32 v2, v1, 1, 1\nv_lshlrev_b32 v{vA}, {ub}, v2")
    if g1 == g0 + 1: e(f"v_bfe_u32 v2, v1, 2, 2\nv_lshl_add_u32 v{vA}, v2, {g0}, v{vA}")
    else: e(f"v_bfe_u32 v2, v1, 2, 1\nv_lshl_add_u32 v{vA}, v2, {g0}, v{vA}\nv_bfe_u32 v2, v1, 3, 1\nv_lshl_add_u32 v{vA}, v2, {g1}, v{vA}")
    e(f"v_lshrrev_b32 v2, 4, v1\nv_lshl_add_u32 v{vA}, v2, 5, v{vA}\nv_and_b32 v2, 1, v1\nv_lshl_add_u32 v{vA}, v2, 4, v{vA}")
    def sfield(reg, p0, p1):
        if p1 == p0 + 1: e(f"s_and_b32 s{sTMP}, s{reg}, 3\ns_lshl_b32 s{sTMP}, s{sTMP}, {p0}\ns_add_u32 s{sOFF2}, s{sOFF2}, s{sTMP}")
        else:
            for k, p in enumerate((p0, p1)): e(f"s_bfe_u32 s{sTMP}, s{reg}, {0x10000 + k}\ns_lshl_b32 s{sTMP}, s{sTMP}, {p}\ns_add_u32 s{sOFF2}, s{sOFF2}, s{sTMP}")
    def kv_base():
        c(f"key of slot (g, tile T, u) in the 256-KB window: byte offset g << {g0}, wave << {i0}, ((T + b) & 7) << {Tb}, u << {ub}, quarter << {s0}")
        e(f"s_lshr_b32 s{sTMP2}, s{sIDX}, 2\ns_lshl_b32 s{sOFF2}, s{sTMP2}, 22\ns_lshl_b32 s{sTMP}, s{sHKV}, 20\ns_add_u32 s{sOFF2}, s{sOFF2}, s{sTMP}\ns_add_u32 s{sOFF2}, s{sOFF2}, 0xC0000")
        sfield(sIDX, s0, s1); sfield(sI, i0, i1)
        if kvr == "none": e(f"s_mov_b32 s{sTMP2}, 0")
        if kvr == "idx": e(f"s_and_b32 s{sTMP2}, s{sIDX}, 7")
        if kvr == "bg": e(f"s_add_u32 s{sTMP2}, s{sTMP2}, s{sGRP}\ns_and_b32 s{sTMP2}, s{sTMP2}, 7")
        e(f"s_lshl_b32 s{sSTEP}, s{sTMP2}, {Tb}\ns_add_u32 s{sOFF}, s{sOFF2}, s{sSTEP}")
    kv_step = f"s_add_u32 s{sSTEP}, s{sSTEP}, {1 << Tb}\ns_and_b32 s{sSTEP}, s{sSTEP}, {(8 << Tb) - 1}\ns_add_u32 s{sOFF}, s{sOFF2}, s{sSTEP}"
    kv_base()
    e(f"v_mov_b32 v{vZ}, 0\nv_mov_b32 v{vONE}, 1")
    e("s_waitcnt lgkmcnt(0)")
    srd(SRD_A, sK, 32 << 20); srd(SRD_WS, sWS, WS_BYTES)
    e("s_barrier")
    loads = []
    for t in range(8):
        for hh in range(2):
            loads.append((kv_step if (t and not hh) else "", f"buffer_load_dwordx4 {q(DAT + 8*t + 4*hh)}, v{vA}, {A}, s{sOFF} offen offset:{hh*128}{pf}"))
    stream(loads, win[1], [(nq, F_GQ), (nh, F_GH)], wide[1])
    e(f"s_waitcnt vmcnt({ho[1]})")
    flag_add(GO_V)
    ts(1)
    e(f"v_and_b32 v2, 7, v1\nv_mul_u32_u24 v{vA}, 272, v2\nv_lshrrev_b32 v2, 3, v1\nv_lshl_add_u32 v{vA}, v2, 4, v{vA}")
    e(f"v_lshlrev_b32 v{vB}, 4, v1\ns_lshl_b32 s{sTMP}, s{sI}, 11\nv_add_u32 v{vB}, s{sTMP}, v{vB}")
    e(f"s_mov_b32 s{sSC}, 0x3e0293ee")
    e("s_waitcnt vmcnt(0)")
    ts(2)
    if cut:
        dbg_out(); e("s_endpgm")
    spin(F_Q, 4, 2, sleep=slp)
    ts(3)
    e(f"ds_read_b128 {q(QO)}, v{vA} offset:{QLDS}\nds_read_b128 {q(QO+4)}, v{vA} offset:{QLDS+128}")
    e("s_waitcnt lgkmcnt(0)")
    for t in range(8): mfma(S + 4*t, DAT + 8*t, QO, None)
    for t in range(8): mfma(S + 4*t, DAT + 8*t + 4, QO + 4, S + 4*t)
    e("s_nop 1")
    for t in range(8):
        for u in range(2):
            e(f"v_add_f32_dpp v{DAT + 2*t + u}, v{S + 4*t + 2*u + 1}, v{S + 4*t + 2*u} row_ror:8 {dpp}")
    e(f"v_max3_f32 v20, v{DAT}, v{DAT+1}, v{DAT+2}")
    for k in range(3, 15, 2): e(f"v_max3_f32 v20, v20, v{DAT+k}, v{DAT+k+1}")
    e(f"v_max_f32 v20, v20, v{DAT+15}")
    def allred(v, t, op):
        e(f"v_mov_b32 v{t}, v{v}\ns_nop 1\nv_permlane32_swap_b32 v{v}, v{t}\nv_{op}_f32 v{v}, v{v}, v{t}")
        e(f"v_mov_b32 v{t}, v{v}\ns_nop 1\nv_permlane16_swap_b32 v{v}, v{t}\nv_{op}_f32 v{v}, v{v}, v{t}")
    allred(20, 21, "max")
    e(f"v_mul_f32 v20, s{sSC}, v20")
    for k in range(16): e(f"v_fma_f32 v{DAT+k}, v{DAT+k}, s{sSC}, -v20")
    for k in range(16): e(f"v_exp_f32 v{DAT+k}, v{DAT+k}")
    e("s_nop 0")
    for k in range(8): e(f"v_cvt_pk_bf16_f32 v{24+k}, v{DAT+2*k}, v{DAT+2*k+1}")
    e(f"ds_write_b128 v{vB}, {q(24)} offset:{PLDS}\nds_write_b128 v{vB}, {q(28)} offset:{PLDS+1024}")
    for st in (8, 4, 2, 1):
        for k in range(st): e(f"v_add_f32 v{DAT+k}, v{DAT+k}, v{DAT+st+k}")
    e(f"v_mov_b32 v21, v{DAT}")
    allred(21, 22, "add")
    e(f"v_lshlrev_b32 v2, 3, v1\ns_lshl_b32 s{sTMP}, s{sI}, 6\nv_add_u32 v2, s{sTMP}, v2")
    e(f"s_mov_b64 exec, 0xff\nds_write_b64 v2, v[20:21] offset:{STLDS}")
    flag_add(F_P)
    ts(4)
    e(f"s_add_u32 s{sB}, s{sI}, 4\ns_branch L_G")

    c("=========== V role: P x V over the keys of the K wave with the same i")
    ACC, PO, TV, G = 68, 84, 100, 122
    e("L_V:")
    e(f"s_setprio {prio[2]}")
    e(f"v_lshlrev_b32 v{vA}, 4, v1")
    e(f"v_lshrrev_b32 v2, 4, v1\nv_and_b32 v109, 15, v1\nv_lshlrev_b32 v109, 4, v109")
    if g1 == g0 + 1: e(f"v_lshl_add_u32 v109, v2, {g0}, v109")
    else: e(f"v_bfe_u32 v2, v1, 4, 1\nv_lshl_add_u32 v109, v2, {g0}, v109\nv_lshrrev_b32 v2, 5, v1\nv_lshl_add_u32 v109, v2, {g1}, v109")
    e(f"v_add_u32 v110, {1 << ub}, v109")
    kv_base()
    e(f"v_mov_b32 v{vZ}, 0\nv_mov_b32 v{vONE}, 1")
    zero(PO, 16)
    c("P address: i*2048 + (g*16 + (l&7))*16 ; statistics address: (2i + (l>>5))*8")
    e(f"v_and_b32 v{vB}, 0x370, v{vA}\ns_lshl_b32 s{sTMP}, s{sI}, 11\nv_add_u32 v{vB}, s{sTMP}, v{vB}")
    e(f"v_lshrrev_b32 v2, 5, v1\nv_lshlrev_b32 v3, 3, v2\ns_lshl_b32 s{sTMP}, s{sI}, 4\nv_add_u32 v3, s{sTMP}, v3")
    c("statistics message lane offset: (l>>5)*64 + (l&3)*16")
    e(f"v_lshlrev_b32 v2, 6, v2\nv_and_b32 v126, 3, v1\nv_lshl_add_u32 v108, v126, 4, v2")
    e("s_waitcnt lgkmcnt(0)")
    srd(SRD_A, sV, 32 << 20); srd(SRD_WS, sWS, WS_BYTES)
    e("s_barrier")
    if not mix: spin(GO_V, 4, 121, sleep=slp)
    loads = [(kv_step if (k and not k & 1) else "", f"buffer_load_dwordx4 {q(DAT + 4*k)}, v{109 + (k&1)}, {A}, s{sOFF} offen{pf}") for k in range(16)]
    if mix:
        stream(loads[:mix[1]], mix[0])
        spin(GO_V, 4, 121, sleep=slp)
        for n, (pre, ld) in enumerate(loads):
            if n < mix[1]: continue
            if pre: e(pre)
            if n - mix[1] + mix[0] >= win[2]: e(f"s_waitcnt vmcnt({win[2]-1})")
            e(ld)
    else: stream(loads, win[2], more=wide[2])
    e(f"s_waitcnt vmcnt({ho[2]})")
    flag_add(GO_WO)
    ts(1)
    if cut:
        e("s_waitcnt vmcnt(0)"); ts(3); dbg_out(); e("s_endpgm")
    e(f"v_lshlrev_b32 v{vA}, 3, v1")
    e(f"s_lshl_b32 s{sOFF2}, s{sGRP}, 2\ns_add_u32 s{sOFF2}, s{sOFF2}, s{sI}\ns_lshl_b32 s{sOFF2}, s{sOFF2}, 5\ns_add_u32 s{sOFF2}, s{sOFF2}, s{sIDX}")
    e(f"s_lshl_b32 s{sOFF}, s{sOFF2}, 7\ns_add_u32 s{sOFF}, s{sOFF}, {S_BASE}")
    spin(F_P, 4, 121)
    ts(2)
    e(f"ds_read_b32 v121, v{vZ} offset:{F_MODE}")
    for w in range(4): e(f"ds_read_b64 v[{TV+2*w}:{TV+2*w+1}], v3 offset:{STLDS + 64*w}")
    lds_operands(PO, vB, PLDS, PLDS + 1024)
    e("s_waitcnt lgkmcnt(0)")
    e(f"v_readfirstlane_b32 s{sMODE}, v121")
    c("factors exp2(m_w - M) / l of the four waves' partial sums, and L = M + log2 l")
    e(f"v_max3_f32 v126, v{TV}, v{TV+2}, v{TV+4}\nv_max_f32 v126, v126, v{TV+6}")
    for w in range(4): e(f"v_sub_f32 v{G+w}, v{TV+2*w}, v126")
    for w in range(4): e(f"v_exp_f32 v{G+w}, v{G+w}")
    e(f"s_nop 0\nv_mul_f32 v127, v{G}, v{TV+1}")
    for w in range(1, 4): e(f"v_fmac_f32 v127, v{G+w}, v{TV+2*w+1}")
    e(f"v_log_f32 v112, v127\nv_rcp_f32 v127, v127\ns_nop 0\nv_add_f32 v112, v112, v126")
    for w in range(4): e(f"v_mul_f32 v{G+w}, v{G+w}, v127")
    e(f"v_min_u32 v112, -2, v112")
    for r in range(1, 4): e(f"v_mov_b32 v{112+r}, v112")
    e("s_mov_b32 exec_lo, 15\ns_mov_b32 exec_hi, 15")
    store_by_mode("buffer_store_dwordx4", q(112), 108)
    e("s_mov_b64 exec, -1")
    part_addrs(3)
    e(f"s_lshl_b32 s{sOFF}, s{sOFF2}, 9\ns_add_u32 s{sOFF}, s{sOFF}, {O_BASE}")
    pingpong(PO, ACC, TV)
    second_block_early(1)
    e("s_waitcnt vmcnt(1)")
    ts(3)
    second_block_last(PO + 8, ACC)
    flag_add(F_O1)
    spin(F_O1, 4, 121)
    part_read(DAT, 3)
    for r in range(4): e(f"v_mul_f32 v{DAT+r}, v{G}, v{DAT+r}")
    for w in range(1, 4):
        for r in range(4): e(f"v_fmac_f32 v{DAT+r}, v{G+w}, v{DAT+4*w+r}")
    pack(DAT, DAT)
    store_by_mode("buffer_store_dwordx2", d2(DAT), vA)
    flag_add(F_O2)
    ts(4)
    dbg_out()
    e("s_endpgm")

    c("=========== WO role: rows of head pair 4 hkv + (idx>>3), column group idx&7; wave 3 first runs the hello round")
    T0, OO, AC = 68, 100, 36
    e("L_WO:")
    lite[0] = False
    e(f"s_setprio {prio[3]}")
    e(f"v_mov_b32 v{vZ}, 0\nv_lshlrev_b32 v2, 2, v1")
    e(f"s_mov_b64 exec, 0xffff\nds_write_b32 v2, v{vZ}\ns_mov_b64 exec, -1")
    e("s_waitcnt lgkmcnt(0)")
    e(f"s_lshl_b32 s{sSTEP}, s{sBR}, 8\ns_load_dword s{sT}, s[{sWS}:{sWS+1}], s{sSTEP}")
    srd(SRD_WS, sWS, WS_BYTES)
    e(f"s_cmp_lg_u32 s{sI}, 3\ns_cbranch_scc1 L_nohello")
    e(f"s_mov_b32 s{sMODE}, 1")
    for r in range(4): e(f"v_mov_b32 v{4+r}, -1")
    c("q slots: 8 x 256 B at stride 1 KB; o slots: 4 x 512 B at stride 16 KB; statistics: 4 x 128 B at stride 4 KB")
    e(f"v_lshrrev_b32 v2, 4, v1\nv_and_b32 v3, 15, v1\nv_lshlrev_b32 v3, 4, v3\nv_lshl_add_u32 v8, v2, 10, v3")
    e(f"v_lshrrev_b32 v2, 5, v1\nv_and_b32 v3, 31, v1\nv_lshlrev_b32 v3, 4, v3\nv_lshl_add_u32 v9, v2, 14, v3")
    e(f"v_bfe_u32 v2, v1, 3, 2\nv_and_b32 v11, 7, v1\nv_lshlrev_b32 v11, 4, v11\nv_lshl_add_u32 v10, v2, 12, v11")
    e(f"s_lshl_b32 s54, s{sGRP}, 3\ns_lshr_b32 s{sTMP}, s{sIDX}, 2\ns_add_u32 s54, s54, s{sTMP}\ns_lshl_b32 s54, s54, 5\ns_and_b32 s{sTMP}, s{sIDX}, 3\ns_add_u32 s54, s54, s{sTMP}")
    e(f"s_lshl_b32 s54, s54, 8\ns_add_u32 s54, s54, {Q_BASE}\ns_add_u32 s55, s54, 4096")
    e(f"s_lshl_b32 s{sTMP}, s{sGRP}, 7\ns_add_u32 s{sTMP}, s{sTMP}, s{sIDX}\ns_lshl_b32 s56, s{sTMP}, 9\ns_add_u32 s56, s56, {O_BASE}\ns_add_u32 s57, s56, 32768")
    e(f"s_lshl_b32 s{sTMP2}, s{sTMP}, 7\ns_add_u32 s{sTMP2}, s{sTMP2}, {S_BASE}")
    e(f"s_lshl_b32 s{sOFF2}, s{sGRP}, 12\ns_add_u32 s{sOFF2}, s{sOFF2}, {H_BASE}")
    def clears(p):
        e(f"buffer_store_dwordx4 {q(4)}, v8, {WS}, s54 offen{p}\nbuffer_store_dwordx4 {q(4)}, v8, {WS}, s55 offen{p}")
        e(f"buffer_store_dwordx4 {q(4)}, v9, {WS}, s56 offen{p}\nbuffer_store_dwordx4 {q(4)}, v9, {WS}, s57 offen{p}")
        e(f"s_mov_b32 exec_hi, 0\nbuffer_store_dwordx4 {q(4)}, v10, {WS}, s{sTMP2} offen{p}\ns_mov_b32 exec_hi, -1")
    clears("")
    e(f"s_getreg_b32 s{sSC}, hwreg(HW_REG_XCC_ID, 0, 4)")
    e("s_waitcnt lgkmcnt(0)")
    tag_setup()
    c("hello word = tag + die")
    e(f"s_add_u32 s{sSC}, s{sSC}, s{sTAG}")
    e("L_hello:")
    for r in range(4): e(f"v_mov_b32 v{12+r}, s{sSC}")
    e(f"s_lshl_b32 s{sOFF}, s{sIDX}, 7\ns_add_u32 s{sOFF}, s{sOFF}, s{sOFF2}")
    e("s_waitcnt vmcnt(0)\ns_mov_b64 exec, 0xff")
    e(f"buffer_store_dwordx4 {q(12)}, v11, {WS}, s{sOFF} offen sc1\ns_mov_b64 exec, -1")
    e(f"s_cmp_eq_u32 s{sMODE}, 2\ns_cbranch_scc1 L_hpoll0")
    ts(11)
    e("s_barrier")
    spin(F_GH, 4, 16, sleep=slp)
    e("L_hpoll0:")
    e(f"v_and_b32 v16, 31, v1\nv_lshlrev_b32 v16, 7, v16\ns_mov_b32 s{sCNT}, {NPOLL}")
    e("L_hpoll:")
    e(f"buffer_load_dword v17, v16, {WS}, s{sOFF2} offen sc1\ns_waitcnt vmcnt(0)")
    e(f"v_cmp_ne_u32 s[10:11], s{sSC}, v17\nv_subrev_u32 v17, s{sTAG}, v17\nv_cmp_lt_u32 vcc, 15, v17")
    e(f"s_or_b32 s{sH}, s10, s11\ns_cbranch_vccz L_hall")
    e(f"s_sleep 8\ns_sub_u32 s{sCNT}, s{sCNT}, 1\ns_cbranch_scc0 L_hpoll\ns_endpgm")
    e("L_hall:")
    e(f"s_cmp_eq_u32 s{sMODE}, 2\ns_cbranch_scc1 L_hdone\ns_cmp_eq_u32 s{sH}, 0\ns_cbranch_scc1 L_hdone")
    c("the group spans dies: clear again write-through, then a second round")
    e(f"s_mov_b32 s{sMODE}, 2\ns_add_u32 s{sOFF2}, s{sOFF2}, 0x8000")
    clears(" sc1")
    e("s_branch L_hello")
    e("L_hdone:")
    e(f"v_mov_b32 v4, s{sMODE}\nds_write_b32 v{vZ}, v4 offset:{F_MODE}")
    ts(7); cnt(9)
    e("s_branch L_wosetup")
    e("L_nohello:")
    if warm:
        c("pull the kernel's code into this die's L2: workgroup idx, wave i reads line idx + 32 i")
        e(f"s_getpc_b64 s[54:55]\nL_pc:\ns_sub_u32 s54, s54, L_pc-{KN}\ns_subb_u32 s55, s55, 0")
        e(f"s_lshl_b32 s{sTMP}, s{sI}, 5\ns_add_u32 s{sTMP}, s{sTMP}, s{sIDX}\ns_lshl_b32 s56, s{sTMP}, 7\ns_min_u32 s56, s56, L_end-{KN}")
        e("s_load_dword s57, s[54:55], s56")
    e("s_waitcnt lgkmcnt(0)")
    tag_setup()
    e("s_barrier")
    e("L_wosetup:")
    c("rows 16 n + 4 i + g of the 256, 256 B of each")
    e(f"v_lshrrev_b32 v2, 4, v1\nv_and_b32 v3, 15, v1\nv_lshlrev_b32 v3, 4, v3\nv_lshl_add_u32 v{vA}, v2, 11, v3\nv_lshl_add_u32 v125, v2, 12, v3")
    e(f"s_lshr_b32 s{sTMP}, s{sIDX}, 3\ns_lshl_b32 s{sB}, s{sHKV}, 2\ns_add_u32 s{sB}, s{sB}, s{sTMP}\ns_and_b32 s{sSC}, s{sIDX}, 7")
    e(f"s_lshl_b32 s{sOFF}, s{sB}, 19\ns_lshl_b32 s{sTMP}, s{sI}, 13\ns_add_u32 s{sOFF}, s{sOFF}, s{sTMP}\ns_lshl_b32 s{sTMP}, s{sSC}, 8\ns_add_u32 s{sOFF}, s{sOFF}, s{sTMP}")
    c("o operand address: (l&7)*528 + i*128 + block*64 + g*16 ; out lane offset: (32*((l>>3)&1) + 8*(l>>4) + (l&7))*2")
    e(f"v_and_b32 v3, 7, v1\nv_mul_u32_u24 v123, 528, v3\nv_lshl_add_u32 v123, v2, 4, v123\ns_lshl_b32 s{sTMP}, s{sI}, 7\nv_add_u32 v123, s{sTMP}, v123")
    e(f"v_bfe_u32 v122, v1, 3, 1\nv_lshlrev_b32 v122, 6, v122\nv_lshl_add_u32 v122, v2, 4, v122\nv_lshl_add_u32 v122, v3, 1, v122")
    part_addrs(3)
    e(f"v_mov_b32 v{vM}, 0x7ff\nv_mov_b32 v{vONE}, 1\nv_lshlrev_b32 v2, 4, v1")
    zero(OO, 16)
    srd(SRD_A, sWO, 8 << 20); srd(SRD_B, sOUT, 32768)
    spin(GO_WO, 4, 121, sleep=slp)
    loads = [(f"s_add_u32 s{sOFF}, s{sOFF}, 32768" if n else "", f"buffer_load_dwordx4 {q(DAT + 4*n)}, v{vA}, {A}, s{sOFF} offen{pf}") for n in range(16)]
    stream(loads, win[3], [(no, F_O2)], wide[3])
    ts(1)
    e(f"s_lshl_b32 s{sOFF}, s{sBR}, 3\ns_add_u32 s{sOFF}, s{sOFF}, s{sSC}\ns_lshl_b32 s{sOFF}, s{sOFF}, 16\ns_add_u32 s{sOFF}, s{sOFF}, {R_BASE}")
    e(f"s_lshl_b32 s{sTMP}, s{sB}, 12\ns_add_u32 s{sTMP2}, s{sOFF}, s{sTMP}")
    e(f"s_lshl_b32 s{sTMP}, s{sI}, 14\ns_add_u32 s{sOFF}, s{sOFF}, s{sTMP}\ns_lshl_b32 s{sTMP}, s{sB}, 8\ns_add_u32 s{sOFF}, s{sOFF}, s{sTMP}")
    c("out byte offset: (b*2048 + br*1024 + cg*128 + nh*64)*2 with (b, nh) = row group")
    e(f"s_lshr_b32 s{sOFF2}, s{sB}, 1\ns_lshl_b32 s{sOFF2}, s{sOFF2}, 12\ns_lshl_b32 s{sTMP}, s{sBR}, 11\ns_add_u32 s{sOFF2}, s{sOFF2}, s{sTMP}")
    e(f"s_lshl_b32 s{sTMP}, s{sSC}, 8\ns_add_u32 s{sOFF2}, s{sOFF2}, s{sTMP}\ns_and_b32 s{sTMP}, s{sB}, 1\ns_lshl_b32 s{sTMP}, s{sTMP}, 7\ns_add_u32 s{sOFF2}, s{sOFF2}, s{sTMP}")
    e(f"s_mov_b32 s{sCNT}, {NPOLL}")
    for ip in range(4):
        e(f"s_waitcnt vmcnt({14 - 2*ip})")
        for j in range(8): perm(T0 + 4*j + ip, DAT, j, ip)
    second_block_early(0)
    if cut: e("s_waitcnt vmcnt(0)")
    ts(2)
    if cut:
        dbg_out(); e("s_endpgm")
    e("s_setprio 3\ns_barrier")
    ts(3)
    lds_operands(OO, 123, OLDS, OLDS + 64)
    e("s_waitcnt lgkmcnt(0)")
    for j in range(8): e(wm(AC, j, T0 + 4*j, OO, True))
    e("s_waitcnt vmcnt(0)")
    ts(6)
    second_block_last(OO + 8, AC)
    e("s_waitcnt lgkmcnt(0)\ns_barrier")
    part_read(T0, 3)
    sum4(T0)
    for r in range(4): e(f"v_bfi_b32 v{T0+r}, v{vM}, s{sT+r}, v{T0+r}")
    e(f"buffer_store_dwordx4 {q(T0)}, v125, {WS}, s{sOFF} offen sc1")
    ts(4)
    e(f"s_cmp_lg_u32 s{sI}, 0\ns_cbranch_scc1 L_fin")
    c("wave 0 sums the 16 row groups' partials of 64 outputs; the others' need about as long to land as its own")
    if rack: e("s_waitcnt vmcnt(0)")
    ts(10)
    e("s_branch L_rpoll\nL_rretry:")
    retry(0)
    e("L_rpoll:")
    for k in range(4): e(f"buffer_load_dwordx4 {q(12+4*k)}, v2, {WS}, s{sTMP2} offen offset:{1024*k} sc1")
    e("s_waitcnt vmcnt(0)")
    c("the tag fields cancel out of valid words, so the sums do not depend on the tag")
    for k in range(16): e(f"v_xor_b32 v{12+k}, s{sT + (k & 3)}, v{12+k}")
    for k in range(5): e(f"v_or3_b32 v{28+k}, v{12+3*k}, v{13+3*k}, v{14+3*k}")
    e("v_or3_b32 v28, v28, v29, v30\nv_or3_b32 v31, v31, v32, v27")
    e(f"v_bitop3_b32 v28, v28, v31, v{vM} bitop3:0xa8\nv_cmp_ne_u32 vcc, 0, v28\ns_cbranch_vccnz L_rretry")
    sum4(12)
    e("s_nop 1\nv_permlane32_swap_b32 v12, v14\nv_permlane32_swap_b32 v13, v15")
    e("v_add_f32 v12, v12, v14\nv_add_f32 v13, v13, v15\ns_nop 1\nv_permlane16_swap_b32 v12, v13\nv_add_f32 v12, v12, v13")
    e("v_cvt_pk_bf16_f32 v12, v12, v12")
    e(f"buffer_store_short v12, v122, {B}, s{sOFF2} offen {outpol}")
    ts(5); cnt(8)
    c("the first workgroup of a branch moves the epoch word on: every workgroup of that branch has read it by now")
    e(f"s_or_b32 s{sTMP}, s{sHKV}, s{sIDX}\ns_cmp_lg_u32 s{sTMP}, 0\ns_cbranch_scc1 L_fin")
    e(f"v_mov_b32 v4, s{sTAG}\nv_mov_b32 v5, 0\ns_mov_b64 exec, 1")
    e(f"buffer_store_dword v4, v5, {WS}, s{sSTEP} offen {eppol}")
    e("L_fin:")
    if dbg: e("s_nop 1")
    dbg_out()
    e("L_end:\ns_endpgm")
    e(f""".section .rodata,"a"
.p2align 6
.amdhsa_kernel {KN}
  .amdhsa_next_free_vgpr 128
  .amdhsa_next_free_sgpr 96
  .amdhsa_accum_offset 128
  .amdhsa_group_segment_fixed_size 0
  .amdhsa_kernarg_size 104
  .amdhsa_user_sgpr_count 2
  .amdhsa_user_sgpr_kernarg_segment_ptr 1
  .amdhsa_system_sgpr_workgroup_id_x 1
.end_amdhsa_kernel""")
    return "\n".join(o) + "\n"

if __name__ == "__main__":
    kw = eval("dict(" + (sys.argv[2] if len(sys.argv) > 2 else "") + ")")
    open(sys.argv[1], "w").write(gen(**kw))
```

```python
import sys
KN = "concat_heads__sliding_block_cached__sliding_block_cached__decode_kernel"
REF = "concat_heads__sliding_block_cached__sliding_block_cached__decode.s.ref"

H_BASE = 0x1000
S_BASE = 0x20000
Q_BASE = 0x80000
O_BASE = 0x100000
R_BASE = 0x200000
DBG_BASE = 0x800000
WS_BYTES = 0x1000000
F_Q1, F_Q, F_P, F_O1, F_O2, F_GQ, GO_V, GO_WO, F_MODE, F_GH = 0, 4, 8, 12, 16, 20, 24, 28, 32, 36
QLDS = 64
PLDS = 2304
STLDS = 10496
OLDS = 10752
PART = 15360
LDS_BYTES = PART + 2 * 9216
sGRP, sIDX, sBR, sHKV, sI, sROLE = 3, 4, 5, 6, 7, 8
sX, sK, sV, sWQ, sWO, sOUT, sWS = 12, 14, 16, 18, 20, 22, 24
sLO = 26
SRD_A, SRD_WS, SRD_B = 28, 32, 36
sT = 40
sTAG = 9
sSELLO, sSELHI = 44, 45
sOFF, sTMP, sTMP2, sCNT, sB, sSC, sOFF2, sH, sSTEP, sMODE = 46, 47, 48, 49, 50, 51, 52, 53, 58, 59
TS0 = 60
NPOLL = 0x20000

def gen(pol="nt", dbg=False, prio=(3, 2, 2, 1), gprio=2, win=(6, 6, 6, 6), ho=(5, 5, 5), nq=16, no=8, nh=8, xpos=6,
        cut=0, warm=True, rack=True, xperm=False, outpol="", eppol="", slp=1, kvm=(8, 15, 10, 13, 16), kvr="b", wqord=None, wide=(0, 0, 0, 0), widex=4, wqm=(3, 5, 6, 8), wqr='h', mix=None, pre=0, rdelay=0, tcp=0, pk=True, fast=False):
    o = []
    two = lambda x: x if isinstance(x, tuple) else (x, x + 1)
    (g0, g1), ub, Tb, (i0, i1), (s0, s1) = two(kvm[0]), kvm[1], kvm[2], two(kvm[3]), two(kvm[4])
    assert sorted([g0, g1, ub, Tb, Tb + 1, Tb + 2, i0, i1, s0, s1]) == list(range(8, 18))
    def e(s): o.append(s)
    def c(s): o.append("; " + s)
    pf = (" " + pol) if pol else ""
    dpp = "row_mask:0xf bank_mask:0xf"
    A = f"s[{SRD_A}:{SRD_A+3}]"; WS = f"s[{SRD_WS}:{SRD_WS+3}]"; B = f"s[{SRD_B}:{SRD_B+3}]"; LO = f"s[{sLO}:{sLO+1}]"
    vZ, vONE, vA, vM, vB = 116, 117, 118, 119, 120
    DAT = 4
    uid = [0]
    def lab(n):
        uid[0] += 1; return f"L_{n}_{uid[0]}"
    lite = [dbg == 6]
    def ts(k):
        if dbg and not (lite[0] and k): e(f"s_memrealtime s[{TS0+2*k}:{TS0+2*k+1}]")
    def cnt(k):
        if dbg and dbg != 7 and not lite[0]: e(f"s_sub_u32 s{TS0+2*k}, {NPOLL}, s{sCNT}")
    def srd(d, base, nbytes):
        e(f"s_mov_b32 s{d}, s{base}\ns_mov_b32 s{d+1}, s{base+1}\ns_mov_b32 s{d+2}, {nbytes}\ns_mov_b32 s{d+3}, 0x20000")
    def q(a): return f"v[{a}:{a+3}]"
    def d2(a): return f"v[{a}:{a+1}]"
    def flag_add(off):
        e(f"s_mov_b64 exec, 1\nds_add_u32 v{vZ}, v{vONE} offset:{off}\ns_mov_b64 exec, -1")
    def spin(off, n, vt, sleep=0, also=""):
        l = lab("spin"); d = lab("spun")
        e(f"s_mov_b32 s{sCNT}, 0x80000\n{l}:")
        e(f"ds_read_b32 v{vt}, v{vZ} offset:{off}\n{also}s_waitcnt lgkmcnt(0)\nv_readfirstlane_b32 s{sTMP}, v{vt}")
        e(f"s_cmp_ge_u32 s{sTMP}, {n}\ns_cbranch_scc1 {d}")
        if sleep: e(f"s_sleep {sleep}")
        e(f"s_sub_u32 s{sCNT}, s{sCNT}, 1\ns_cbranch_scc0 {l}\ns_endpgm\n{d}:")
    def tag_setup():
        e(f"s_add_u32 s{sTAG}, s{sT}, 0x9E3779B1")
        for r in range(4): e(f"s_bfe_u32 s{sT+r}, s{sTAG}, {hex((11 << 16) + 7*r)}")
    def sum4(v):
        if pk:
            for a, b in ((0, 8), (2, 10), (4, 12), (6, 14), (0, 4), (2, 6)): e(f"v_pk_add_f32 {d2(v+a)}, {d2(v+a)}, {d2(v+b)}")
        else:
            for st in (8, 4):
                for k in range(st): e(f"v_add_f32 v{v+k}, v{v+k}, v{v+st+k}")
    def pack(dst, src):
        e(f"v_cvt_pk_bf16_f32 v{dst}, v{src}, v{src+1}\nv_cvt_pk_bf16_f32 v{dst+1}, v{src+2}, v{src+3}")
        e(f"v_min_u32 v{dst}, -2, v{dst}\nv_min_u32 v{dst+1}, -2, v{dst+1}")
    def ones_check(regs, vacc, retry):
        regs = list(regs)
        e(f"v_max3_u32 v{vacc}, v{regs[0]}, v{regs[1]}, v{regs[2]}")
        k = 3
        while k + 1 < len(regs): e(f"v_max3_u32 v{vacc}, v{vacc}, v{regs[k]}, v{regs[k+1]}"); k += 2
        if k < len(regs): e(f"v_max_u32 v{vacc}, v{vacc}, v{regs[k]}")
        e(f"v_cmp_eq_u32 vcc, -1, v{vacc}\ns_cbranch_vccnz {retry}")
    def unpack(dst, src):
        e(f"v_lshlrev_b32 v{dst}, 16, v{src}\nv_and_b32 v{dst+1}, 0xffff0000, v{src}")
    def store_by_mode(op, data, va):
        g, d = lab("wt"), lab("st")
        e(f"s_cmp_eq_u32 s{sMODE}, 2\ns_cbranch_scc1 {g}")
        e(f"{op} {data}, v{va}, {WS}, s{sOFF} offen\ns_branch {d}")
        e(f"{g}:\n{op} {data}, v{va}, {WS}, s{sOFF} offen sc1\n{d}:")
    def retry(sleep):
        e(f"s_sub_u32 s{sCNT}, s{sCNT}, 1\ns_cbranch_scc1 L_end")
        if sleep: e(f"s_sleep {sleep}")
    def perm_s(dst, src, j, ip):
        u, p = j >> 1, j & 1
        return f"v_perm_b32 v{dst}, v{src + (2*ip+1)*4 + u}, v{src + (2*ip)*4 + u}, s{sSELHI if p else sSELLO}"
    def perm(*a): e(perm_s(*a))
    def mfma_s(d, a, b, cc):
        return f"v_mfma_f32_16x16x32_bf16 {q(d)}, {q(a)}, {q(b)}, {q(cc) if cc is not None else 0}"
    def mfma(*a): e(mfma_s(*a))
    def wm(acc, j, a, bop, first): return mfma_s(acc + 4*(j & 3), a, bop + 4*(j >> 2), None if (first and j < 4) else acc + 4*(j & 3))
    def pingpong(bop, acc, T):
        for ip in range(4): perm(T + ip, DAT, 0, ip)
        for j in range(8):
            if j < 7:
                for ip in range(4): perm(T + 4*((j+1) & 1) + ip, DAT, j + 1, ip)
            else:
                e("s_nop 0")
            e(wm(acc, j, T + 4*(j & 1), bop, True))
    def second_block_early(base):
        for ip in range(3):
            e(f"s_waitcnt vmcnt({base + 6 - 2*ip})")
            for j in range(8): perm(DAT + 4*j + ip, DAT + 32, j, ip)
    def second_block_last(bop, acc):
        slot = 0; todo = []
        def emit(t):
            nonlocal slot; e(t); slot += 1
        emit(perm_s(DAT + 3, DAT + 32, 0, 3)); emit(perm_s(DAT + 7, DAT + 32, 1, 3))
        for j in range(8):
            if j < 6: emit(perm_s(DAT + 4*(j+2) + 3, DAT + 32, j + 2, 3))
            emit(wm(acc, j, DAT + 4*j, bop, False))
            if j >= 4: todo.append((slot + 8, f"ds_write_b128 v{vB}, {q(acc + 4*(j-4))} offset:{PART + (j-4)*2320}"))
        for at, t in todo:
            if at > slot: e(f"s_nop {at - slot - 1}"); slot = at
            emit(t)
    def part_addrs(vr):
        e(f"v_lshrrev_b32 v2, 4, v1\nv_mul_u32_u24 v2, 576, v2\nv_bfe_u32 v{vr}, v1, 3, 1\nv_lshl_add_u32 v2, v{vr}, 8, v2\nv_and_b32 v{vr}, 7, v1\nv_lshl_add_u32 v2, v{vr}, 4, v2")
        e(f"s_lshr_b32 s{sTMP}, s{sI}, 1\ns_mul_i32 s{sTMP}, s{sTMP}, {9216 - 256}\ns_lshl_b32 s54, s{sI}, 7\ns_add_u32 s{sTMP}, s{sTMP}, s54\nv_add_u32 v{vB}, s{sTMP}, v2")
        e(f"v_and_b32 v{vr}, 3, v1\nv_mul_u32_u24 v{vr}, 2320, v{vr}\nv_bfe_u32 v2, v1, 3, 2\nv_mul_u32_u24 v2, 576, v2\nv_add_u32 v{vr}, v{vr}, v2")
        e(f"v_bfe_u32 v2, v1, 2, 1\nv_lshl_add_u32 v{vr}, v2, 8, v{vr}\nv_lshrrev_b32 v2, 5, v1\nv_lshl_add_u32 v{vr}, v2, 4, v{vr}")
        e(f"s_lshl_b32 s{sTMP}, s{sI}, 5\nv_add_u32 v{vr}, s{sTMP}, v{vr}")
    def part_read(v, vr):
        for w in range(4): e(f"ds_read_b128 {q(v + 4*w)}, v{vr} offset:{PART + (w >> 1)*9216 + (w & 1)*128}")
        e("s_waitcnt lgkmcnt(0)")
    def scaled_sum(v, w):
        for k in range(4):
            sel = f"op_sel:[0,{k & 1},0] op_sel_hi:[1,{k & 1},1]"
            for h in (0, 2):
                if k == 0: e(f"v_pk_mul_f32 {d2(v+h)}, {d2(v+h)}, {d2(w)} op_sel_hi:[1,0]")
                else: e(f"v_pk_fma_f32 {d2(v+h)}, {d2(v+4*k+h)}, {d2(w + (k & 2))}, {d2(v+h)} {sel}")
    def zero(v, n):
        for k in range(n): e(f"v_mov_b32 v{v+k}, 0")
    def lds_operands(v, va, off0, off1):
        e(f"s_mov_b64 exec, {LO}\nds_read_b128 {q(v)}, v{va} offset:{off0}\nds_read_b128 {q(v+8)}, v{va} offset:{off1}")
        e(f"s_not_b64 exec, exec\nds_read_b128 {q(v+4)}, v{va} offset:{off0}\nds_read_b128 {q(v+12)}, v{va} offset:{off1}\ns_mov_b64 exec, -1")
    def stream(loads, w, sig=(), more=0):
        if more: e(f"s_getreg_b32 s{sTMP}, hwreg(HW_REG_XCC_ID, 0, 4)\ns_cmp_ge_u32 s{sTMP}, {widex}\ns_cselect_b64 vcc, -1, 0")
        for n, (pre, ld) in enumerate(loads):
            if pre: e(pre)
            if n >= w:
                if more:
                    l = lab("wide"); e(f"s_cbranch_vccnz {l}\ns_waitcnt vmcnt({w-1})\n{l}:\ns_waitcnt vmcnt({w-1+more})")
                else: e(f"s_waitcnt vmcnt({w-1})")
            e(ld)
            for k, off in sig:
                if k == n + 1: flag_add(off)
    def dbg_out():
        if not dbg or lite[0]: return
        e("s_waitcnt lgkmcnt(0)\ns_mov_b64 exec, 1")
        e(f"s_lshl_b32 s{sTMP}, s{sROLE}, 2\ns_add_u32 s{sTMP}, s{sTMP}, s{sI}\ns_lshl_b32 s{sTMP2}, s2, 4\ns_add_u32 s{sTMP}, s{sTMP}, s{sTMP2}")
        e(f"s_lshl_b32 s{sTMP}, s{sTMP}, 6\ns_add_u32 s{sTMP}, s{sTMP}, {DBG_BASE}")
        for k in range(12): e(f"v_mov_b32 v{4+k}, s{TS0+2*k}")
        e(f"s_getreg_b32 s{sTMP2}, hwreg(HW_REG_XCC_ID)\nv_mov_b32 v16, s{sTMP2}\nv_mov_b32 v17, s{sCNT}\ns_getreg_b32 s{sTMP2}, hwreg(HW_REG_HW_ID)\nv_mov_b32 v18, s{sTMP2}\nv_mov_b32 v19, 0\nv_mov_b32 v2, 0")
        for k in range(4): e(f"buffer_store_dwordx4 {q(4+4*k)}, v2, {WS}, s{sTMP} offen offset:{16*k}")
        e("s_mov_b64 exec, -1")

    hdr = [l for l in open(REF).read().split("\n") if l.startswith(";") and "@launch" not in l]
    o += hdr
    e(f"; @launch grid=(256,1,1) block=(1024,1,1) lds={LDS_BYTES}")
    for l in __doc__.split("\n"): c(l.replace("Generator v9 for the fused decode kernel: one", "One"))
    e('.amdgcn_target "amdgcn-amd-amdhsa--gfx950"\n.text')
    e(f".globl {KN}\n.p2align 8\n.type {KN},@function\n{KN}:")
    if dbg:
        for k in range(1, 12): e(f"s_mov_b32 s{TS0+2*k}, 0")
    ts(0)
    c("workgroup = (group = id & 7 = (branch, kv head), idx = id >> 3); wave = (role, i)")
    e("s_cmp_ge_u32 s2, 256\ns_cbranch_scc1 L_end")
    if xperm == 2: e("s_bitcmp1_b32 s2, 3\ns_cbranch_scc0 L_xp\ns_xor_b32 s2, s2, 5\nL_xp:")
    if xperm == 3: e("s_and_b32 s3, s2, 0xf9\ns_cmp_eq_u32 s3, 0x40\ns_cbranch_scc0 L_xp\ns_xor_b32 s2, s2, 2\nL_xp:")
    if xperm == 1: e("s_and_b32 s3, s2, 7\ns_bfe_u32 s4, s2, 0x30003\ns_andn2_b32 s2, s2, 63\ns_lshl_b32 s3, s3, 3\ns_or_b32 s2, s2, s3\ns_or_b32 s2, s2, s4")
    e(f"s_and_b32 s{sBR}, s2, 1\ns_mul_i32 s9, s{sBR}, 40\ns_add_u32 s10, s0, s9\ns_addc_u32 s11, s1, 0")
    e(f"s_load_dwordx8 s[12:19], s[10:11], 0\ns_load_dwordx2 s[20:21], s[10:11], 32")
    e(f"s_load_dwordx2 s[22:23], s[0:1], 80\ns_load_dwordx2 s[24:25], s[0:1], 96")
    e("v_lshrrev_b32 v2, 6, v0\nv_and_b32 v1, 63, v0")
    e(f"v_readfirstlane_b32 s{sROLE}, v2")
    e(f"s_and_b32 s{sGRP}, s2, 7\ns_lshr_b32 s{sIDX}, s2, 3\ns_lshr_b32 s{sHKV}, s{sGRP}, 1")
    e(f"s_mov_b32 s{sSELLO}, 0x05040100\ns_mov_b32 s{sSELHI}, 0x07060302\ns_mov_b32 s{sLO}, 0x00ff00ff\ns_mov_b32 s{sLO+1}, 0x00ff00ff")
    e(f"s_and_b32 s{sI}, s{sROLE}, 3\ns_lshr_b32 s{sROLE}, s{sROLE}, 2")
    e(f"s_cmp_eq_u32 s{sROLE}, 1\ns_cbranch_scc1 L_K\ns_cmp_eq_u32 s{sROLE}, 2\ns_cbranch_scc1 L_V\ns_cmp_eq_u32 s{sROLE}, 3\ns_cbranch_scc1 L_WO")

    c("=========== WQ role: partial q of head idx>>2 over the k quarter idx&3, all 8 batches; 64 rows x 128 columns per wave")
    XO, D, T = 68, 84, 100
    e(f"s_setprio {prio[0]}")
    e("v_lshrrev_b32 v2, 4, v1\nv_and_b32 v3, 15, v1")
    ga, bb, ic, kd = wqm
    assert sorted([ga, ga + 1, bb, ic, ic + 1, kd, kd + 1]) == list(range(3, 10))
    e(f"v_lshlrev_b32 v{vA}, {13 + ga}, v2\nv_lshl_add_u32 v{vA}, v3, 4, v{vA}")
    e(f"v_and_b32 v3, 7, v1\nv_lshlrev_b32 v{vB}, 11, v3\nv_lshl_add_u32 v{vB}, v2, {1 + ga}, v{vB}")
    e(f"s_lshr_b32 s{sB}, s{sIDX}, 2\ns_and_b32 s{sSC}, s{sIDX}, 3")
    c(f"row = jj + (g << {ga}) + (block << {bb}) + (wave << {ic}) + (quarter << {kd}); neighbours along a row start on different blocks")
    rr = {"h": f"s_mov_b32 s{sTMP}, s{sB}", "hg": f"s_add_u32 s{sTMP}, s{sB}, s{sGRP}", "none": f"s_mov_b32 s{sTMP}, 0", "h2g": f"s_lshl_b32 s{sTMP}, s{sGRP}, 2\ns_add_u32 s{sTMP}, s{sTMP}, s{sB}",
          "hk": f"s_add_u32 s{sTMP}, s{sB}, s{sHKV}"}[wqr]
    e(rr + f"\ns_add_u32 s{sH}, s{sI}, s{sTMP}\ns_and_b32 s{sH}, s{sH}, 3\ns_bfe_u32 s{sTMP2}, s{sTMP}, 0x10002")
    e(f"s_lshl_b32 s{sTMP}, s{sSC}, {kd}\ns_lshl_b32 s{sH}, s{sH}, {ic}\ns_add_u32 s{sTMP}, s{sTMP}, s{sH}\ns_lshl_b32 s{sH}, s{sTMP2}, {bb}\ns_add_u32 s{sTMP}, s{sTMP}, s{sH}")
    e(f"s_lshl_b32 s{sOFF}, s{sTMP}, 13\ns_lshl_b32 s{sOFF2}, s{sTMP}, 1\ns_xor_b32 s9, s{sOFF2}, {2 << bb}")
    e(f"s_lshl_b32 s{sSTEP}, s{sTMP2}, {14 + bb}\ns_sub_u32 s{sSTEP}, {((1 << bb) - 7)*8192}, s{sSTEP}")
    e(f"s_lshl_b32 s{sTMP}, s{sHKV}, 11\ns_add_u32 s{sOFF}, s{sOFF}, s{sTMP}\ns_lshl_b32 s{sTMP}, s{sB}, 8\ns_add_u32 s{sOFF}, s{sOFF}, s{sTMP}")
    e(f"s_mov_b32 s{SRD_A+2}, {8 << 20}\ns_mov_b32 s{SRD_A+3}, 0x20000")
    e("s_waitcnt lgkmcnt(0)")
    e(f"s_mov_b32 s{SRD_A}, s{sWQ}\ns_mov_b32 s{SRD_A+1}, s{sWQ+1}")
    if dbg == 7: ts(9)
    loads = []
    for n in range(16):
        pre = "" if n == 0 else (f"s_add_u32 s{sOFF}, s{sOFF}, s{sSTEP}" if n == 8 else f"s_add_u32 s{sOFF}, s{sOFF}, 8192")
        loads.append((pre, f"buffer_load_dwordx4 {q(DAT + 4*n)}, v{vA}, {A}, s{sOFF} offen{pf}"))
    if wqord:
        loads = []; cur = 0
        for blk in range(2):
            for jj in wqord:
                d = (jj - cur) * 8192; cur = jj
                pre = (f"s_add_u32 s{sOFF}, s{sOFF}, s{sSTEP}\ns_add_u32 s{sOFF}, s{sOFF}, {(7*8192 + d) & 0xffffffff}" if (blk and jj == wqord[0]) else (f"s_add_u32 s{sOFF}, s{sOFF}, {d & 0xffffffff}" if d else ""))
                loads.append((pre, f"buffer_load_dwordx4 {q(DAT + 32*blk + 4*jj)}, v{vA}, {A}, s{sOFF} offen{pf}"))
    xpre = "\n".join(f"v_mov_b32 v{XO+k}, 0" for k in range(16))
    xpre += f"\ns_mov_b32 s{SRD_B}, s{sX}\ns_mov_b32 s{SRD_B+1}, s{sX+1}\ns_mov_b32 s{SRD_B+2}, 16384\ns_mov_b32 s{SRD_B+3}, 0x20000\ns_mov_b64 exec, {LO}"
    loads[xpos:xpos] = [(xpre, f"buffer_load_dwordx4 {q(XO)}, v{vB}, {B}, s{sOFF2} offen"),
                        ("", f"buffer_load_dwordx4 {q(XO+8)}, v{vB}, {B}, s9 offen\ns_mov_b64 exec, -1")]
    if dbg == 7: loads[xpos] = (loads[xpos][0] + f"\ns_memrealtime s[{TS0+16}:{TS0+17}]\ns_waitcnt vmcnt({win[0]-1})\ns_memrealtime s[{TS0+20}:{TS0+21}]", loads[xpos][1])
    stream(loads, win[0], more=wide[0])
    e(f"s_waitcnt vmcnt({ho[0]})")
    ts(11)
    e("s_barrier")
    ts(1)
    srd(SRD_WS, sWS, WS_BYTES)
    e(f"v_mov_b32 v{vZ}, 0\nv_mov_b32 v{vONE}, 1")
    part_addrs(121)
    if cut == 1:
        e("s_waitcnt vmcnt(0)"); ts(2); dbg_out(); e("s_endpgm")
    for blk in range(2):
        for r in range(4): e(f"v_mov_b32_dpp v{XO + 8*blk + 4 + r}, v{XO + 8*blk + r} row_ror:8 row_mask:0xf bank_mask:0xc")
    c("publish v122: ((grp*8 + h)*8 + 2i + b')*1024 + kq*256 + (l&31)*8 ; gather vA: ((grp*8 + 2i + h')*8 + b)*1024 + kq*256 + (l&31)*8")
    e(f"v_lshrrev_b32 v2, 5, v1\nv_and_b32 v{vA}, 31, v1\nv_lshlrev_b32 v{vA}, 3, v{vA}\nv_lshl_add_u32 v122, v2, 10, v{vA}\nv_lshl_add_u32 v{vA}, v2, 13, v{vA}")
    e(f"s_lshl_b32 s{sOFF2}, s{sGRP}, 16\ns_add_u32 s{sOFF2}, s{sOFF2}, {Q_BASE}")
    e(f"s_lshl_b32 s{sOFF}, s{sB}, 2\ns_add_u32 s{sOFF}, s{sOFF}, s{sI}\ns_lshl_b32 s{sOFF}, s{sOFF}, 3\ns_add_u32 s{sOFF}, s{sOFF}, s{sSC}\ns_lshl_b32 s{sOFF}, s{sOFF}, 8\ns_add_u32 s{sOFF}, s{sOFF}, s{sOFF2}")
    c("q in LDS: (2i + h')*272 + ((l>>3)&3)*64 + (l&7)*2")
    e(f"v_mul_u32_u24 v2, 272, v2\nv_bfe_u32 v123, v1, 3, 2\nv_lshl_add_u32 v2, v123, 6, v2\nv_lshl_add_u32 v2, v3, 1, v2\ns_mul_i32 s{sTMP}, s{sI}, 544\nv_add_u32 v2, s{sTMP}, v2")
    assert ho[0] <= 8 and ho[2] <= 8 and xpos <= 16 - ho[0]
    pingpong(XO, D, T)
    second_block_early(0)
    e("s_waitcnt vmcnt(0)")
    ts(2)
    second_block_last(XO + 8, D)
    flag_add(F_Q1)
    spin(F_Q1, 4, 123)
    part_read(DAT, 121)
    sum4(DAT)
    pack(DAT, DAT)
    e(f"buffer_store_dwordx2 {d2(DAT)}, v122, {WS}, s{sOFF} offen")
    ts(3)
    spin(F_MODE, 1, 123, sleep=slp)
    e(f"s_cmp_eq_u32 s{sTMP}, 1\ns_cbranch_scc1 L_qloc")
    e(f"buffer_store_dwordx2 {d2(DAT)}, v122, {WS}, s{sOFF} offen sc1\nL_qloc:")
    e(f"s_lshl_b32 s{sOFF}, s{sI}, 4\ns_add_u32 s{sOFF}, s{sOFF}, s{sB}\ns_lshl_b32 s{sOFF}, s{sOFF}, 10\ns_add_u32 s{sOFF}, s{sOFF}, s{sOFF2}")
    spin(F_GQ, 4, 123, sleep=slp)
    ts(7)
    c("gather q of this workgroup's batch: heads 2i, 2i+1, four partials")
    e(f"s_mov_b32 s{sCNT}, {NPOLL}\ns_branch L_qpoll\nL_qretry:")
    retry(2)
    e("L_qpoll:")
    for k in range(4): e(f"buffer_load_dwordx2 {d2(20+2*k)}, v{vA}, {WS}, s{sOFF} offen offset:{256*k} sc1")
    e("s_waitcnt vmcnt(0)")
    ones_check(range(20, 28), 28, "L_qretry")
    for k in range(8): unpack(32 + 2*k, 20 + k)
    sum4(32)
    e("v_cvt_pk_bf16_f32 v20, v32, v33\nv_cvt_pk_bf16_f32 v22, v34, v35")
    e(f"ds_write_b16 v2, v20 offset:{QLDS}\nds_write_b16_d16_hi v2, v20 offset:{QLDS+16}")
    e(f"ds_write_b16 v2, v22 offset:{QLDS+32}\nds_write_b16_d16_hi v2, v22 offset:{QLDS+48}")
    flag_add(F_Q)
    ts(4); cnt(8)
    e(f"s_mov_b32 s{sB}, s{sI}")

    c("=========== o gather (WQ and K waves, one batch each): merge the four key quarters of head pair idx>>3")
    e("L_G:")
    e(f"s_setprio {gprio}")
    e(f"s_lshr_b32 s{sH}, s{sIDX}, 3")
    c("stats: grp*16K + hp*4K + (4b + s)*128 + h'*64")
    e(f"v_lshrrev_b32 v2, 5, v1\nv_lshlrev_b32 v4, 6, v2\nv_and_b32 v5, 3, v1\nv_lshl_add_u32 v3, v5, 7, v4")
    e(f"s_lshl_b32 s{sOFF}, s{sGRP}, 2\ns_add_u32 s{sOFF}, s{sOFF}, s{sH}\ns_lshl_b32 s{sOFF}, s{sOFF}, 3\ns_add_u32 s{sOFF}, s{sOFF}, s{sB}")
    e(f"s_lshl_b32 s{sOFF2}, s{sOFF}, 9\ns_add_u32 s{sOFF2}, s{sOFF2}, {S_BASE}")
    e(f"s_lshl_b32 s{sOFF}, s{sOFF}, 11\ns_add_u32 s{sOFF}, s{sOFF}, {O_BASE}")
    c("o in LDS [b][wave 4][h' 2][g 4][jj 8]: values r0,r2 -> wave j>>2, r1,r3 -> wave 2 + (j>>2); g = j&3, jj = 2 gD")
    e(f"v_bfe_u32 v30, v1, 2, 1\nv_lshlrev_b32 v30, 7, v30\nv_lshl_add_u32 v30, v2, 6, v30\nv_lshl_add_u32 v30, v5, 4, v30\nv_bfe_u32 v4, v1, 3, 2\nv_lshl_add_u32 v30, v4, 2, v30")
    e(f"s_mul_i32 s{sTMP}, s{sB}, 528\nv_add_u32 v30, s{sTMP}, v30\nv_lshlrev_b32 v2, 3, v1")
    spin(F_O2, 8 if no else 4, 31, sleep=slp)
    ts(5)
    if pre == 3:
        L = "L_npre"
        e(f"s_cmp_lg_u32 s{sB}, 0\ns_cbranch_scc1 {L}")
        e(f"s_lshl_b32 s54, s{sBR}, 3\ns_and_b32 s55, s{sIDX}, 7\ns_add_u32 s54, s54, s55\ns_lshl_b32 s54, s54, 4\ns_lshl_b32 s55, s{sHKV}, 2\ns_add_u32 s54, s54, s55")
        e(f"s_add_u32 s54, s54, s{sH}\ns_lshl_b32 s54, s54, 12\ns_add_u32 s54, s54, {R_BASE}\nv_lshlrev_b32 v50, 7, v1\ns_mov_b32 exec_hi, 0")
        e(f"buffer_load_dword v51, v50, {WS}, s54 offen sc1\ns_mov_b32 exec_hi, -1\n{L}:")
    e(f"s_mov_b32 s{sCNT}, {NPOLL}\ns_branch L_opoll\nL_oretry:")
    retry(0)
    e("L_opoll:")
    e(f"buffer_load_dword v4, v3, {WS}, s{sOFF2} offen sc1")
    for k in range(4): e(f"buffer_load_dwordx2 {d2(12+2*k)}, v2, {WS}, s{sOFF} offen offset:{512*k} sc1")
    e("s_waitcnt vmcnt(4)")
    c("weights of the quarters: softmax over the four log2-sum-exp values held by a quad of lanes")
    e(f"v_max_f32_dpp v6, v4, v4 quad_perm:[1,0,3,2] {dpp}\ns_nop 1")
    e(f"v_max_f32_dpp v6, v6, v6 quad_perm:[2,3,0,1] {dpp}")
    e("v_sub_f32 v6, v4, v6\nv_exp_f32 v6, v6\ns_nop 1")
    e(f"v_add_f32_dpp v7, v6, v6 quad_perm:[1,0,3,2] {dpp}\ns_nop 1")
    e(f"v_add_f32_dpp v7, v7, v7 quad_perm:[2,3,0,1] {dpp}")
    if fast:
        e("v_rcp_f32 v7, v7\ns_nop 0\nv_mul_f32 v6, v6, v7\ns_nop 1")
        for k in range(4): e(f"v_mov_b32_dpp v{8+k}, v6 quad_perm:[{k},{k},{k},{k}] {dpp}")
        e("s_waitcnt vmcnt(0)")
    else: e("v_rcp_f32 v7, v7\ns_waitcnt vmcnt(0)\nv_mul_f32 v6, v6, v7")
    ones_check([4] + list(range(12, 20)), 28, "L_oretry")
    for k in range(8): unpack(32 + 2*k, 12 + k)
    if fast: scaled_sum(32, 8)
    else:
        for r in range(4): e(f"v_mul_f32_dpp v{32+r}, v6, v{32+r} quad_perm:[0,0,0,0] {dpp}")
        for k in range(1, 4):
            for r in range(4): e(f"v_fmac_f32_dpp v{32+r}, v6, v{32+4*k+r} quad_perm:[{k},{k},{k},{k}] {dpp}")
    e("v_cvt_pk_bf16_f32 v12, v32, v34\nv_cvt_pk_bf16_f32 v13, v33, v35")
    e(f"ds_write_b32 v30, v12 offset:{OLDS}\nds_write_b32 v30, v13 offset:{OLDS+256}")
    ts(6); cnt(10)
    if pre == 2:
        L = "L_npre"
        e(f"s_cmp_lg_u32 s{sB}, 0\ns_cbranch_scc1 {L}")
        e(f"s_lshl_b32 s54, s{sBR}, 3\ns_and_b32 s55, s{sIDX}, 7\ns_add_u32 s54, s54, s55\ns_lshl_b32 s54, s54, 4\ns_lshl_b32 s55, s{sHKV}, 2\ns_add_u32 s54, s54, s55")
        e(f"s_add_u32 s54, s54, s{sH}\ns_lshl_b32 s54, s54, 12\ns_add_u32 s54, s54, {R_BASE}\nv_lshlrev_b32 v50, 7, v1\ns_mov_b32 exec_hi, 0")
        e(f"buffer_load_dword v51, v50, {WS}, s54 offen sc1\ns_mov_b32 exec_hi, -1\n{L}:")
    e("s_waitcnt lgkmcnt(0)\ns_barrier")
    if pre == 1:
        L = "L_npre"
        e(f"s_cmp_lg_u32 s{sB}, 0\ns_cbranch_scc1 {L}")
        e(f"s_lshl_b32 s54, s{sBR}, 3\ns_and_b32 s55, s{sIDX}, 7\ns_add_u32 s54, s54, s55\ns_lshl_b32 s54, s54, 4\ns_lshl_b32 s55, s{sHKV}, 2\ns_add_u32 s54, s54, s55")
        e(f"s_add_u32 s54, s54, s{sH}\ns_lshl_b32 s54, s54, 12\ns_add_u32 s54, s54, {R_BASE}\nv_lshlrev_b32 v50, 7, v1\ns_mov_b32 exec_hi, 0")
        e(f"buffer_load_dword v51, v50, {WS}, s54 offen sc1\ns_mov_b32 exec_hi, -1\n{L}:")

    dbg_out()
    e("s_endpgm")

    c("=========== K role: scores and probabilities of batch idx>>2, key quarter idx&3; 64 keys per wave")
    QO, S = 68, 76
    e("L_K:")
    e(f"s_setprio {prio[1]}")
    c("A rows = (key, parity of the 16-byte chunk), B columns = (parity, head): one load covers 128 B of 8 keys")
    e(f"v_bfe_u32 v2, v1, 1, 1\nv_lshlrev_b32 v{vA}, {ub}, v2")
    if g1 == g0 + 1: e(f"v_bfe_u32 v2, v1, 2, 2\nv_lshl_add_u32 v{vA}, v2, {g0}, v{vA}")
    else: e(f"v_bfe_u32 v2, v1, 2, 1\nv_lshl_add_u32 v{vA}, v2, {g0}, v{vA}\nv_bfe_u32 v2, v1, 3, 1\nv_lshl_add_u32 v{vA}, v2, {g1}, v{vA}")
    e(f"v_lshrrev_b32 v2, 4, v1\nv_lshl_add_u32 v{vA}, v2, 5, v{vA}\nv_and_b32 v2, 1, v1\nv_lshl_add_u32 v{vA}, v2, 4, v{vA}")
    def sfield(reg, p0, p1):
        if p1 == p0 + 1: e(f"s_and_b32 s{sTMP}, s{reg}, 3\ns_lshl_b32 s{sTMP}, s{sTMP}, {p0}\ns_add_u32 s{sOFF2}, s{sOFF2}, s{sTMP}")
        else:
            for k, p in enumerate((p0, p1)): e(f"s_bfe_u32 s{sTMP}, s{reg}, {0x10000 + k}\ns_lshl_b32 s{sTMP}, s{sTMP}, {p}\ns_add_u32 s{sOFF2}, s{sOFF2}, s{sTMP}")
    def kv_base():
        c(f"key of slot (g, tile T, u) in the 256-KB window: byte offset g << {g0}, wave << {i0}, ((T + b) & 7) << {Tb}, u << {ub}, quarter << {s0}")
        e(f"s_lshr_b32 s{sTMP2}, s{sIDX}, 2\ns_lshl_b32 s{sOFF2}, s{sTMP2}, 22\ns_lshl_b32 s{sTMP}, s{sHKV}, 20\ns_add_u32 s{sOFF2}, s{sOFF2}, s{sTMP}\ns_add_u32 s{sOFF2}, s{sOFF2}, 0xC0000")
        sfield(sIDX, s0, s1); sfield(sI, i0, i1)
        if kvr == "none": e(f"s_mov_b32 s{sTMP2}, 0")
        if kvr == "idx": e(f"s_and_b32 s{sTMP2}, s{sIDX}, 7")
        if kvr == "bg": e(f"s_add_u32 s{sTMP2}, s{sTMP2}, s{sGRP}\ns_and_b32 s{sTMP2}, s{sTMP2}, 7")
        e(f"s_lshl_b32 s{sSTEP}, s{sTMP2}, {Tb}\ns_add_u32 s{sOFF}, s{sOFF2}, s{sSTEP}")
    kv_step = f"s_add_u32 s{sSTEP}, s{sSTEP}, {1 << Tb}\ns_and_b32 s{sSTEP}, s{sSTEP}, {(8 << Tb) - 1}\ns_add_u32 s{sOFF}, s{sOFF2}, s{sSTEP}"
    kv_base()
    e(f"v_mov_b32 v{vZ}, 0\nv_mov_b32 v{vONE}, 1")
    e("s_waitcnt lgkmcnt(0)")
    srd(SRD_A, sK, 32 << 20); srd(SRD_WS, sWS, WS_BYTES)
    e("s_barrier")
    loads = []
    for t in range(8):
        for hh in range(2):
            loads.append((kv_step if (t and not hh) else "", f"buffer_load_dwordx4 {q(DAT + 8*t + 4*hh)}, v{vA}, {A}, s{sOFF} offen offset:{hh*128}{pf}"))
    stream(loads, win[1], [(nq, F_GQ), (nh, F_GH)], wide[1])
    e(f"s_waitcnt vmcnt({ho[1]})")
    flag_add(GO_V)
    ts(1)
    e(f"v_and_b32 v2, 7, v1\nv_mul_u32_u24 v{vA}, 272, v2\nv_lshrrev_b32 v2, 3, v1\nv_lshl_add_u32 v{vA}, v2, 4, v{vA}")
    e(f"v_lshlrev_b32 v{vB}, 4, v1\ns_lshl_b32 s{sTMP}, s{sI}, 11\nv_add_u32 v{vB}, s{sTMP}, v{vB}")
    e(f"s_mov_b32 s{sSC}, 0x3e0293ee")
    e("s_waitcnt vmcnt(0)")
    ts(2)
    if cut:
        dbg_out(); e("s_endpgm")
    spin(F_Q, 4, 2, sleep=slp)
    ts(3)
    e(f"ds_read_b128 {q(QO)}, v{vA} offset:{QLDS}\nds_read_b128 {q(QO+4)}, v{vA} offset:{QLDS+128}")
    e("s_waitcnt lgkmcnt(0)")
    for t in range(8): mfma(S + 4*t, DAT + 8*t, QO, None)
    for t in range(8): mfma(S + 4*t, DAT + 8*t + 4, QO + 4, S + 4*t)
    e("s_nop 1")
    for t in range(8):
        for u in range(2):
            e(f"v_add_f32_dpp v{DAT + 2*t + u}, v{S + 4*t + 2*u + 1}, v{S + 4*t + 2*u} row_ror:8 {dpp}")
    e(f"v_max3_f32 v20, v{DAT}, v{DAT+1}, v{DAT+2}")
    for k in range(3, 15, 2): e(f"v_max3_f32 v20, v20, v{DAT+k}, v{DAT+k+1}")
    e(f"v_max_f32 v20, v20, v{DAT+15}")
    def allred(v, t, op):
        e(f"v_mov_b32 v{t}, v{v}\ns_nop 1\nv_permlane32_swap_b32 v{v}, v{t}\nv_{op}_f32 v{v}, v{v}, v{t}")
        e(f"v_mov_b32 v{t}, v{v}\ns_nop 1\nv_permlane16_swap_b32 v{v}, v{t}\nv_{op}_f32 v{v}, v{v}, v{t}")
    allred(20, 21, "max")
    e(f"v_mul_f32 v20, s{sSC}, v20")
    for k in range(16): e(f"v_fma_f32 v{DAT+k}, v{DAT+k}, s{sSC}, -v20")
    for k in range(16): e(f"v_exp_f32 v{DAT+k}, v{DAT+k}")
    e("s_nop 0")
    for k in range(8): e(f"v_cvt_pk_bf16_f32 v{24+k}, v{DAT+2*k}, v{DAT+2*k+1}")
    e(f"ds_write_b128 v{vB}, {q(24)} offset:{PLDS}\nds_write_b128 v{vB}, {q(28)} offset:{PLDS+1024}")
    for st in (8, 4, 2, 1):
        for k in range(st): e(f"v_add_f32 v{DAT+k}, v{DAT+k}, v{DAT+st+k}")
    e(f"v_mov_b32 v21, v{DAT}")
    allred(21, 22, "add")
    e(f"v_lshlrev_b32 v2, 3, v1\ns_lshl_b32 s{sTMP}, s{sI}, 6\nv_add_u32 v2, s{sTMP}, v2")
    e(f"s_mov_b64 exec, 0xff\nds_write_b64 v2, v[20:21] offset:{STLDS}")
    flag_add(F_P)
    ts(4)
    e(f"s_add_u32 s{sB}, s{sI}, 4\ns_branch L_G")

    c("=========== V role: P x V over the keys of the K wave with the same i")
    ACC, PO, TV, G = 68, 84, 100, 122
    e("L_V:")
    e(f"s_setprio {prio[2]}")
    e(f"v_lshlrev_b32 v{vA}, 4, v1")
    e(f"v_lshrrev_b32 v2, 4, v1\nv_and_b32 v109, 15, v1\nv_lshlrev_b32 v109, 4, v109")
    if g1 == g0 + 1: e(f"v_lshl_add_u32 v109, v2, {g0}, v109")
    else: e(f"v_bfe_u32 v2, v1, 4, 1\nv_lshl_add_u32 v109, v2, {g0}, v109\nv_lshrrev_b32 v2, 5, v1\nv_lshl_add_u32 v109, v2, {g1}, v109")
    e(f"v_add_u32 v110, {1 << ub}, v109")
    kv_base()
    e(f"v_mov_b32 v{vZ}, 0\nv_mov_b32 v{vONE}, 1")
    zero(PO, 16)
    c("P address: i*2048 + (g*16 + (l&7))*16 ; statistics address: (2i + (l>>5))*8")
    e(f"v_and_b32 v{vB}, 0x370, v{vA}\ns_lshl_b32 s{sTMP}, s{sI}, 11\nv_add_u32 v{vB}, s{sTMP}, v{vB}")
    e(f"v_lshrrev_b32 v2, 5, v1\nv_lshlrev_b32 v3, 3, v2\ns_lshl_b32 s{sTMP}, s{sI}, 4\nv_add_u32 v3, s{sTMP}, v3")
    c("statistics message lane offset: (l>>5)*64 + (l&3)*16")
    e(f"v_lshlrev_b32 v2, 6, v2\nv_and_b32 v126, 3, v1\nv_lshl_add_u32 v108, v126, 4, v2")
    e("s_waitcnt lgkmcnt(0)")
    srd(SRD_A, sV, 32 << 20); srd(SRD_WS, sWS, WS_BYTES)
    e("s_barrier")
    if not mix: spin(GO_V, 4, 121, sleep=slp)
    loads = [(kv_step if (k and not k & 1) else "", f"buffer_load_dwordx4 {q(DAT + 4*k)}, v{109 + (k&1)}, {A}, s{sOFF} offen{pf}") for k in range(16)]
    if mix:
        stream(loads[:mix[1]], mix[0])
        spin(GO_V, 4, 121, sleep=slp)
        for n, (pre, ld) in enumerate(loads):
            if n < mix[1]: continue
            if pre: e(pre)
            if n - mix[1] + mix[0] >= win[2]: e(f"s_waitcnt vmcnt({win[2]-1})")
            e(ld)
    else: stream(loads, win[2], more=wide[2])
    e(f"s_waitcnt vmcnt({ho[2]})")
    flag_add(GO_WO)
    ts(1)
    if cut:
        e("s_waitcnt vmcnt(0)"); ts(3); dbg_out(); e("s_endpgm")
    e(f"v_lshlrev_b32 v{vA}, 3, v1")
    e(f"s_lshl_b32 s{sOFF2}, s{sGRP}, 2\ns_add_u32 s{sOFF2}, s{sOFF2}, s{sI}\ns_lshl_b32 s{sOFF2}, s{sOFF2}, 5\ns_add_u32 s{sOFF2}, s{sOFF2}, s{sIDX}")
    e(f"s_lshl_b32 s{sOFF}, s{sOFF2}, 7\ns_add_u32 s{sOFF}, s{sOFF}, {S_BASE}")
    spin(F_P, 4, 121)
    ts(2)
    e(f"ds_read_b32 v121, v{vZ} offset:{F_MODE}")
    for w in range(4): e(f"ds_read_b64 v[{TV+2*w}:{TV+2*w+1}], v3 offset:{STLDS + 64*w}")
    lds_operands(PO, vB, PLDS, PLDS + 1024)
    e("s_waitcnt lgkmcnt(0)")
    e(f"v_readfirstlane_b32 s{sMODE}, v121")
    c("factors exp2(m_w - M) / l of the four waves' partial sums, and L = M + log2 l")
    e(f"v_max3_f32 v126, v{TV}, v{TV+2}, v{TV+4}\nv_max_f32 v126, v126, v{TV+6}")
    for w in range(4): e(f"v_sub_f32 v{G+w}, v{TV+2*w}, v126")
    for w in range(4): e(f"v_exp_f32 v{G+w}, v{G+w}")
    e(f"s_nop 0\nv_mul_f32 v127, v{G}, v{TV+1}")
    for w in range(1, 4): e(f"v_fmac_f32 v127, v{G+w}, v{TV+2*w+1}")
    e(f"v_log_f32 v112, v127\nv_rcp_f32 v127, v127\ns_nop 0\nv_add_f32 v112, v112, v126")
    for w in range(4): e(f"v_mul_f32 v{G+w}, v{G+w}, v127")
    e(f"v_min_u32 v112, -2, v112")
    for r in range(1, 4): e(f"v_mov_b32 v{112+r}, v112")
    e("s_mov_b32 exec_lo, 15\ns_mov_b32 exec_hi, 15")
    store_by_mode("buffer_store_dwordx4", q(112), 108)
    e("s_mov_b64 exec, -1")
    part_addrs(3)
    e(f"s_lshl_b32 s{sOFF}, s{sOFF2}, 9\ns_add_u32 s{sOFF}, s{sOFF}, {O_BASE}")
    pingpong(PO, ACC, TV)
    second_block_early(1)
    e("s_waitcnt vmcnt(1)")
    ts(3)
    second_block_last(PO + 8, ACC)
    flag_add(F_O1)
    if fast:
        spin(F_O1, 4, 121, also="".join(f"ds_read_b128 {q(DAT + 4*w)}, v3 offset:{PART + (w >> 1)*9216 + (w & 1)*128}\n" for w in range(4)))
        scaled_sum(DAT, G)
    else:
        spin(F_O1, 4, 121)
        part_read(DAT, 3)
        for r in range(4): e(f"v_mul_f32 v{DAT+r}, v{G}, v{DAT+r}")
        for w in range(1, 4):
            for r in range(4): e(f"v_fmac_f32 v{DAT+r}, v{G+w}, v{DAT+4*w+r}")
    pack(DAT, DAT)
    store_by_mode("buffer_store_dwordx2", d2(DAT), vA)
    flag_add(F_O2)
    ts(4)
    dbg_out()
    e("s_endpgm")

    c("=========== WO role: rows of head pair 4 hkv + (idx>>3), column group idx&7; wave 3 first runs the hello round")
    T0, OO, AC = 68, 100, 36
    e("L_WO:")
    lite[0] = False
    e(f"s_setprio {prio[3]}")
    e(f"v_mov_b32 v{vZ}, 0\nv_lshlrev_b32 v2, 2, v1")
    e(f"s_mov_b64 exec, 0xffff\nds_write_b32 v2, v{vZ}\ns_mov_b64 exec, -1")
    e("s_waitcnt lgkmcnt(0)")
    e(f"s_lshl_b32 s{sSTEP}, s{sBR}, 8\ns_load_dword s{sT}, s[{sWS}:{sWS+1}], s{sSTEP}")
    srd(SRD_WS, sWS, WS_BYTES)
    e(f"s_cmp_lg_u32 s{sI}, 3\ns_cbranch_scc1 L_nohello")
    e(f"s_mov_b32 s{sMODE}, 1")
    for r in range(4): e(f"v_mov_b32 v{4+r}, -1")
    c("q slots: 8 x 256 B at stride 1 KB; o slots: 4 x 512 B at stride 16 KB; statistics: 4 x 128 B at stride 4 KB")
    e(f"v_lshrrev_b32 v2, 4, v1\nv_and_b32 v3, 15, v1\nv_lshlrev_b32 v3, 4, v3\nv_lshl_add_u32 v8, v2, 10, v3")
    e(f"v_lshrrev_b32 v2, 5, v1\nv_and_b32 v3, 31, v1\nv_lshlrev_b32 v3, 4, v3\nv_lshl_add_u32 v9, v2, 14, v3")
    e(f"v_bfe_u32 v2, v1, 3, 2\nv_and_b32 v11, 7, v1\nv_lshlrev_b32 v11, 4, v11\nv_lshl_add_u32 v10, v2, 12, v11")
    e(f"s_lshl_b32 s54, s{sGRP}, 3\ns_lshr_b32 s{sTMP}, s{sIDX}, 2\ns_add_u32 s54, s54, s{sTMP}\ns_lshl_b32 s54, s54, 5\ns_and_b32 s{sTMP}, s{sIDX}, 3\ns_add_u32 s54, s54, s{sTMP}")
    e(f"s_lshl_b32 s54, s54, 8\ns_add_u32 s54, s54, {Q_BASE}\ns_add_u32 s55, s54, 4096")
    e(f"s_lshl_b32 s{sTMP}, s{sGRP}, 7\ns_add_u32 s{sTMP}, s{sTMP}, s{sIDX}\ns_lshl_b32 s56, s{sTMP}, 9\ns_add_u32 s56, s56, {O_BASE}\ns_add_u32 s57, s56, 32768")
    e(f"s_lshl_b32 s{sTMP2}, s{sTMP}, 7\ns_add_u32 s{sTMP2}, s{sTMP2}, {S_BASE}")
    e(f"s_lshl_b32 s{sOFF2}, s{sGRP}, 12\ns_add_u32 s{sOFF2}, s{sOFF2}, {H_BASE}")
    def clears(p):
        e(f"buffer_store_dwordx4 {q(4)}, v8, {WS}, s54 offen{p}\nbuffer_store_dwordx4 {q(4)}, v8, {WS}, s55 offen{p}")
        e(f"buffer_store_dwordx4 {q(4)}, v9, {WS}, s56 offen{p}\nbuffer_store_dwordx4 {q(4)}, v9, {WS}, s57 offen{p}")
        e(f"s_mov_b32 exec_hi, 0\nbuffer_store_dwordx4 {q(4)}, v10, {WS}, s{sTMP2} offen{p}\ns_mov_b32 exec_hi, -1")
    clears("")
    e(f"s_getreg_b32 s{sSC}, hwreg(HW_REG_XCC_ID, 0, 4)")
    e("s_waitcnt lgkmcnt(0)")
    tag_setup()
    c("hello word = tag + die")
    e(f"s_add_u32 s{sSC}, s{sSC}, s{sTAG}")
    e("L_hello:")
    for r in range(4): e(f"v_mov_b32 v{12+r}, s{sSC}")
    e(f"s_lshl_b32 s{sOFF}, s{sIDX}, 7\ns_add_u32 s{sOFF}, s{sOFF}, s{sOFF2}")
    e("s_waitcnt vmcnt(0)\ns_mov_b64 exec, 0xff")
    e(f"buffer_store_dwordx4 {q(12)}, v11, {WS}, s{sOFF} offen sc1\ns_mov_b64 exec, -1")
    e(f"s_cmp_eq_u32 s{sMODE}, 2\ns_cbranch_scc1 L_hpoll0")
    ts(11)
    e("s_barrier")
    spin(F_GH, 4, 16, sleep=slp)
    e("L_hpoll0:")
    e(f"v_and_b32 v16, 31, v1\nv_lshlrev_b32 v16, 7, v16\ns_mov_b32 s{sCNT}, {NPOLL}")
    e("L_hpoll:")
    e(f"buffer_load_dword v17, v16, {WS}, s{sOFF2} offen sc1\ns_waitcnt vmcnt(0)")
    e(f"v_cmp_ne_u32 s[10:11], s{sSC}, v17\nv_subrev_u32 v17, s{sTAG}, v17\nv_cmp_lt_u32 vcc, 15, v17")
    e(f"s_or_b32 s{sH}, s10, s11\ns_cbranch_vccz L_hall")
    e(f"s_sleep 8\ns_sub_u32 s{sCNT}, s{sCNT}, 1\ns_cbranch_scc0 L_hpoll\ns_endpgm")
    e("L_hall:")
    e(f"s_cmp_eq_u32 s{sMODE}, 2\ns_cbranch_scc1 L_hdone\ns_cmp_eq_u32 s{sH}, 0\ns_cbranch_scc1 L_hdone")
    c("the group spans dies: clear again write-through, then a second round")
    e(f"s_mov_b32 s{sMODE}, 2\ns_add_u32 s{sOFF2}, s{sOFF2}, 0x8000")
    clears(" sc1")
    e("s_branch L_hello")
    e("L_hdone:")
    e(f"v_mov_b32 v4, s{sMODE}\nds_write_b32 v{vZ}, v4 offset:{F_MODE}")
    ts(7); cnt(9)
    e("s_branch L_wosetup")
    e("L_nohello:")
    if warm:
        c("pull the kernel's code into this die's L2: workgroup idx, wave i reads line idx + 32 i")
        e(f"s_getpc_b64 s[54:55]\nL_pc:\ns_sub_u32 s54, s54, L_pc-{KN}\ns_subb_u32 s55, s55, 0")
        e(f"s_lshl_b32 s{sTMP}, s{sI}, 5\ns_add_u32 s{sTMP}, s{sTMP}, s{sIDX}\ns_lshl_b32 s56, s{sTMP}, 7\ns_min_u32 s56, s56, L_end-{KN}")
        e("s_load_dword s57, s[54:55], s56")
    e("s_waitcnt lgkmcnt(0)")
    tag_setup()
    e("s_barrier")
    e("L_wosetup:")
    c("rows 16 n + 4 i + g of the 256, 256 B of each")
    e(f"v_lshrrev_b32 v2, 4, v1\nv_and_b32 v3, 15, v1\nv_lshlrev_b32 v3, 4, v3\nv_lshl_add_u32 v{vA}, v2, 11, v3\nv_lshl_add_u32 v125, v2, 12, v3")
    e(f"s_lshr_b32 s{sTMP}, s{sIDX}, 3\ns_lshl_b32 s{sB}, s{sHKV}, 2\ns_add_u32 s{sB}, s{sB}, s{sTMP}\ns_and_b32 s{sSC}, s{sIDX}, 7")
    e(f"s_lshl_b32 s{sOFF}, s{sB}, 19\ns_lshl_b32 s{sTMP}, s{sI}, 13\ns_add_u32 s{sOFF}, s{sOFF}, s{sTMP}\ns_lshl_b32 s{sTMP}, s{sSC}, 8\ns_add_u32 s{sOFF}, s{sOFF}, s{sTMP}")
    c("o operand address: (l&7)*528 + i*128 + block*64 + g*16 ; out lane offset: (32*((l>>3)&1) + 8*(l>>4) + (l&7))*2")
    e(f"v_and_b32 v3, 7, v1\nv_mul_u32_u24 v123, 528, v3\nv_lshl_add_u32 v123, v2, 4, v123\ns_lshl_b32 s{sTMP}, s{sI}, 7\nv_add_u32 v123, s{sTMP}, v123")
    e(f"v_bfe_u32 v122, v1, 3, 1\nv_lshlrev_b32 v122, 6, v122\nv_lshl_add_u32 v122, v2, 4, v122\nv_lshl_add_u32 v122, v3, 1, v122")
    part_addrs(3)
    e(f"v_mov_b32 v{vM}, 0x7ff\nv_mov_b32 v{vONE}, 1\nv_lshlrev_b32 v2, 4, v1")
    zero(OO, 16)
    srd(SRD_A, sWO, 8 << 20); srd(SRD_B, sOUT, 32768)
    spin(GO_WO, 4, 121, sleep=slp)
    loads = [(f"s_add_u32 s{sOFF}, s{sOFF}, 32768" if n else "", f"buffer_load_dwordx4 {q(DAT + 4*n)}, v{vA}, {A}, s{sOFF} offen{pf}") for n in range(16)]
    stream(loads, win[3], [(no, F_O2)], wide[3])
    ts(1)
    e(f"s_lshl_b32 s{sOFF}, s{sBR}, 3\ns_add_u32 s{sOFF}, s{sOFF}, s{sSC}\ns_lshl_b32 s{sOFF}, s{sOFF}, 16\ns_add_u32 s{sOFF}, s{sOFF}, {R_BASE}")
    e(f"s_lshl_b32 s{sTMP}, s{sB}, 12\ns_add_u32 s{sTMP2}, s{sOFF}, s{sTMP}")
    e(f"s_lshl_b32 s{sTMP}, s{sI}, 14\ns_add_u32 s{sOFF}, s{sOFF}, s{sTMP}\ns_lshl_b32 s{sTMP}, s{sB}, 8\ns_add_u32 s{sOFF}, s{sOFF}, s{sTMP}")
    c("out byte offset: (b*2048 + br*1024 + cg*128 + nh*64)*2 with (b, nh) = row group")
    e(f"s_lshr_b32 s{sOFF2}, s{sB}, 1\ns_lshl_b32 s{sOFF2}, s{sOFF2}, 12\ns_lshl_b32 s{sTMP}, s{sBR}, 11\ns_add_u32 s{sOFF2}, s{sOFF2}, s{sTMP}")
    e(f"s_lshl_b32 s{sTMP}, s{sSC}, 8\ns_add_u32 s{sOFF2}, s{sOFF2}, s{sTMP}\ns_and_b32 s{sTMP}, s{sB}, 1\ns_lshl_b32 s{sTMP}, s{sTMP}, 7\ns_add_u32 s{sOFF2}, s{sOFF2}, s{sTMP}")
    e(f"s_mov_b32 s{sCNT}, {NPOLL}")
    for ip in range(4):
        e(f"s_waitcnt vmcnt({14 - 2*ip})")
        for j in range(8): perm(T0 + 4*j + ip, DAT, j, ip)
    second_block_early(0)
    if cut: e("s_waitcnt vmcnt(0)")
    ts(2)
    if cut:
        dbg_out(); e("s_endpgm")
    e("s_setprio 3\ns_barrier")
    ts(3)
    lds_operands(OO, 123, OLDS, OLDS + 64)
    e("s_waitcnt lgkmcnt(0)")
    for j in range(8): e(wm(AC, j, T0 + 4*j, OO, True))
    e("s_waitcnt vmcnt(0)")
    ts(6)
    def tcs(k):
        if tcp == k or (tcp and k == 0): e(f"s_memtime s[{TS0 + (22 if k else 18)}:{TS0 + (23 if k else 19)}]")
    tcs(0)
    second_block_last(OO + 8, AC)
    tcs(1)
    e("s_waitcnt lgkmcnt(0)")
    tcs(2)
    e("s_barrier")
    tcs(3)
    part_read(T0, 3)
    tcs(4)
    sum4(T0)
    for r in range(4): e(f"v_bfi_b32 v{T0+r}, v{vM}, s{sT+r}, v{T0+r}")
    e(f"buffer_store_dwordx4 {q(T0)}, v125, {WS}, s{sOFF} offen sc1")
    tcs(5)
    ts(4)
    e(f"s_cmp_lg_u32 s{sI}, 0\ns_cbranch_scc1 L_fin")
    c("wave 0 sums the 16 row groups' partials of 64 outputs; the others' need about as long to land as its own")
    if rdelay: e(f"s_sleep {rdelay}")
    if rack: e("s_waitcnt vmcnt(0)")
    ts(10)
    e("s_branch L_rpoll\nL_rretry:")
    retry(0)
    e("L_rpoll:")
    for k in range(4): e(f"buffer_load_dwordx4 {q(12+4*k)}, v2, {WS}, s{sTMP2} offen offset:{1024*k} sc1")
    e("s_waitcnt vmcnt(0)")
    c("the tag fields cancel out of valid words, so the sums do not depend on the tag")
    for k in range(16): e(f"v_xor_b32 v{12+k}, s{sT + (k & 3)}, v{12+k}")
    for k in range(5): e(f"v_or3_b32 v{28+k}, v{12+3*k}, v{13+3*k}, v{14+3*k}")
    e("v_or3_b32 v28, v28, v29, v30\nv_or3_b32 v31, v31, v32, v27")
    e(f"v_bitop3_b32 v28, v28, v31, v{vM} bitop3:0xa8\nv_cmp_ne_u32 vcc, 0, v28\ns_cbranch_vccnz L_rretry")
    sum4(12)
    e("s_nop 1\nv_permlane32_swap_b32 v12, v14\nv_permlane32_swap_b32 v13, v15")
    e("v_add_f32 v12, v12, v14\nv_add_f32 v13, v13, v15\ns_nop 1\nv_permlane16_swap_b32 v12, v13\nv_add_f32 v12, v12, v13")
    e("v_cvt_pk_bf16_f32 v12, v12, v12")
    e(f"buffer_store_short v12, v122, {B}, s{sOFF2} offen {outpol}")
    ts(5); cnt(8)
    c("the first workgroup of a branch moves the epoch word on: every workgroup of that branch has read it by now")
    e(f"s_or_b32 s{sTMP}, s{sHKV}, s{sIDX}\ns_cmp_lg_u32 s{sTMP}, 0\ns_cbranch_scc1 L_fin")
    e(f"v_mov_b32 v4, s{sTAG}\nv_mov_b32 v5, 0\ns_mov_b64 exec, 1")
    e(f"buffer_store_dword v4, v5, {WS}, s{sSTEP} offen {eppol}")
    e("L_fin:")
    if dbg: e("s_nop 1")
    dbg_out()
    e("L_end:\ns_endpgm")
    e(f""".section .rodata,"a"
.p2align 6
.amdhsa_kernel {KN}
  .amdhsa_next_free_vgpr 128
  .amdhsa_next_free_sgpr 96
  .amdhsa_accum_offset 128
  .amdhsa_group_segment_fixed_size 0
  .amdhsa_kernarg_size 104
  .amdhsa_user_sgpr_count 2
  .amdhsa_user_sgpr_kernarg_segment_ptr 1
  .amdhsa_system_sgpr_workgroup_id_x 1
.end_amdhsa_kernel""")
    return "\n".join(o) + "\n"

if __name__ == "__main__":
    kw = eval("dict(" + (sys.argv[2] if len(sys.argv) > 2 else "") + ")")
    open(sys.argv[1], "w").write(gen(**kw))
```
